```python
import torch

def _softmax(x, axis=-1):
    return torch.softmax(x, dim=axis)
def _gelu(x):
    return torch.nn.functional.gelu(x, approximate="tanh")
def _silu(x):
    return torch.nn.functional.silu(x)
def _sigmoid(x):
    return torch.sigmoid(x)
def _layernorm(x, axis=-1, eps=1e-5):
    m = x.mean(dim=axis, keepdim=True)
    v = x.var(dim=axis, keepdim=True, unbiased=False)
    return (x - m) / torch.sqrt(v + eps)
def _scatter_add(tgt, idx, src, axis=0):
    return tgt.clone().index_add_(axis, idx, src)
def _segment_sum(src, seg, n):
    out = torch.zeros((n,) + src.shape[1:], dtype=src.dtype)
    return out.index_add_(0, seg, src)
def _pad(x, pw):
    flat = tuple(v for pair in reversed(pw) for v in pair)
    return torch.nn.functional.pad(x, flat)

kernel_name = 'gated_mix__sliding_block_cached__dense_activation_squared_relu__decode'

def setup_inputs():

    _w = (lambda a: (lambda t: t.to(torch.bfloat16) if t.is_floating_point() else t)(torch.as_tensor(a)))
    def _A_setup():
        B, Sq, D = 1, 1, 448
        Hq, Hkv, Sk, Dh = 16, 8, 65536, 256
        assert Hq % Hkv == 0, (Hq, Hkv)
        return {
            "x": _w((lambda *s: torch.randn(*s, dtype=torch.bfloat16) * 0.05)(B, Sq, D)),
            "k_cache": _w((lambda *s: torch.randn(*s, dtype=torch.bfloat16) * 3.2)(B, Hkv, Sk, Dh)),
            "v_cache": _w((lambda *s: torch.randn(*s, dtype=torch.bfloat16) * 1.6)(B, Hkv, Sk, Dh)),
            "wq": _w((lambda *s: torch.randn(*s, dtype=torch.bfloat16) * 3.2)(D, Hq * Dh) * (D ** -0.5)),
            "wo": _w((lambda *s: torch.randn(*s, dtype=torch.bfloat16) * 1.6)(Hq * Dh, D) * ((Hq * Dh) ** -0.5)),
        }
    _A_in = _A_setup()

    def _B_setup():
        B, S, D, F = 1, 1, 448, 1792
        return {
            "x": _w((lambda *s: torch.randn(*s, dtype=torch.bfloat16) * 0.05)(B, S, D)),
            "w1": _w((lambda *s: torch.randn(*s, dtype=torch.bfloat16) * 0.1)(D, F)),
            "b1": _w((lambda *s: torch.randn(*s, dtype=torch.bfloat16) * 0.05)(F)),
            "w2": _w((lambda *s: torch.randn(*s, dtype=torch.bfloat16) * 0.05)(F, D)),
            "b2": _w((lambda *s: torch.randn(*s, dtype=torch.bfloat16) * 0.05)(D)),
        }
    _B_in = _B_setup()

    return {
        "A_x": _A_in["x"],
        "A_k_cache": _A_in["k_cache"],
        "A_v_cache": _A_in["v_cache"],
        "A_wq": _A_in["wq"],
        "A_wo": _A_in["wo"],
        "B_x": _B_in["x"],
        "B_w1": _B_in["w1"],
        "B_b1": _B_in["b1"],
        "B_w2": _B_in["w2"],
        "B_b2": _B_in["b2"],
        "gate_w": _w((lambda *s: torch.randn(*s, dtype=torch.bfloat16) * 0.05)(448) * 16.0),
    }

def reference(A_x, A_k_cache, A_v_cache, A_wq, A_wo, B_x, B_w1, B_b1, B_w2, B_b2, gate_w):
    def _A_ref(x, k_cache, v_cache, wq, wo):
        B, Sq, D = x.shape
        Hq, Dh = 16, 256
        Hkv, Sk = k_cache.shape[1], k_cache.shape[2]
        W = min(4096, max(256, Sk // 4))
        rep = Hq // Hkv
        q = (lambda x, *d: x.permute(*d))((x @ wq).reshape(B, Sq, Hq, Dh), 0, 2, 1, 3)
        k = (lambda x, n, axis: torch.repeat_interleave(x, n, dim=axis))(k_cache[:, :, Sk - W:, :], rep, axis=1)
        v = (lambda x, n, axis: torch.repeat_interleave(x, n, dim=axis))(v_cache[:, :, Sk - W:, :], rep, axis=1)
        scores = torch.einsum("bhqd,bhkd->bhqk", q, k) * (Dh ** -0.5)
        p = _softmax(scores, axis=-1)
        o = torch.einsum("bhqk,bhkd->bhqd", p, v)
        return (lambda x, *d: x.permute(*d))(o, 0, 2, 1, 3).reshape(B, Sq, Hq * Dh) @ wo

    def _B_ref(x, w1, b1, w2, b2):
        h = torch.einsum("bsd,df->bsf", x, w1) + b1
        zero = torch.zeros_like(h)
        r = torch.where(h > zero, h, zero)
        h = r * r
        out = torch.einsum("bsf,fd->bsd", h, w2) + b2
        return out

    x = A_x
    g = _sigmoid((x * gate_w).sum(-1, keepdims=True))
    a = _A_ref(x, A_k_cache, A_v_cache, A_wq, A_wo)
    b = _B_ref(x, B_w1, B_b1, B_w2, B_b2)
    return g * a + (1 - g) * b
```

```python
import sys, argparse

ap = argparse.ArgumentParser()
ap.add_argument("--W", type=int, default=6)
ap.add_argument("--stamps", action="store_true")
ap.add_argument("--name", default="gated_mix__sliding_block_cached__dense_activation_squared_relu__decode_kernel")
ap.add_argument("--spin", type=int, default=1 << 22)
ap.add_argument("--qsleep", type=int, default=4)
ap.add_argument("--slowmask", type=int, default=31)
ap.add_argument("--order", default="K,W1,V,WO,W2")
ap.add_argument("--rotmul", type=int, default=7)
args = ap.parse_args()
W = args.W
STAMPS = args.stamps
NAME = args.name

out = []
def A(s=""):
    out.append(s)
def I(s):
    out.append("    " + s)
def L(s):
    out.append(s + ":")
def nop(n):
    if n > 0:
        I(f"s_nop {n-1}")

PITCH = 928
R_A = 0
R_V = 65536
R_W = R_V + 65536
R_X = R_W + 14336
R_Q = R_X + 1024
R_P = R_Q + 1024
R_F = R_P + 512
R_M = R_F + 1024
M_MAX = R_M
M_LSUM = R_M + 32
M_QCNT = R_M + 256
M_NONCEFLAG = R_M + 260
M_QKDONE = R_M + 264
M_PCNT = R_M + 268
M_HFLAG = R_M + 272
M_QTASK = R_M + 276
M_FCNT = R_M + 280
M_FSUM = R_M + 288
M_NONCE = R_M + 304
M_G = R_M + 320
M_H = R_M + 336
LDS_TOTAL = R_M + 512
assert LDS_TOTAL <= 163840, LDS_TOTAL

WS_Q = 0x000000
WS_H = 0x040000
WS_T = 0x060000
WS_O = 0x100000
WS_P = 0x200000
WS_E = 0x300000
WS_STAMP = 0x400000
FAST = 0x800000
WS_RANGE = 0x1000000

order = args.order.split(",")
stage = {"WQ": 1}
n = 2
for o in order:
    if o in ("K", "V"):
        for q in range(4):
            stage[f"{o}{q}"] = n; n += 1
    elif o in ("Va", "Vb"):
        for q in (range(3) if o == "Va" else range(3, 4)):
            stage[f"V{q}"] = n; n += 1
    else:
        stage[o] = n; n += 1

sWAVE, sH, sJ, sHH, sRQ, sA, sFFN = 3, 4, 5, 6, 7, 8, 9
sT0, sT1, sT2, sT3 = 10, 11, 12, 13
sSPIN = 14
sRND = 15
SRD = {}
def S4(name):
    b = SRD[name]
    return f"s[{b}:{b+3}]"
for i, nm in enumerate(["a", "b", "c", "d", "e", "f", "g", "h"]):
    SRD[nm] = 44 + 4 * i
sN0, sN1 = 76, 77
sMA, sMB = 78, 80
sX0 = 82

def build_srd(name, plo, off_sgpr, size):
    b = SRD[name]
    if off_sgpr is None:
        I(f"s_mov_b32 s{b}, s{plo}")
        I(f"s_mov_b32 s{b+1}, s{plo+1}")
    else:
        I(f"s_add_u32 s{b}, s{plo}, s{off_sgpr}")
        I(f"s_addc_u32 s{b+1}, s{plo+1}, 0")
    I(f"s_mov_b32 s{b+2}, {size}")
    I(f"s_mov_b32 s{b+3}, 0x00020000")

def stamp(k):
    if STAMPS:
        I(f"s_memrealtime s[{16+2*k}:{17+2*k}]")

def stamp_flush(n=14):
    if not STAMPS:
        return
    I("s_waitcnt lgkmcnt(0)")
    I("s_mov_b64 exec, 1")
    for k in range(16):
        I(f"v_mov_b32 v{232+k}, s{16+2*min(k,n-1)}")
    for k in range(0, 16, 4):
        I(f"buffer_store_dwordx4 v[{232+k}:{235+k}], v253, {S4('h')}, 0 offen offset:{4*k}")

lbl = [0]
def newlabel(p="L"):
    lbl[0] += 1
    return f"{p}_{lbl[0]}"

def spin_lds_ge(vaddr, off, val, vt, sleep=1):
    l = newlabel("SP"); d = newlabel("SD")
    L(l)
    I(f"ds_read_b32 v{vt}, v{vaddr} offset:{off}")
    I("s_waitcnt lgkmcnt(0)")
    I(f"v_readfirstlane_b32 s{sT0}, v{vt}")
    I(f"s_cmp_ge_u32 s{sT0}, {val}")
    I(f"s_cbranch_scc1 {d}")
    if sleep:
        I(f"s_sleep {sleep}")
    I(f"s_branch {l}")
    L(d)

def spin_prog_all(vaddr, val, vt, sleep=1):
    l = newlabel("SP"); d = newlabel("SD")
    L(l)
    I(f"ds_read_b128 v[{vt}:{vt+3}], v{vaddr}")
    I("s_waitcnt lgkmcnt(0)")
    I(f"v_min3_u32 v{vt}, v{vt}, v{vt+1}, v{vt+2}")
    I(f"v_min_u32 v{vt}, v{vt}, v{vt+3}")
    nop(1)
    I(f"v_readfirstlane_b32 s{sT0}, v{vt}")
    I(f"s_cmp_ge_u32 s{sT0}, {val}")
    I(f"s_cbranch_scc1 {d}")
    if sleep:
        I(f"s_sleep {sleep}")
    I(f"s_branch {l}")
    L(d)

def xreduce(v, t, op, rors, swaps=("v_permlane16_swap_b32", "v_permlane32_swap_b32")):
    for r in rors:
        nop(2)
        I(f"{op}_dpp v{v}, v{v}, v{v} row_ror:{r} row_mask:0xf bank_mask:0xf")
    for sw in swaps:
        I(f"v_mov_b32 v{t}, v{v}")
        nop(2)
        I(f"{sw} v{v}, v{t}")
        nop(1)
        I(f"{op} v{v}, v{v}, v{t}")

def xreduce2(v, w, t, u, op, rors, swaps=("v_permlane16_swap_b32", "v_permlane32_swap_b32")):
    for r in rors:
        nop(1)
        I(f"{op}_dpp v{v}, v{v}, v{v} row_ror:{r} row_mask:0xf bank_mask:0xf")
        I(f"{op}_dpp v{w}, v{w}, v{w} row_ror:{r} row_mask:0xf bank_mask:0xf")
    for sw in swaps:
        I(f"v_mov_b32 v{t}, v{v}")
        I(f"v_mov_b32 v{u}, v{w}")
        nop(1)
        I(f"{sw} v{v}, v{t}")
        I(f"{sw} v{w}, v{u}")
        nop(1)
        I(f"{op} v{v}, v{v}, v{t}")
        I(f"{op} v{w}, v{w}, v{u}")

def pick(sdst, sbase):
    I(f"s_add_u32 s{sRND}, s{sRND}, 1")
    I(f"s_and_b32 s{sdst}, s{sRND}, {args.slowmask}")
    I(f"s_cmp_eq_u32 s{sdst}, 0")
    I(f"s_cselect_b32 s{sdst}, 0, {FAST}")
    I(f"s_add_u32 s{sdst}, s{sdst}, s{sbase}")

def dual_store(nn, data, vaddr, soff, stmp):
    I(f"s_add_u32 s{stmp}, s{soff}, {FAST}")
    I(f"buffer_store_dwordx{nn} {data}, v{vaddr}, {S4('h')}, s{stmp} offen")
    I(f"buffer_store_dwordx{nn} {data}, v{vaddr}, {S4('h')}, s{soff} offen sc1")

def tagcheck(regs, loop, done):
    I(f"v_cmp_eq_u64 vcc, s[{sN0}:{sN1}], v[{regs[0]+2}:{regs[0]+3}]")
    for r in regs[1:]:
        I(f"v_cmp_eq_u64 s[{sX0+4}:{sX0+5}], s[{sN0}:{sN1}], v[{r+2}:{r+3}]")
        I(f"s_and_b64 vcc, vcc, s[{sX0+4}:{sX0+5}]")
    I(f"s_sub_u32 s{sSPIN}, s{sSPIN}, 1")
    I(f"s_cbranch_scc1 {done}")
    I("s_cmp_eq_u64 vcc, exec")
    I(f"s_cbranch_scc0 {loop}")

A(f"; @launch grid=(256,1,1) block=(512,1,1) lds={LDS_TOTAL}")
A('.amdgcn_target "amdgcn-amd-amdhsa--gfx950"')
A(".text")
A(f".globl {NAME}")
A(".p2align 8")
A(f".type {NAME},@function")
L(NAME)
I("s_cmp_ge_u32 s2, 256")
I("s_cbranch_scc1 L_END")
I("s_load_dwordx16 s[16:31], s[0:1], 0")
I("s_load_dwordx8 s[32:39], s[0:1], 64")
I("s_load_dwordx4 s[40:43], s[0:1], 96")
I("v_lshrrev_b32 v2, 6, v0")
I("v_and_b32 v1, 63, v0")
I(f"s_and_b32 s{sH}, s2, 7")
I(f"v_readfirstlane_b32 s{sWAVE}, v2")
I(f"s_lshr_b32 s{sJ}, s2, 3")
I(f"s_lshr_b32 s{sHH}, s{sJ}, 4")
I(f"s_and_b32 s{sRQ}, s{sJ}, 3")
I(f"s_lshr_b32 s{sA}, s{sJ}, 2")
I(f"s_lshl_b32 s{sA}, s{sA}, 3")
I(f"s_add_u32 s{sA}, s{sA}, s{sH}")
I(f"s_cmp_lt_u32 s{sA}, 28")
I(f"s_cselect_b32 s{sFFN}, 1, 0")
I(f"s_cselect_b32 s{sA}, s{sA}, 0")
if STAMPS:
    I(f"s_lshl_b32 s{sT0}, s2, 3")
    I(f"s_add_u32 s{sT0}, s{sT0}, s{sWAVE}")
    I(f"s_lshl_b32 s{sT0}, s{sT0}, 7")
    I(f"s_add_u32 s{sT0}, s{sT0}, {WS_STAMP}")
    I(f"v_mov_b32 v253, s{sT0}")
I(f"s_cmp_ge_u32 s{sWAVE}, 4")
I("s_cbranch_scc1 L_LOADER")

vLANE = 1
vG4 = 3
vN = 4
vMISC = 5
vPROG = 6
vGA, vGB = 128, 129
I(f"v_lshrrev_b32 v{vG4}, 4, v{vLANE}")
I(f"v_and_b32 v{vN}, 15, v{vLANE}")
I(f"v_mov_b32 v{vMISC}, {R_M}")
I(f"v_mov_b32 v{vPROG}, {R_F}")
I(f"s_mov_b32 s{sSPIN}, {args.spin}")
I(f"s_mov_b32 s{sRND}, 0")
I("s_waitcnt lgkmcnt(0)")
build_srd("h", 42, None, hex(WS_RANGE))
build_srd("a", 16, None, 896)
build_srd("c", 36, None, 896)
build_srd("d", 30, None, 3584)
build_srd("e", 34, None, 896)
build_srd("f", 38, None, 896)
stamp(0)
I(f"s_cmp_eq_u32 s{sWAVE}, 1")
I("s_cbranch_scc1 L_C1")
I(f"s_cmp_eq_u32 s{sWAVE}, 2")
I("s_cbranch_scc1 L_C2")
I(f"s_cmp_eq_u32 s{sWAVE}, 3")
I("s_cbranch_scc1 L_C3")

I(f"v_lshlrev_b32 v8, 4, v{vLANE}")
I(f"s_lshl_b32 s{sT0}, s{sH}, 14")
I(f"s_lshl_b32 s{sT1}, s{sRQ}, 12")
I(f"s_add_u32 s{sT0}, s{sT0}, s{sT1}")
I(f"s_lshr_b32 s{sT1}, s{sJ}, 2")
I(f"s_lshl_b32 s{sT1}, s{sT1}, 9")
I(f"s_add_u32 s{sT0}, s{sT0}, s{sT1}")
I(f"s_add_u32 s{sT0}, s{sT0}, {WS_Q + FAST}")
I("s_mov_b32 exec_hi, 0")
I(f"buffer_load_dwordx4 v[204:207], v8, {S4('h')}, s{sT0} offen sc1")
I(f"s_lshl_b32 s{sT0}, s{sA}, 11")
I(f"s_lshl_b32 s{sT1}, s{sRQ}, 9")
I(f"s_add_u32 s{sT0}, s{sT0}, s{sT1}")
I(f"s_add_u32 s{sT0}, s{sT0}, {WS_H + FAST}")
I(f"buffer_load_dwordx4 v[208:211], v8, {S4('h')}, s{sT0} offen sc1")
I("s_mov_b64 exec, -1")
I("s_barrier")
I("s_branch L_CQ")

L("L_C1")
I(f"v_mov_b32 v8, {WS_E}")
I(f"buffer_load_dwordx2 v[12:13], v8, {S4('h')}, 0 offen sc1")
I("s_barrier")
I("s_waitcnt vmcnt(0)")
I("v_add_u32 v12, 0x7f4a7c15, v12")
I("v_xor_b32 v13, 0x9e3779b9, v13")
I("v_mov_b32 v14, 1")
I("s_mov_b64 exec, 1")
I(f"ds_write_b64 v{vMISC}, v[12:13] offset:{M_NONCE - R_M}")
I(f"ds_write_b32 v{vMISC}, v14 offset:{M_NONCEFLAG - R_M}")
I("s_mov_b64 exec, -1")
I("s_branch L_CQ")

L("L_C2")
I(f"v_lshlrev_b32 v8, 4, v{vLANE}")
I(f"buffer_load_dwordx4 v[16:19], v8, {S4('a')}, 0 offen")
I(f"buffer_load_dwordx4 v[20:23], v8, {S4('c')}, 0 offen")
I("s_barrier")
I("s_waitcnt vmcnt(0)")
I("v_mov_b32 v9, 0")
for k in range(4):
    I(f"v_lshlrev_b32 v10, 16, v{16+k}")
    I(f"v_lshlrev_b32 v11, 16, v{20+k}")
    I(f"v_and_b32 v12, 0xffff0000, v{16+k}")
    I(f"v_and_b32 v13, 0xffff0000, v{20+k}")
    I("v_mul_f32 v10, v10, v11")
    I("v_mul_f32 v12, v12, v13")
    I("v_cvt_pk_bf16_f32 v10, v10, v12")
    I("v_lshlrev_b32 v11, 16, v10")
    I("v_and_b32 v12, 0xffff0000, v10")
    I("v_add_f32 v9, v9, v11")
    I("v_add_f32 v9, v9, v12")
xreduce(9, 10, "v_add_f32", (1, 2, 4, 8))
I("v_cvt_pk_bf16_f32 v9, v9, v9")
I("v_lshlrev_b32 v9, 16, v9")
I("v_mul_f32 v9, 0xbfb8aa3b, v9")
I("v_exp_f32 v9, v9")
nop(1)
I("v_add_f32 v9, 1.0, v9")
I("v_rcp_f32 v9, v9")
nop(1)
I("v_cvt_pk_bf16_f32 v9, v9, v9")
I("v_lshlrev_b32 v10, 16, v9")
I("v_sub_f32 v11, 1.0, v10")
I("v_cvt_pk_bf16_f32 v11, v11, v11")
I("v_lshlrev_b32 v11, 16, v11")
I("s_mov_b64 exec, 1")
I(f"ds_write_b64 v{vMISC}, v[10:11] offset:{M_G - R_M}")
I("s_mov_b64 exec, -1")
I("s_branch L_CQ")

L("L_C3")
I("v_mov_b32 v8, 0")
I("v_mov_b32 v9, 0")
I("v_mov_b32 v10, 0")
I("v_mov_b32 v11, 0")
I(f"v_lshlrev_b32 v12, 4, v{vLANE}")
I(f"v_add_u32 v12, {R_F}, v12")
I("ds_write_b128 v12, v[8:11]")
I("s_mov_b32 exec_hi, 0")
I("ds_write_b128 v12, v[8:11] offset:1024")
I("s_mov_b64 exec, -1")
I("s_waitcnt lgkmcnt(0)")
I("s_barrier")

def gemv_tile(acc, A0, B0):
    for k in range(3):
        I(f"ds_read2_b64 v[{A0+4*k}:{A0+4*k+3}], v{vGA} offset0:{k*8} offset1:{k*8+4}")
        I(f"ds_read_b64_tr_b16 v[{B0+4*k}:{B0+4*k+1}], v{vGB} offset:{k*4096}")
        I(f"ds_read_b64_tr_b16 v[{B0+4*k+2}:{B0+4*k+3}], v{vGB} offset:{k*4096+2048}")
    I(f"ds_read_b64 v[{A0+12}:{A0+13}], v{vGA} offset:192")
    I(f"ds_read_b64_tr_b16 v[{B0+12}:{B0+13}], v{vGB} offset:{3*4096}")
    for k in range(3):
        I(f"s_waitcnt lgkmcnt({8-3*k})")
        c = "0" if k == 0 else f"v[{acc}:{acc+3}]"
        I(f"v_mfma_f32_16x16x32_bf16 v[{acc}:{acc+3}], v[{A0+4*k}:{A0+4*k+3}], v[{B0+4*k}:{B0+4*k+3}], {c}")
    I("s_waitcnt lgkmcnt(0)")
    nop(8)
    I(f"v_mfma_f32_16x16x16_bf16 v[{acc}:{acc+3}], v[{A0+12}:{A0+13}], v[{B0+12}:{B0+13}], v[{acc}:{acc+3}]")

def publish_pairs16(acc, soff):
    I(f"v_lshlrev_b32 v8, 3, v{vLANE}")
    nop(6)
    I(f"v_mov_b32 v120, v{acc}")
    I(f"v_mov_b32_dpp v121, v{acc} quad_perm:[1,0,3,2] row_mask:0xf bank_mask:0xf")
    I("s_mov_b64 exec, 0x5555")
    dual_store(4, "v[120:123]", 8, soff, sT1)
    I("s_mov_b64 exec, -1")

L("L_CQ")
I(f"s_mul_i32 s{sT0}, s{sRQ}, 224")
I(f"s_add_u32 s{sT0}, s{sT0}, {R_X}")
I(f"v_lshlrev_b32 v{vGA}, 3, v{vG4}")
I(f"v_add_u32 v{vGA}, s{sT0}, v{vGA}")
I(f"v_bfe_u32 v10, v{vLANE}, 2, 2")
I(f"v_lshl_add_u32 v10, v{vG4}, 2, v10")
I("v_bfe_u32 v11, v10, 1, 2")
I(f"v_xor_b32 v11, s{sWAVE}, v11")
I("v_lshlrev_b32 v11, 5, v11")
I("v_lshl_add_u32 v11, v10, 7, v11")
I(f"v_and_b32 v10, 3, v{vLANE}")
I("v_lshl_add_u32 v11, v10, 3, v11")
I(f"v_add_u32 v{vGB}, {R_W}, v11")
I(f"s_lshl_b32 s{sT2}, s{sH}, 14")
I(f"s_lshl_b32 s{sT1}, s{sRQ}, 12")
I(f"s_add_u32 s{sT2}, s{sT2}, s{sT1}")
I(f"s_lshr_b32 s{sT1}, s{sJ}, 2")
I(f"s_lshl_b32 s{sT1}, s{sT1}, 9")
I(f"s_add_u32 s{sT2}, s{sT2}, s{sT1}")
I(f"s_lshl_b32 s{sT1}, s{sWAVE}, 7")
I(f"s_add_u32 s{sT2}, s{sT2}, s{sT1}")
I(f"s_add_u32 s{sT2}, s{sT2}, {WS_Q}")
spin_lds_ge(vMISC, M_NONCEFLAG - R_M, 1, 13, sleep=1)
I(f"ds_read_b64 v[122:123], v{vMISC} offset:{M_NONCE - R_M}")
spin_prog_all(vPROG, stage["WQ"], 136, sleep=0)
stamp(1)
I(f"v_readfirstlane_b32 s{sN0}, v122")
I(f"v_readfirstlane_b32 s{sN1}, v123")
gemv_tile(112, 16, 32)
I("v_mov_b32 v9, 1")
I("s_mov_b64 exec, 1")
I(f"ds_add_u32 v{vMISC}, v9 offset:{M_QTASK - R_M}")
I("s_mov_b64 exec, -1")
publish_pairs16(112, sT2)
stamp(2)
I(f"v_lshlrev_b32 v8, 4, v{vLANE}")
I(f"s_lshl_b32 s{sT3}, s{sH}, 5")
I(f"s_add_u32 s{sT3}, s{sT3}, s{sJ}")
I(f"s_lshl_b32 s{sT3}, s{sT3}, 12")
I(f"s_lshl_b32 s{sT1}, s{sWAVE}, 10")
I(f"s_add_u32 s{sT3}, s{sT3}, s{sT1}")
I(f"s_add_u32 s{sT3}, s{sT3}, {WS_O + FAST}")
I(f"s_lshl_b32 s{sT2}, s{sH}, 14")
I(f"s_add_u32 s{sT2}, s{sT2}, s{sT1}")
I(f"s_add_u32 s{sT2}, s{sT2}, {WS_Q}")
I(f"v_add_u32 v9, 4096, v8")
I(f"v_add_u32 v10, 8192, v8")
I(f"v_add_u32 v11, 12288, v8")
L("L_QPOLL")
I(f"s_sleep {args.qsleep}")
pick(sT1, sT2)
for r in range(4):
    I(f"buffer_load_dwordx4 v[{16+4*r}:{19+4*r}], v{8+r}, {S4('h')}, s{sT1} offen sc1")
I("s_waitcnt vmcnt(0)")
tagcheck([16, 20, 24, 28], "L_QPOLL", "L_QPOLL_DONE")
L("L_QPOLL_DONE")
I(f"buffer_load_dwordx4 v[212:215], v8, {S4('h')}, s{sT3} offen sc1")
I(f"s_lshl_b32 s{sT2}, s{sH}, 10")
I(f"s_add_u32 s{sT2}, s{sT2}, {WS_T + FAST}")
I(f"buffer_load_dwordx4 v[216:219], v8, {S4('h')}, s{sT2} offen sc1")
I("v_add_f32 v16, v16, v20")
I("v_add_f32 v17, v17, v21")
I("v_add_f32 v24, v24, v28")
I("v_add_f32 v25, v25, v29")
I("v_add_f32 v16, v16, v24")
I("v_add_f32 v17, v17, v25")
I("v_cvt_pk_bf16_f32 v16, v16, v17")
I(f"s_lshl_b32 s{sT1}, s{sWAVE}, 8")
I(f"s_add_u32 s{sT1}, s{sT1}, {R_Q}")
I(f"v_lshlrev_b32 v9, 2, v{vLANE}")
I(f"v_add_u32 v9, s{sT1}, v9")
I("v_mov_b32 v10, 1")
I("ds_write_b32 v9, v16")
I("s_waitcnt lgkmcnt(0)")
I("s_mov_b64 exec, 1")
I(f"ds_add_u32 v{vMISC}, v10 offset:{M_QCNT - R_M}")
I("s_mov_b64 exec, -1")
stamp(3)
qA = 40
kB = 140
acc0, acc1 = 112, 116
I(f"v_and_b32 v8, 1, v{vLANE}")
I("v_lshlrev_b32 v8, 9, v8")
I(f"v_lshl_add_u32 v8, v{vG4}, 4, v8")
I(f"v_add_u32 v8, {R_Q}, v8")
I(f"v_and_b32 v9, 3, v{vN}")
I(f"v_xor_b32 v9, v{vG4}, v9")
I(f"v_and_b32 v10, 12, v{vN}")
I("v_or_b32 v9, v9, v10")
I("v_lshlrev_b32 v9, 4, v9")
I(f"v_lshl_add_u32 v9, v{vN}, 10, v9")
I(f"s_lshl_b32 s{sT0}, s{sWAVE}, 14")
I(f"v_add_u32 v9, s{sT0}, v9")
for q in range(1, 4):
    I(f"v_xor_b32 v{9+q}, {q*64}, v9")
I(f"s_add_u32 s{sT3}, s{sWAVE}, {stage['K0']}")
spin_prog_all(vPROG, f"s{sT3}", 136)
for t in range(2):
    for i in range(8):
        r = kB + (t*8+i)*4
        I(f"ds_read_b128 v[{r}:{r+3}], v{9+(i&3)} offset:{t*512 + (i>>2)*256}")
spin_lds_ge(vMISC, M_QCNT - R_M, 4, 13, sleep=0)
stamp(4)
for i in range(8):
    I(f"ds_read_b128 v[{qA+4*i}:{qA+4*i+3}], v8 offset:{i*64}")
for i in range(8):
    I(f"s_waitcnt lgkmcnt({7-i})")
    for t in range(2):
        acc = acc0 if t == 0 else acc1
        r = kB + (t*8+i)*4
        c = "0" if i == 0 else f"v[{acc}:{acc+3}]"
        I(f"v_mfma_f32_16x16x32_bf16 v[{acc}:{acc+3}], v[{qA+4*i}:{qA+4*i+3}], v[{r}:{r+3}], {c}")
CEXP = "0x3db8aa3b"
I(f"s_mov_b32 s{sT2}, {CEXP}")
I(f"s_lshl_b32 s{sT1}, s{sWAVE}, 3")
I(f"v_mov_b32 v8, s{sT1}")
I(f"v_add_u32 v8, {M_MAX}, v8")
nop(5)
I(f"v_cvt_pk_bf16_f32 v120, v{acc0}, v{acc1}")
I(f"v_cvt_pk_bf16_f32 v121, v{acc0+1}, v{acc1+1}")
I("v_lshlrev_b32 v16, 16, v120")
I("v_and_b32 v17, 0xffff0000, v120")
I("v_lshlrev_b32 v18, 16, v121")
I("v_and_b32 v19, 0xffff0000, v121")
I("v_max_f32 v20, v16, v17")
I("v_max_f32 v21, v18, v19")
for r in (1, 2, 4, 8):
    nop(1)
    I(f"v_max_f32_dpp v20, v20, v20 row_ror:{r} row_mask:0xf bank_mask:0xf")
    I(f"v_max_f32_dpp v21, v21, v21 row_ror:{r} row_mask:0xf bank_mask:0xf")
I("v_mov_b32 v9, 1")
I("s_mov_b64 exec, 1")
I("ds_write_b64 v8, v[20:21]")
I("s_waitcnt lgkmcnt(0)")
I(f"ds_add_u32 v{vMISC}, v9 offset:{M_QKDONE - R_M}")
I("s_mov_b64 exec, -1")
spin_lds_ge(vMISC, M_QKDONE - R_M, 4, 13, sleep=0)
I(f"ds_read_b128 v[24:27], v{vMISC} offset:{M_MAX - R_M}")
I(f"ds_read_b128 v[28:31], v{vMISC} offset:{M_MAX - R_M + 16}")
I("s_waitcnt lgkmcnt(0)")
I("v_max_f32 v20, v24, v26")
I("v_max_f32 v21, v25, v27")
I("v_max3_f32 v20, v20, v28, v30")
I("v_max3_f32 v21, v21, v29, v31")
I("v_sub_f32 v16, v16, v20")
I("v_sub_f32 v17, v17, v20")
I("v_sub_f32 v18, v18, v21")
I("v_sub_f32 v19, v19, v21")
for k in range(4):
    I(f"v_mul_f32 v{16+k}, s{sT2}, v{16+k}")
for k in range(4):
    I(f"v_exp_f32 v{16+k}, v{16+k}")
nop(1)
I("v_cvt_pk_bf16_f32 v24, v16, v17")
I("v_cvt_pk_bf16_f32 v25, v18, v19")
I("v_add_f32 v22, v16, v17")
I("v_add_f32 v23, v18, v19")
I(f"s_lshl_b32 s{sT1}, s{sWAVE}, 6")
I(f"s_add_u32 s{sT1}, s{sT1}, {R_P}")
I(f"v_lshlrev_b32 v8, 2, v{vN}")
I(f"v_add_u32 v8, s{sT1}, v8")
I("s_mov_b64 exec, 0xffff")
I("ds_write_b32 v8, v24")
I("ds_write_b32 v8, v25 offset:256")
I("s_mov_b64 exec, -1")
for r in (1, 2, 4, 8):
    nop(1)
    I(f"v_add_f32_dpp v22, v22, v22 row_ror:{r} row_mask:0xf bank_mask:0xf")
    I(f"v_add_f32_dpp v23, v23, v23 row_ror:{r} row_mask:0xf bank_mask:0xf")
I("s_mov_b64 exec, 1")
I(f"ds_add_f32 v{vMISC}, v22 offset:{M_LSUM - R_M}")
I(f"ds_add_f32 v{vMISC}, v23 offset:{M_LSUM - R_M + 4}")
I("s_waitcnt lgkmcnt(0)")
I(f"ds_add_u32 v{vMISC}, v9 offset:{M_PCNT - R_M}")
I("s_mov_b64 exec, -1")
I(f"v_and_b32 v10, 1, v{vLANE}")
I("v_lshlrev_b32 v10, 8, v10")
I(f"v_lshl_add_u32 v10, v{vG4}, 3, v10")
I(f"v_add_u32 v10, {R_P}, v10")
I(f"v_bfe_u32 v11, v{vLANE}, 2, 2")
I(f"v_lshl_add_u32 v12, v{vG4}, 2, v11")
I("v_and_b32 v13, 7, v12")
I(f"s_lshl_b32 s{sT1}, s{sWAVE}, 2")
I(f"v_xor_b32 v13, s{sT1}, v13")
I("v_lshlrev_b32 v13, 5, v13")
I("v_lshl_add_u32 v13, v12, 9, v13")
I(f"v_and_b32 v14, 3, v{vLANE}")
I("v_lshl_add_u32 v13, v14, 3, v13")
I(f"v_add_u32 v32, {R_V}, v13")
for tt in range(1, 4):
    I(f"v_xor_b32 v{32+tt}, {tt*32}, v32")
spin_lds_ge(vMISC, M_PCNT - R_M, 4, 13, sleep=0)
pA = 36
for s in range(4):
    I(f"ds_read2_b64 v[{pA+4*s}:{pA+4*s+3}], v10 offset0:{s*8} offset1:{s*8+4}")
sk = newlabel("NOSTAT")
I(f"s_cmp_lg_u32 s{sWAVE}, 0")
I(f"s_cbranch_scc1 {sk}")
I(f"ds_read_b64 v[22:23], v{vMISC} offset:{M_LSUM - R_M}")
I(f"v_cmp_eq_u32 vcc, 1, v{vLANE}")
I(f"s_lshl_b32 s{sT0}, s{sH}, 10")
I(f"s_lshl_b32 s{sT1}, s{sJ}, 4")
I(f"s_add_u32 s{sT0}, s{sT0}, s{sT1}")
I(f"s_add_u32 s{sT0}, s{sT0}, {WS_T}")
I(f"v_lshlrev_b32 v8, 9, v{vLANE}")
I("s_waitcnt lgkmcnt(0)")
I("v_cndmask_b32 v120, v20, v21, vcc")
I("v_cndmask_b32 v121, v22, v23, vcc")
I("s_mov_b64 exec, 3")
dual_store(4, "v[120:123]", 8, sT0, sT1)
I("s_mov_b64 exec, -1")
L(sk)
stamp(5)
I(f"s_cmp_eq_u32 s{sFFN}, 0")
I("s_cbranch_scc1 L_NOFFN1")
I(f"s_lshl_b32 s{sT2}, s{sA}, 11")
I(f"s_lshl_b32 s{sT1}, s{sRQ}, 9")
I(f"s_add_u32 s{sT2}, s{sT2}, s{sT1}")
I(f"s_lshl_b32 s{sT1}, s{sWAVE}, 7")
I(f"s_add_u32 s{sT2}, s{sT2}, s{sT1}")
I(f"s_add_u32 s{sT2}, s{sT2}, {WS_H}")
spin_prog_all(vPROG, stage["W1"], 136)
gemv_tile(112, 140, 156)
nop(2)
publish_pairs16(112, sT2)
L("L_NOFFN1")
vB = 52
accO = 68
for s in range(4):
    spin_prog_all(vPROG, stage[f"V{s}"], 136, sleep=(1 if s < 3 else 0))
    for tt in range(4):
        I(f"ds_read_b64_tr_b16 v[{vB+4*tt}:{vB+4*tt+1}], v{32+tt} offset:{s*16384}")
        I(f"ds_read_b64_tr_b16 v[{vB+4*tt+2}:{vB+4*tt+3}], v{32+tt} offset:{s*16384+8192}")
    for tt in range(4):
        I(f"s_waitcnt lgkmcnt({6-2*tt})")
        c = "0" if s == 0 else f"v[{accO+4*tt}:{accO+4*tt+3}]"
        I(f"v_mfma_f32_16x16x32_bf16 v[{accO+4*tt}:{accO+4*tt+3}], v[{pA+4*s}:{pA+4*s+3}], v[{vB+4*tt}:{vB+4*tt+3}], {c}")
    if s == 2:
        I(f"v_cmp_eq_u32 s[{sMA}:{sMA+1}], 2, v{vG4}")
        I(f"v_cmp_eq_u32 s[{sMB}:{sMB+1}], 3, v{vG4}")
        I(f"v_cmp_eq_u32 s[{sX0}:{sX0+1}], 1, v{vG4}")
        I(f"v_and_b32 v8, 1, v{vLANE}")
        I(f"v_cmp_eq_u32 s[{sX0+2}:{sX0+3}], 1, v8")
        I(f"v_lshl_add_u32 v9, v8, 4, v{vG4}")
        I("v_lshlrev_b32 v9, 12, v9")
        I(f"v_lshrrev_b32 v10, 1, v{vN}")
        I("v_lshl_add_u32 v9, v10, 4, v9")
        I(f"s_lshl_b32 s{sT3}, s{sH}, 5")
        I(f"s_lshl_b32 s{sT1}, s{sWAVE}, 2")
        I(f"s_add_u32 s{sT3}, s{sT3}, s{sT1}")
        I(f"s_lshl_b32 s{sT3}, s{sT3}, 12")
        I(f"s_lshl_b32 s{sT1}, s{sJ}, 7")
        I(f"s_add_u32 s{sT3}, s{sT3}, s{sT1}")
        I(f"s_add_u32 s{sT3}, s{sT3}, {WS_O}")
stamp(6)
nop(6)
G1, G2, G3, ODD = f"s[{sX0}:{sX0+1}]", f"s[{sMA}:{sMA+1}]", f"s[{sMB}:{sMB+1}]", f"s[{sX0+2}:{sX0+3}]"
I(f"v_cndmask_b32 v16, v{accO}, v{accO+4}, {G1}")
I(f"v_cndmask_b32 v17, v{accO+1}, v{accO+5}, {G1}")
I(f"v_cndmask_b32 v16, v16, v{accO+8}, {G2}")
I(f"v_cndmask_b32 v17, v17, v{accO+9}, {G2}")
I(f"v_cndmask_b32 v16, v16, v{accO+12}, {G3}")
I(f"v_cndmask_b32 v17, v17, v{accO+13}, {G3}")
nop(1)
I("v_mov_b32_dpp v18, v16 quad_perm:[1,0,3,2] row_mask:0xf bank_mask:0xf")
I("v_mov_b32_dpp v19, v17 quad_perm:[1,0,3,2] row_mask:0xf bank_mask:0xf")
nop(1)
I(f"v_cndmask_b32 v120, v16, v19, {ODD}")
I(f"v_cndmask_b32 v121, v18, v17, {ODD}")
dual_store(4, "v[120:123]", 9, sT3, sT1)
stamp(7)
I(f"s_lshl_b32 s{sT2}, s{sH}, 1")
I(f"s_add_u32 s{sT2}, s{sT2}, s{sHH}")
I(f"s_lshl_b32 s{sT2}, s{sT2}, 9")
I(f"s_add_u32 s{sT2}, s{sT2}, {WS_T}")
I(f"v_lshrrev_b32 v8, 3, v{vLANE}")
I("v_lshlrev_b32 v8, 4, v8")
I(f"s_mov_b32 s{sRND}, 0")
L("L_TPOLL")
pick(sT1, sT2)
for r in range(4):
    I(f"buffer_load_dwordx4 v[{16+4*r}:{19+4*r}], v8, {S4('h')}, s{sT1} offen offset:{r*128} sc1")
I("s_waitcnt vmcnt(0)")
tagcheck([16, 20, 24, 28], "L_TPOLL", "L_TPOLL_DONE")
L("L_TPOLL_DONE")
I(f"s_lshl_b32 s{sT3}, s{sH}, 5")
I(f"s_add_u32 s{sT3}, s{sT3}, s{sJ}")
I(f"s_lshl_b32 s{sT3}, s{sT3}, 12")
I(f"s_add_u32 s{sT3}, s{sT3}, {WS_O}")
I(f"v_lshlrev_b32 v9, 4, v{vLANE}")
I("v_max_f32 v40, v16, v20")
I("v_max3_f32 v40, v40, v24, v28")
xreduce(40, 41, "v_max_f32", (8,))
I(f"s_mov_b32 s{sT2}, {CEXP}")
for r in range(4):
    I(f"v_sub_f32 v{16+4*r}, v{16+4*r}, v40")
for r in range(4):
    I(f"v_mul_f32 v{16+4*r}, s{sT2}, v{16+4*r}")
for r in range(4):
    I(f"v_exp_f32 v{16+4*r}, v{16+4*r}")
nop(1)
I("v_mul_f32 v42, v16, v17")
for r in range(1, 4):
    I(f"v_fmac_f32 v42, v{16+4*r}, v{17+4*r}")
xreduce(42, 41, "v_add_f32", (8,))
I("v_rcp_f32 v42, v42")
nop(1)
for r in range(4):
    I(f"v_mul_f32 v{16+4*r}, v{16+4*r}, v42")
I(f"v_bfe_u32 v12, v{vLANE}, 2, 2")
I(f"v_lshl_add_u32 v12, v{vG4}, 2, v12")
I(f"v_mul_u32_u24 v12, {PITCH}, v12")
I(f"v_and_b32 v13, 3, v{vLANE}")
I("v_lshl_add_u32 v12, v13, 3, v12")
I(f"s_mul_i32 s{sT0}, s{sWAVE}, {7*32}")
I(f"v_add_u32 v12, s{sT0}, v12")
I(f"ds_read_b64 v[44:45], v{vMISC} offset:{M_G - R_M}")
accA = 68
accB = 96
wB = 140
w2B = 156
def pairs_to_A(vsrc, d0, d1):
    nop(1)
    for p in range(8):
        I(f"v_readlane_b32 s{92+p}, v{vsrc}, {p}")
    nop(2)
    I(f"v_mov_b32 v{d0}, s92")
    I(f"v_mov_b32 v{d1}, s93")
    for gi, G in enumerate((G1, G2, G3)):
        I(f"v_mov_b32 v42, s{94+2*gi}")
        I(f"v_mov_b32 v43, s{95+2*gi}")
        I(f"v_cndmask_b32 v{d0}, v{d0}, v42, {G}")
        I(f"v_cndmask_b32 v{d1}, v{d1}, v43, {G}")
I(f"s_cmp_eq_u32 s{sFFN}, 0")
I("s_cbranch_scc1 L_NOFFN2")
I(f"s_lshl_b32 s{sT2}, s{sA}, 11")
I(f"s_lshl_b32 s{sT1}, s{sRQ}, 7")
I(f"s_add_u32 s{sT2}, s{sT2}, s{sT1}")
I(f"s_add_u32 s{sT2}, s{sT2}, {WS_H}")
I(f"v_bfe_u32 v13, v{vLANE}, 3, 2")
I("v_lshlrev_b32 v13, 9, v13")
I(f"v_and_b32 v14, 7, v{vLANE}")
I("v_lshl_add_u32 v13, v14, 4, v13")
I("v_lshlrev_b32 v14, 2, v14")
I(f"s_lshl_b32 s{sT1}, s{sA}, 7")
I(f"s_lshl_b32 s{sT0}, s{sRQ}, 5")
I(f"s_add_u32 s{sT0}, s{sT0}, s{sT1}")
I(f"buffer_load_dword v64, v14, {S4('d')}, s{sT0} offen")
I(f"s_mov_b32 s{sRND}, 0")
L("L_HPOLL")
pick(sT1, sT2)
I(f"buffer_load_dwordx4 v[48:51], v13, {S4('h')}, s{sT1} offen sc1")
I("s_waitcnt vmcnt(0)")
tagcheck([48], "L_HPOLL", "L_HPOLL_DONE")
L("L_HPOLL_DONE")
xreduce2(48, 49, 50, 51, "v_add_f32", (8,), swaps=("v_permlane16_swap_b32",))
I("v_cvt_pk_bf16_f32 v48, v48, v49")
I("v_lshlrev_b32 v50, 16, v48")
I("v_and_b32 v51, 0xffff0000, v48")
I("v_lshlrev_b32 v52, 16, v64")
I("v_and_b32 v53, 0xffff0000, v64")
I("v_add_f32 v50, v50, v52")
I("v_add_f32 v51, v51, v53")
I("v_cvt_pk_bf16_f32 v48, v50, v51")
I("v_lshlrev_b32 v50, 16, v48")
I("v_and_b32 v51, 0xffff0000, v48")
I("v_max_f32 v50, 0, v50")
I("v_max_f32 v51, 0, v51")
I("v_mul_f32 v50, v50, v50")
I("v_mul_f32 v51, v51, v51")
I("v_cvt_pk_bf16_f32 v48, v50, v51")
pairs_to_A(48, 46, 47)
spin_prog_all(vPROG, max(stage["W2"], stage["WO"]), 136, sleep=0)
for t in range(7):
    I(f"ds_read_b64_tr_b16 v[{w2B+2*t}:{w2B+2*t+1}], v12 offset:{16*PITCH + t*32}")
for t in range(7):
    I(f"s_waitcnt lgkmcnt({6-t})")
    I(f"v_mfma_f32_16x16x16_bf16 v[{accB+4*t}:{accB+4*t+3}], v[46:47], v[{w2B+2*t}:{w2B+2*t+1}], 0")
I("s_branch L_WOB")
L("L_NOFFN2")
for t in range(7):
    I(f"v_mov_b32 v{accB+4*t}, 0")
spin_prog_all(vPROG, stage["WO"], 136, sleep=0)
L("L_WOB")
for t in range(7):
    I(f"ds_read_b64_tr_b16 v[{wB+2*t}:{wB+2*t+1}], v12 offset:{t*32}")
stamp(8)
I(f"s_mov_b32 s{sRND}, 0")
L("L_OPOLL")
pick(sT1, sT3)
for r in range(4):
    I(f"buffer_load_dwordx4 v[{48+4*r}:{51+4*r}], v9, {S4('h')}, s{sT1} offen offset:{r*1024} sc1")
I("s_waitcnt vmcnt(0)")
tagcheck([48, 52, 56, 60], "L_OPOLL", "L_OPOLL_DONE")
L("L_OPOLL_DONE")
stamp(9)
I("v_mul_f32 v40, v16, v48")
I("v_mul_f32 v41, v16, v49")
for r in range(1, 4):
    I(f"v_fmac_f32 v40, v{16+4*r}, v{48+4*r}")
    I(f"v_fmac_f32 v41, v{16+4*r}, v{49+4*r}")
xreduce2(40, 41, 42, 43, "v_add_f32", (8,))
I("v_cvt_pk_bf16_f32 v40, v40, v41")
pairs_to_A(40, 46, 47)
I("s_waitcnt lgkmcnt(0)")
nop(1)
for t in range(7):
    I(f"v_mfma_f32_16x16x16_bf16 v[{accA+4*t}:{accA+4*t+3}], v[46:47], v[{wB+2*t}:{wB+2*t+1}], 0")
I(f"v_and_b32 v8, 1, v{vLANE}")
I(f"v_lshl_add_u32 v9, v8, 2, v{vG4}")
I("v_lshlrev_b32 v9, 3, v9")
I(f"v_lshrrev_b32 v10, 1, v{vN}")
I("v_add_u32 v9, v9, v10")
I("v_lshlrev_b32 v9, 12, v9")
I(f"s_mul_i32 s{sT0}, s{sWAVE}, {7*8*4096}")
I(f"s_lshl_b32 s{sT1}, s2, 4")
I(f"s_add_u32 s{sT0}, s{sT0}, s{sT1}")
I(f"s_add_u32 s{sT0}, s{sT0}, {WS_P}")
for t in range(7):
    I(f"v_mul_f32 v{accB+4*t}, v45, v{accB+4*t}")
for t in range(7):
    I(f"v_fmac_f32 v{accB+4*t}, v44, v{accA+4*t}")
I(f"v_cndmask_b32 v16, v{accB}, v{accB+4}, {G1}")
I(f"v_cndmask_b32 v17, v{accB+16}, v{accB+20}, {G1}")
I(f"v_cndmask_b32 v16, v16, v{accB+8}, {G2}")
I(f"v_cndmask_b32 v17, v17, v{accB+24}, {G2}")
I(f"v_cndmask_b32 v16, v16, v{accB+12}, {G3}")
I(f"v_mov_b32 v126, s{sN0}")
I(f"v_mov_b32 v127, s{sN1}")
I("v_mov_b32_dpp v18, v16 quad_perm:[1,0,3,2] row_mask:0xf bank_mask:0xf")
I("v_mov_b32_dpp v19, v17 quad_perm:[1,0,3,2] row_mask:0xf bank_mask:0xf")
nop(1)
I(f"v_cndmask_b32 v124, v16, v19, {ODD}")
I(f"v_cndmask_b32 v125, v18, v17, {ODD}")
I("s_mov_b32 exec_hi, 0x5555ffff")
I(f"buffer_store_dwordx4 v[124:127], v9, {S4('h')}, s{sT0} offen sc1")
I("s_mov_b64 exec, -1")
stamp(10)
I("s_cmp_lt_u32 s2, 32")
I("s_cbranch_scc1 L_CEND")
I(f"s_sub_u32 s{sT3}, s2, 32")
I(f"s_lshl_b32 s{sT2}, s{sT3}, 12")
I(f"s_add_u32 s{sT2}, s{sT2}, {WS_P}")
I("v_lshlrev_b32 v8, 4, v0")
I(f"s_lshl_b32 s{sT1}, s{sT3}, 2")
I(f"v_mov_b32 v10, s{sT1}")
I(f"buffer_load_dword v24, v10, {S4('e')}, 0 offen")
L("L_FPOLL")
I(f"buffer_load_dwordx4 v[16:19], v8, {S4('h')}, s{sT2} offen sc1")
I("s_waitcnt vmcnt(0)")
tagcheck([16], "L_FPOLL", "L_FPOLL_DONE")
L("L_FPOLL_DONE")
stamp(11)
for r in (1, 2, 4, 8):
    nop(1)
    I(f"v_add_f32_dpp v16, v16, v16 row_ror:{r} row_mask:0xf bank_mask:0xf")
    I(f"v_add_f32_dpp v17, v17, v17 row_ror:{r} row_mask:0xf bank_mask:0xf")
I("s_mov_b32 exec_lo, 0x00010001")
I("s_mov_b32 exec_hi, 0x00010001")
I(f"ds_add_f32 v{vMISC}, v16 offset:{M_FSUM - R_M}")
I(f"ds_add_f32 v{vMISC}, v17 offset:{M_FSUM - R_M + 4}")
I("s_mov_b64 exec, 1")
I("v_mov_b32 v18, 1")
I("s_waitcnt lgkmcnt(0)")
I(f"ds_add_rtn_u32 v19, v{vMISC}, v18 offset:{M_FCNT - R_M}")
I("s_waitcnt lgkmcnt(0)")
I(f"v_readfirstlane_b32 s{sT0}, v19")
I(f"s_cmp_eq_u32 s{sT0}, 3")
I("s_cbranch_scc0 L_CEND")
I(f"ds_read_b64 v[16:17], v{vMISC} offset:{M_FSUM - R_M}")
I("v_lshlrev_b32 v22, 16, v24")
I("v_and_b32 v23, 0xffff0000, v24")
I("s_waitcnt lgkmcnt(0)")
I("v_fmac_f32 v16, v45, v22")
I("v_fmac_f32 v17, v45, v23")
I("v_cvt_pk_bf16_f32 v16, v16, v17")
I(f"buffer_store_dword v16, v10, {S4('f')}, 0 offen")
I("s_cmp_lg_u32 s2, 32")
I("s_cbranch_scc1 L_NOEP")
I(f"s_memrealtime s[{sX0+6}:{sX0+7}]")
I(f"v_mov_b32 v8, {WS_E}")
I("s_waitcnt lgkmcnt(0)")
I(f"v_mov_b32 v12, s{sX0+6}")
I(f"v_mov_b32 v13, s{sX0+7}")
I(f"buffer_store_dwordx2 v[12:13], v8, {S4('h')}, 0 offen sc1")
L("L_NOEP")
stamp(12)
L("L_CEND")
stamp_flush()
I("s_endpgm")

L("L_LOADER")
sL = sX0
I(f"s_sub_u32 s{sL}, s{sWAVE}, 4")
I(f"v_lshrrev_b32 v6, 3, v{vLANE}")
I("v_bfe_u32 v7, v6, 1, 2")
I("v_lshlrev_b32 v7, 1, v7")
I(f"v_and_b32 v11, 7, v{vLANE}")
I("v_xor_b32 v11, v11, v7")
I("v_lshlrev_b32 v11, 4, v11")
I(f"s_lshl_b32 s{sT0}, s{sL}, 3")
I(f"v_add_u32 v6, s{sT0}, v6")
I("v_lshl_add_u32 v7, v6, 13, v11")
I("v_mul_u32_u24 v10, 3584, v6")
I("v_add_u32 v10, v10, v11")
I(f"v_lshrrev_b32 v13, 5, v{vLANE}")
I("v_lshlrev_b32 v8, 9, v13")
I(f"v_and_b32 v9, 31, v{vLANE}")
I("v_lshl_add_u32 v8, v9, 4, v8")
I(f"s_lshl_b32 s{sT0}, s{sL}, 1")
I(f"v_add_u32 v13, s{sT0}, v13")
I("v_lshlrev_b32 v13, 5, v13")
I("v_xor_b32 v9, v8, v13")
I(f"s_lshl_b32 s{sT0}, s{sL}, 4")
I(f"v_xor_b32 v8, s{sT0}, v8")
I(f"v_lshlrev_b32 v11, 4, v{vLANE}")
I(f"s_lshl_b32 s{sT0}, s{sL}, 2")
I(f"s_add_u32 s{sT0}, s{sT0}, {R_F}")
I(f"v_add_u32 v12, s{sT0}, v11")
I(f"v_mov_b32 v{vMISC}, {R_M}")
sLK, sLV, sLW, sLO, sGO, sI3, sROT = sX0+1, sX0+2, sX0+3, sX0+4, sX0+5, sX0+6, sX0+7
I(f"s_lshl_b32 s{sLK}, s{sL}, 10")
I(f"s_add_u32 s{sLV}, s{sLK}, {R_V}")
I(f"s_add_u32 s{sLW}, s{sLK}, {R_W}")
I(f"s_mul_i32 s{sLO}, s{sL}, {4*PITCH}")
I(f"s_mul_i32 s{sGO}, s{sL}, {4*896}")
I(f"s_cmp_ge_u32 s{sL}, 2")
I(f"s_cselect_b32 s{sI3}, 2, 3")
I(f"s_mul_i32 s{sROT}, s2, {args.rotmul}")
I(f"s_add_u32 s{sROT}, s{sROT}, s{sL}")
I(f"s_lshl_b32 s{sROT}, s{sROT}, 10")
I("s_waitcnt lgkmcnt(0)")
I(f"s_mul_i32 s{sT0}, s{sRQ}, {112*8192}")
I(f"s_lshl_b32 s{sT1}, s{sH}, 10")
I(f"s_add_u32 s{sT0}, s{sT0}, s{sT1}")
I(f"s_lshr_b32 s{sT1}, s{sJ}, 2")
I(f"s_lshl_b32 s{sT1}, s{sT1}, 7")
I(f"s_add_u32 s{sT0}, s{sT0}, s{sT1}")
I(f"s_sub_u32 s{sT1}, {448*8192}, s{sT0}")
build_srd("f", 22, sT0, f"s{sT1}")
def issue_w(i, srdn, vaddr, rowbytes):
    if i == 3:
        I(f"s_lshl_b32 s{sT0}, s{sI3}, 12")
        I(f"s_add_u32 m0, s{sLW}, s{sT0}")
        I(f"s_mul_i32 s{sT0}, s{sI3}, {32*rowbytes}")
    else:
        I(f"s_add_u32 m0, s{sLW}, {i*4096}")
        I(f"s_mov_b32 s{sT0}, {i*32*rowbytes}")
    I(f"buffer_load_dwordx4 v{vaddr}, {S4(srdn)}, s{sT0} offen nt lds")
for i in range(3):
    issue_w(i, "f", 7, 8192)
build_srd("g", 16, None, 896)
I(f"s_cmp_eq_u32 s{sL}, 3")
I("s_cbranch_scc1 L_LX")
issue_w(3, "f", 7, 8192)
I("s_branch L_LX2")
L("L_LX")
I(f"s_mov_b32 m0, {R_X}")
I("s_nop 0")
I(f"buffer_load_dwordx4 v11, {S4('g')}, 0 offen lds")
L("L_LX2")
I(f"s_lshl_b32 s{sT0}, s{sH}, 25")
I(f"s_add_u32 s{sT0}, s{sT0}, 0x1E00000")
I(f"s_lshl_b32 s{sT1}, s{sJ}, 16")
I(f"s_add_u32 s{sT1}, s{sT1}, s{sT0}")
build_srd("a", 18, sT1, 65536)
build_srd("b", 20, sT1, 65536)
I(f"s_mul_i32 s{sT1}, s{sRQ}, {112*3584}")
I(f"s_lshl_b32 s{sT2}, s{sA}, 7")
I(f"s_add_u32 s{sT1}, s{sT1}, s{sT2}")
I(f"s_sub_u32 s{sT2}, {448*3584}, s{sT1}")
build_srd("c", 28, sT1, f"s{sT2}")
I(f"s_lshl_b32 s{sT1}, s{sH}, 9")
I(f"s_lshl_b32 s{sT2}, s{sJ}, 4")
I(f"s_add_u32 s{sT1}, s{sT1}, s{sT2}")
I(f"s_mul_i32 s{sT1}, s{sT1}, 896")
build_srd("d", 24, sT1, 16*896)
I(f"s_lshl_b32 s{sT1}, s{sA}, 2")
I(f"s_add_u32 s{sT1}, s{sT1}, s{sRQ}")
I(f"s_mul_i32 s{sT1}, s{sT1}, {16*896}")
build_srd("e", 32, sT1, 16*896)
build_srd("h", 42, None, hex(WS_RANGE))
stamp(0)
I(f"s_cmp_eq_u32 s{sFFN}, 0")
I("s_cbranch_scc1 L_LOADER_N")

def loader_stream(ffn):
    seq = [("WQ", i) for i in range(4)]
    for o in order:
        if o == "K": seq += [("K", i) for i in range(16)]
        elif o == "V": seq += [("V", i) for i in range(16)]
        elif o == "Va": seq += [("V", i) for i in range(12)]
        elif o == "Vb": seq += [("V", i) for i in range(12, 16)]
        elif o == "W1" and ffn: seq += [("W1", i) for i in range(4)]
        elif o == "WO": seq += [("WO", i) for i in range(4)]
        elif o == "W2" and ffn: seq += [("W2", i) for i in range(4)]
    last = {}
    for p, (k, i) in enumerate(seq):
        key = f"{k}{i//4}" if k in ("K", "V") else k
        last[stage[key]] = p
    stages = sorted(last.items(), key=lambda x: x[1])
    si = 0
    def flag(st):
        I(f"v_mov_b32 v14, {st}")
        I("ds_write_b32 v12, v14")
        if st <= 13:
            stamp(st)
    masked = False
    qk_waited = False
    for p, (k, i) in enumerate(seq):
        if k == "WQ":
            continue
        if p == max(W - 1, 4):
            I("s_barrier")
        if p >= W:
            I(f"s_waitcnt vmcnt({W-1})")
            landed = p - W
            done = None
            while si < len(stages) and stages[si][1] <= landed:
                done = stages[si][0]; si += 1
            if done is not None:
                flag(done)
        want_mask = k in ("WO", "W2")
        if want_mask and not qk_waited:
            spin_lds_ge(vMISC, M_QKDONE - R_M, 4, 15)
            qk_waited = True
        if want_mask != masked:
            I("s_mov_b32 exec_hi, 0x00ffffff" if want_mask else "s_mov_b32 exec_hi, -1")
            masked = want_mask
        if k == "K":
            I(f"v_xor_b32 v13, {(4*(i & 3)) << 4}, v8")
            I(f"s_add_u32 m0, s{sLK}, {i*4096}")
            I(f"s_add_u32 s{sT0}, s{sROT}, {i*4096}")
            I(f"s_and_b32 s{sT0}, s{sT0}, 0xffff")
            I(f"buffer_load_dwordx4 v13, {S4('a')}, s{sT0} offen nt lds")
        elif k == "W1":
            if i == 0:
                spin_lds_ge(vMISC, M_QTASK - R_M, 4, 15)
            issue_w(i, "c", 10, 3584)
        elif k == "V":
            I(f"s_add_u32 m0, s{sLV}, {i*4096}")
            I(f"s_add_u32 s{sT0}, s{sROT}, {i*4096}")
            I(f"s_and_b32 s{sT0}, s{sT0}, 0xffff")
            I(f"buffer_load_dwordx4 v9, {S4('b')}, s{sT0} offen nt lds")
        elif k == "WO":
            I(f"s_add_u32 m0, s{sLO}, {i*PITCH}")
            I(f"s_add_u32 s{sT0}, s{sGO}, {i*896}")
            I(f"buffer_load_dwordx4 v11, {S4('d')}, s{sT0} offen nt lds")
        elif k == "W2":
            I(f"s_add_u32 m0, s{sLO}, {(16+i)*PITCH}")
            I(f"s_add_u32 s{sT0}, s{sGO}, {i*896}")
            I(f"buffer_load_dwordx4 v11, {S4('e')}, s{sT0} offen nt lds")
    nn = len(seq)
    while si < len(stages):
        st, p = stages[si]
        I(f"s_waitcnt vmcnt({nn-1-p})")
        flag(st)
        si += 1
    stamp_flush()
    I("s_endpgm")

loader_stream(True)
L("L_LOADER_N")
loader_stream(False)

L("L_END")
I("s_endpgm")
A('.section .rodata,"a"')
A(".p2align 6")
A(f".amdhsa_kernel {NAME}")
A("  .amdhsa_next_free_vgpr 256")
A("  .amdhsa_next_free_sgpr 102")
A("  .amdhsa_accum_offset 256")
A("  .amdhsa_group_segment_fixed_size 0")
A("  .amdhsa_kernarg_size 112")
A("  .amdhsa_user_sgpr_count 2")
A("  .amdhsa_user_sgpr_kernarg_segment_ptr 1")
A("  .amdhsa_system_sgpr_workgroup_id_x 1")
A(".end_amdhsa_kernel")
print("\n".join(out))
```

```python
import sys, argparse

ap = argparse.ArgumentParser()
ap.add_argument("--W", type=int, default=6)
ap.add_argument("--stamps", action="store_true")
ap.add_argument("--name", default="gated_mix__sliding_block_cached__dense_activation_squared_relu__decode_kernel")
ap.add_argument("--spin", type=int, default=1 << 22)
ap.add_argument("--qsleep", type=int, default=4)
ap.add_argument("--slowmask", type=int, default=31)
ap.add_argument("--order", default="K,W1,V,WO,W2")
ap.add_argument("--rotmul", type=int, default=7)
ap.add_argument("--nont", action="store_true")
args = ap.parse_args()
W = args.W
STAMPS = args.stamps
NAME = args.name

out = []
def A(s=""):
    out.append(s)
def I(s):
    out.append("    " + s)
def L(s):
    out.append(s + ":")
def nop(n):
    if n > 0:
        I(f"s_nop {n-1}")

PITCH = 928
R_A = 0
R_V = 65536
R_W = R_V + 65536
R_X = R_W + 14336
R_Q = R_X + 1024
R_P = R_Q + 1024
R_F = R_P + 512
R_M = R_F + 1024
M_MAX = R_M
M_LSUM = R_M + 32
M_QCNT = R_M + 256
M_NONCEFLAG = R_M + 260
M_QKDONE = R_M + 264
M_PCNT = R_M + 268
M_HFLAG = R_M + 272
M_QTASK = R_M + 276
M_FCNT = R_M + 280
M_FSUM = R_M + 288
M_NONCE = R_M + 304
M_G = R_M + 320
M_H = R_M + 336
LDS_TOTAL = R_M + 512
assert LDS_TOTAL <= 163840, LDS_TOTAL

WS_Q = 0x000000
WS_H = 0x040000
WS_T = 0x060000
WS_O = 0x100000
WS_P = 0x200000
WS_E = 0x300000
WS_STAMP = 0x400000
FAST = 0x800000
WS_RANGE = 0x1000000

order = args.order.split(",")
stage = {"WQ": 1}
n = 2
for o in order:
    if o in ("K", "V"):
        for q in range(4):
            stage[f"{o}{q}"] = n; n += 1
    elif o in ("Va", "Vb"):
        for q in (range(3) if o == "Va" else range(3, 4)):
            stage[f"V{q}"] = n; n += 1
    else:
        stage[o] = n; n += 1

sWAVE, sH, sJ, sHH, sRQ, sA, sFFN = 3, 4, 5, 6, 7, 8, 9
sT0, sT1, sT2, sT3 = 10, 11, 12, 13
sSPIN = 14
sRND = 15
SRD = {}
def S4(name):
    b = SRD[name]
    return f"s[{b}:{b+3}]"
for i, nm in enumerate(["a", "b", "c", "d", "e", "f", "g", "h"]):
    SRD[nm] = 44 + 4 * i
sN0, sN1 = 76, 77
sMA, sMB = 78, 80
sX0 = 82

def build_srd(name, plo, off_sgpr, size):
    b = SRD[name]
    if off_sgpr is None:
        I(f"s_mov_b32 s{b}, s{plo}")
        I(f"s_mov_b32 s{b+1}, s{plo+1}")
    else:
        I(f"s_add_u32 s{b}, s{plo}, s{off_sgpr}")
        I(f"s_addc_u32 s{b+1}, s{plo+1}, 0")
    I(f"s_mov_b32 s{b+2}, {size}")
    I(f"s_mov_b32 s{b+3}, 0x00020000")

def stamp(k):
    if STAMPS:
        I(f"s_memrealtime s[{16+2*k}:{17+2*k}]")

def stamp_flush(n=14):
    if not STAMPS:
        return
    I("s_waitcnt lgkmcnt(0)")
    I("s_mov_b64 exec, 1")
    for k in range(16):
        I(f"v_mov_b32 v{232+k}, s{16+2*min(k,n-1)}")
    for k in range(0, 16, 4):
        I(f"buffer_store_dwordx4 v[{232+k}:{235+k}], v253, {S4('h')}, 0 offen offset:{4*k}")

lbl = [0]
def newlabel(p="L"):
    lbl[0] += 1
    return f"{p}_{lbl[0]}"

def spin_lds_ge(vaddr, off, val, vt, sleep=1):
    l = newlabel("SP"); d = newlabel("SD")
    L(l)
    I(f"ds_read_b32 v{vt}, v{vaddr} offset:{off}")
    I("s_waitcnt lgkmcnt(0)")
    I(f"v_readfirstlane_b32 s{sT0}, v{vt}")
    I(f"s_cmp_ge_u32 s{sT0}, {val}")
    I(f"s_cbranch_scc1 {d}")
    if sleep:
        I(f"s_sleep {sleep}")
    I(f"s_branch {l}")
    L(d)

def spin_prog_all(vaddr, val, vt, sleep=1):
    l = newlabel("SP"); d = newlabel("SD")
    L(l)
    I(f"ds_read_b128 v[{vt}:{vt+3}], v{vaddr}")
    I("s_waitcnt lgkmcnt(0)")
    I(f"v_min3_u32 v{vt}, v{vt}, v{vt+1}, v{vt+2}")
    I(f"v_min_u32 v{vt}, v{vt}, v{vt+3}")
    nop(1)
    I(f"v_readfirstlane_b32 s{sT0}, v{vt}")
    I(f"s_cmp_ge_u32 s{sT0}, {val}")
    I(f"s_cbranch_scc1 {d}")
    if sleep:
        I(f"s_sleep {sleep}")
    I(f"s_branch {l}")
    L(d)

def xreduce(v, t, op, rors, swaps=("v_permlane16_swap_b32", "v_permlane32_swap_b32")):
    for r in rors:
        nop(2)
        I(f"{op}_dpp v{v}, v{v}, v{v} row_ror:{r} row_mask:0xf bank_mask:0xf")
    for sw in swaps:
        I(f"v_mov_b32 v{t}, v{v}")
        nop(2)
        I(f"{sw} v{v}, v{t}")
        nop(1)
        I(f"{op} v{v}, v{v}, v{t}")

def xreduce2(v, w, t, u, op, rors, swaps=("v_permlane16_swap_b32", "v_permlane32_swap_b32")):
    for r in rors:
        nop(1)
        I(f"{op}_dpp v{v}, v{v}, v{v} row_ror:{r} row_mask:0xf bank_mask:0xf")
        I(f"{op}_dpp v{w}, v{w}, v{w} row_ror:{r} row_mask:0xf bank_mask:0xf")
    for sw in swaps:
        I(f"v_mov_b32 v{t}, v{v}")
        I(f"v_mov_b32 v{u}, v{w}")
        nop(1)
        I(f"{sw} v{v}, v{t}")
        I(f"{sw} v{w}, v{u}")
        nop(1)
        I(f"{op} v{v}, v{v}, v{t}")
        I(f"{op} v{w}, v{w}, v{u}")

def pick(sdst, sbase):
    I(f"s_add_u32 s{sRND}, s{sRND}, 1")
    I(f"s_and_b32 s{sdst}, s{sRND}, {args.slowmask}")
    I(f"s_cmp_eq_u32 s{sdst}, 0")
    I(f"s_cselect_b32 s{sdst}, 0, {FAST}")
    I(f"s_add_u32 s{sdst}, s{sdst}, s{sbase}")

def dual_store(nn, data, vaddr, soff, stmp):
    I(f"s_add_u32 s{stmp}, s{soff}, {FAST}")
    I(f"buffer_store_dwordx{nn} {data}, v{vaddr}, {S4('h')}, s{stmp} offen")
    I(f"buffer_store_dwordx{nn} {data}, v{vaddr}, {S4('h')}, s{soff} offen sc1")

def tagcheck(regs, loop, done):
    I(f"v_cmp_eq_u64 vcc, s[{sN0}:{sN1}], v[{regs[0]+2}:{regs[0]+3}]")
    for r in regs[1:]:
        I(f"v_cmp_eq_u64 s[{sX0+4}:{sX0+5}], s[{sN0}:{sN1}], v[{r+2}:{r+3}]")
        I(f"s_and_b64 vcc, vcc, s[{sX0+4}:{sX0+5}]")
    I(f"s_sub_u32 s{sSPIN}, s{sSPIN}, 1")
    I(f"s_cbranch_scc1 {done}")
    I("s_cmp_eq_u64 vcc, exec")
    I(f"s_cbranch_scc0 {loop}")

A(f"; @launch grid=(256,1,1) block=(512,1,1) lds={LDS_TOTAL}")
A('.amdgcn_target "amdgcn-amd-amdhsa--gfx950"')
A(".text")
A(f".globl {NAME}")
A(".p2align 8")
A(f".type {NAME},@function")
L(NAME)
I("s_cmp_ge_u32 s2, 256")
I("s_cbranch_scc1 L_END")
I("s_load_dwordx16 s[16:31], s[0:1], 0")
I("s_load_dwordx8 s[32:39], s[0:1], 64")
I("s_load_dwordx4 s[40:43], s[0:1], 96")
I("v_lshrrev_b32 v2, 6, v0")
I("v_and_b32 v1, 63, v0")
I(f"s_and_b32 s{sH}, s2, 7")
I(f"v_readfirstlane_b32 s{sWAVE}, v2")
I(f"s_lshr_b32 s{sJ}, s2, 3")
I(f"s_lshr_b32 s{sHH}, s{sJ}, 4")
I(f"s_and_b32 s{sRQ}, s{sJ}, 3")
I(f"s_lshr_b32 s{sA}, s{sJ}, 2")
I(f"s_lshl_b32 s{sA}, s{sA}, 3")
I(f"s_add_u32 s{sA}, s{sA}, s{sH}")
I(f"s_cmp_lt_u32 s{sA}, 28")
I(f"s_cselect_b32 s{sFFN}, 1, 0")
I(f"s_cselect_b32 s{sA}, s{sA}, 0")
if STAMPS:
    I(f"s_lshl_b32 s{sT0}, s2, 3")
    I(f"s_add_u32 s{sT0}, s{sT0}, s{sWAVE}")
    I(f"s_lshl_b32 s{sT0}, s{sT0}, 7")
    I(f"s_add_u32 s{sT0}, s{sT0}, {WS_STAMP}")
    I(f"v_mov_b32 v253, s{sT0}")
I(f"s_cmp_ge_u32 s{sWAVE}, 4")
I("s_cbranch_scc1 L_LOADER")

vLANE = 1
vG4 = 3
vN = 4
vMISC = 5
vPROG = 6
vGA, vGB = 128, 129
I(f"v_lshrrev_b32 v{vG4}, 4, v{vLANE}")
I(f"v_and_b32 v{vN}, 15, v{vLANE}")
I(f"v_mov_b32 v{vMISC}, {R_M}")
I(f"v_mov_b32 v{vPROG}, {R_F}")
I(f"s_mov_b32 s{sSPIN}, {args.spin}")
I(f"s_mov_b32 s{sRND}, 0")
I("s_waitcnt lgkmcnt(0)")
build_srd("h", 42, None, hex(WS_RANGE))
build_srd("a", 16, None, 896)
build_srd("c", 36, None, 896)
build_srd("d", 30, None, 3584)
build_srd("e", 34, None, 896)
build_srd("f", 38, None, 896)
stamp(0)
I(f"s_cmp_eq_u32 s{sWAVE}, 1")
I("s_cbranch_scc1 L_C1")
I(f"s_cmp_eq_u32 s{sWAVE}, 2")
I("s_cbranch_scc1 L_C2")
I(f"s_cmp_eq_u32 s{sWAVE}, 3")
I("s_cbranch_scc1 L_C3")

I(f"v_lshlrev_b32 v8, 4, v{vLANE}")
I(f"s_lshl_b32 s{sT0}, s{sH}, 14")
I(f"s_lshl_b32 s{sT1}, s{sRQ}, 12")
I(f"s_add_u32 s{sT0}, s{sT0}, s{sT1}")
I(f"s_lshr_b32 s{sT1}, s{sJ}, 2")
I(f"s_lshl_b32 s{sT1}, s{sT1}, 9")
I(f"s_add_u32 s{sT0}, s{sT0}, s{sT1}")
I(f"s_add_u32 s{sT0}, s{sT0}, {WS_Q + FAST}")
I("s_mov_b32 exec_hi, 0")
I(f"buffer_load_dwordx4 v[204:207], v8, {S4('h')}, s{sT0} offen sc1")
I(f"s_lshl_b32 s{sT0}, s{sA}, 11")
I(f"s_lshl_b32 s{sT1}, s{sRQ}, 9")
I(f"s_add_u32 s{sT0}, s{sT0}, s{sT1}")
I(f"s_add_u32 s{sT0}, s{sT0}, {WS_H + FAST}")
I(f"buffer_load_dwordx4 v[208:211], v8, {S4('h')}, s{sT0} offen sc1")
I("s_mov_b64 exec, -1")
I("s_barrier")
I("s_branch L_CQ")

L("L_C1")
I(f"v_mov_b32 v8, {WS_E}")
I(f"buffer_load_dwordx2 v[12:13], v8, {S4('h')}, 0 offen sc1")
I("s_barrier")
I("s_waitcnt vmcnt(0)")
I("v_add_u32 v12, 0x7f4a7c15, v12")
I("v_xor_b32 v13, 0x9e3779b9, v13")
I("v_mov_b32 v14, 1")
I("s_mov_b64 exec, 1")
I(f"ds_write_b64 v{vMISC}, v[12:13] offset:{M_NONCE - R_M}")
I(f"ds_write_b32 v{vMISC}, v14 offset:{M_NONCEFLAG - R_M}")
I("s_mov_b64 exec, -1")
I("s_branch L_CQ")

L("L_C2")
I(f"v_lshlrev_b32 v8, 4, v{vLANE}")
I(f"buffer_load_dwordx4 v[16:19], v8, {S4('a')}, 0 offen")
I(f"buffer_load_dwordx4 v[20:23], v8, {S4('c')}, 0 offen")
I("s_barrier")
I("s_waitcnt vmcnt(0)")
I("v_mov_b32 v9, 0")
for k in range(4):
    I(f"v_lshlrev_b32 v10, 16, v{16+k}")
    I(f"v_lshlrev_b32 v11, 16, v{20+k}")
    I(f"v_and_b32 v12, 0xffff0000, v{16+k}")
    I(f"v_and_b32 v13, 0xffff0000, v{20+k}")
    I("v_mul_f32 v10, v10, v11")
    I("v_mul_f32 v12, v12, v13")
    I("v_cvt_pk_bf16_f32 v10, v10, v12")
    I("v_lshlrev_b32 v11, 16, v10")
    I("v_and_b32 v12, 0xffff0000, v10")
    I("v_add_f32 v9, v9, v11")
    I("v_add_f32 v9, v9, v12")
xreduce(9, 10, "v_add_f32", (1, 2, 4, 8))
I("v_cvt_pk_bf16_f32 v9, v9, v9")
I("v_lshlrev_b32 v9, 16, v9")
I("v_mul_f32 v9, 0xbfb8aa3b, v9")
I("v_exp_f32 v9, v9")
nop(1)
I("v_add_f32 v9, 1.0, v9")
I("v_rcp_f32 v9, v9")
nop(1)
I("v_cvt_pk_bf16_f32 v9, v9, v9")
I("v_lshlrev_b32 v10, 16, v9")
I("v_sub_f32 v11, 1.0, v10")
I("v_cvt_pk_bf16_f32 v11, v11, v11")
I("v_lshlrev_b32 v11, 16, v11")
I("s_mov_b64 exec, 1")
I(f"ds_write_b64 v{vMISC}, v[10:11] offset:{M_G - R_M}")
I("s_mov_b64 exec, -1")
I("s_branch L_CQ")

L("L_C3")
I("v_mov_b32 v8, 0")
I("v_mov_b32 v9, 0")
I("v_mov_b32 v10, 0")
I("v_mov_b32 v11, 0")
I(f"v_lshlrev_b32 v12, 4, v{vLANE}")
I(f"v_add_u32 v12, {R_F}, v12")
I("ds_write_b128 v12, v[8:11]")
I("s_mov_b32 exec_hi, 0")
I("ds_write_b128 v12, v[8:11] offset:1024")
I("s_mov_b64 exec, -1")
I("s_waitcnt lgkmcnt(0)")
I("s_barrier")

def gemv_tile(acc, A0, B0):
    for k in range(3):
        I(f"ds_read2_b64 v[{A0+4*k}:{A0+4*k+3}], v{vGA} offset0:{k*8} offset1:{k*8+4}")
        I(f"ds_read_b64_tr_b16 v[{B0+4*k}:{B0+4*k+1}], v{vGB} offset:{k*4096}")
        I(f"ds_read_b64_tr_b16 v[{B0+4*k+2}:{B0+4*k+3}], v{vGB} offset:{k*4096+2048}")
    I(f"ds_read_b64 v[{A0+12}:{A0+13}], v{vGA} offset:192")
    I(f"ds_read_b64_tr_b16 v[{B0+12}:{B0+13}], v{vGB} offset:{3*4096}")
    for k in range(3):
        I(f"s_waitcnt lgkmcnt({8-3*k})")
        c = "0" if k == 0 else f"v[{acc}:{acc+3}]"
        I(f"v_mfma_f32_16x16x32_bf16 v[{acc}:{acc+3}], v[{A0+4*k}:{A0+4*k+3}], v[{B0+4*k}:{B0+4*k+3}], {c}")
    I("s_waitcnt lgkmcnt(0)")
    nop(8)
    I(f"v_mfma_f32_16x16x16_bf16 v[{acc}:{acc+3}], v[{A0+12}:{A0+13}], v[{B0+12}:{B0+13}], v[{acc}:{acc+3}]")

def publish_pairs16(acc, soff):
    I(f"v_lshlrev_b32 v8, 3, v{vLANE}")
    nop(6)
    I(f"v_mov_b32 v120, v{acc}")
    I(f"v_mov_b32_dpp v121, v{acc} quad_perm:[1,0,3,2] row_mask:0xf bank_mask:0xf")
    I("s_mov_b64 exec, 0x5555")
    dual_store(4, "v[120:123]", 8, soff, sT1)
    I("s_mov_b64 exec, -1")

L("L_CQ")
I(f"s_mul_i32 s{sT0}, s{sRQ}, 224")
I(f"s_add_u32 s{sT0}, s{sT0}, {R_X}")
I(f"v_lshlrev_b32 v{vGA}, 3, v{vG4}")
I(f"v_add_u32 v{vGA}, s{sT0}, v{vGA}")
I(f"v_bfe_u32 v10, v{vLANE}, 2, 2")
I(f"v_lshl_add_u32 v10, v{vG4}, 2, v10")
I("v_bfe_u32 v11, v10, 1, 2")
I(f"v_xor_b32 v11, s{sWAVE}, v11")
I("v_lshlrev_b32 v11, 5, v11")
I("v_lshl_add_u32 v11, v10, 7, v11")
I(f"v_and_b32 v10, 3, v{vLANE}")
I("v_lshl_add_u32 v11, v10, 3, v11")
I(f"v_add_u32 v{vGB}, {R_W}, v11")
I(f"s_lshl_b32 s{sT2}, s{sH}, 14")
I(f"s_lshl_b32 s{sT1}, s{sRQ}, 12")
I(f"s_add_u32 s{sT2}, s{sT2}, s{sT1}")
I(f"s_lshr_b32 s{sT1}, s{sJ}, 2")
I(f"s_lshl_b32 s{sT1}, s{sT1}, 9")
I(f"s_add_u32 s{sT2}, s{sT2}, s{sT1}")
I(f"s_lshl_b32 s{sT1}, s{sWAVE}, 7")
I(f"s_add_u32 s{sT2}, s{sT2}, s{sT1}")
I(f"s_add_u32 s{sT2}, s{sT2}, {WS_Q}")
spin_lds_ge(vMISC, M_NONCEFLAG - R_M, 1, 13, sleep=1)
I(f"ds_read_b64 v[122:123], v{vMISC} offset:{M_NONCE - R_M}")
spin_prog_all(vPROG, stage["WQ"], 136, sleep=0)
stamp(1)
I(f"v_readfirstlane_b32 s{sN0}, v122")
I(f"v_readfirstlane_b32 s{sN1}, v123")
gemv_tile(112, 16, 32)
I("v_mov_b32 v9, 1")
I("s_mov_b64 exec, 1")
I(f"ds_add_u32 v{vMISC}, v9 offset:{M_QTASK - R_M}")
I("s_mov_b64 exec, -1")
publish_pairs16(112, sT2)
stamp(2)
I(f"v_lshlrev_b32 v8, 4, v{vLANE}")
I(f"s_lshl_b32 s{sT3}, s{sH}, 5")
I(f"s_add_u32 s{sT3}, s{sT3}, s{sJ}")
I(f"s_lshl_b32 s{sT3}, s{sT3}, 12")
I(f"s_lshl_b32 s{sT1}, s{sWAVE}, 10")
I(f"s_add_u32 s{sT3}, s{sT3}, s{sT1}")
I(f"s_add_u32 s{sT3}, s{sT3}, {WS_O + FAST}")
I(f"s_lshl_b32 s{sT2}, s{sH}, 14")
I(f"s_add_u32 s{sT2}, s{sT2}, s{sT1}")
I(f"s_add_u32 s{sT2}, s{sT2}, {WS_Q}")
I(f"v_add_u32 v9, 4096, v8")
I(f"v_add_u32 v10, 8192, v8")
I(f"v_add_u32 v11, 12288, v8")
L("L_QPOLL")
I(f"s_sleep {args.qsleep}")
pick(sT1, sT2)
for r in range(4):
    I(f"buffer_load_dwordx4 v[{16+4*r}:{19+4*r}], v{8+r}, {S4('h')}, s{sT1} offen sc1")
I("s_waitcnt vmcnt(0)")
tagcheck([16, 20, 24, 28], "L_QPOLL", "L_QPOLL_DONE")
L("L_QPOLL_DONE")
I(f"buffer_load_dwordx4 v[212:215], v8, {S4('h')}, s{sT3} offen sc1")
I(f"s_lshl_b32 s{sT2}, s{sH}, 10")
I(f"s_add_u32 s{sT2}, s{sT2}, {WS_T + FAST}")
I(f"buffer_load_dwordx4 v[216:219], v8, {S4('h')}, s{sT2} offen sc1")
I("v_add_f32 v16, v16, v20")
I("v_add_f32 v17, v17, v21")
I("v_add_f32 v24, v24, v28")
I("v_add_f32 v25, v25, v29")
I("v_add_f32 v16, v16, v24")
I("v_add_f32 v17, v17, v25")
I("v_cvt_pk_bf16_f32 v16, v16, v17")
I(f"s_lshl_b32 s{sT1}, s{sWAVE}, 8")
I(f"s_add_u32 s{sT1}, s{sT1}, {R_Q}")
I(f"v_lshlrev_b32 v9, 2, v{vLANE}")
I(f"v_add_u32 v9, s{sT1}, v9")
I("v_mov_b32 v10, 1")
I("ds_write_b32 v9, v16")
I("s_waitcnt lgkmcnt(0)")
I("s_mov_b64 exec, 1")
I(f"ds_add_u32 v{vMISC}, v10 offset:{M_QCNT - R_M}")
I("s_mov_b64 exec, -1")
stamp(3)
qA = 40
kB = 140
acc0, acc1 = 112, 116
I(f"v_and_b32 v8, 1, v{vLANE}")
I("v_lshlrev_b32 v8, 9, v8")
I(f"v_lshl_add_u32 v8, v{vG4}, 4, v8")
I(f"v_add_u32 v8, {R_Q}, v8")
I(f"v_and_b32 v9, 3, v{vN}")
I(f"v_xor_b32 v9, v{vG4}, v9")
I(f"v_and_b32 v10, 12, v{vN}")
I("v_or_b32 v9, v9, v10")
I("v_lshlrev_b32 v9, 4, v9")
I(f"v_lshl_add_u32 v9, v{vN}, 10, v9")
I(f"s_lshl_b32 s{sT0}, s{sWAVE}, 14")
I(f"v_add_u32 v9, s{sT0}, v9")
for q in range(1, 4):
    I(f"v_xor_b32 v{9+q}, {q*64}, v9")
I(f"s_add_u32 s{sT3}, s{sWAVE}, {stage['K0']}")
spin_prog_all(vPROG, f"s{sT3}", 136)
for t in range(2):
    for i in range(8):
        r = kB + (t*8+i)*4
        I(f"ds_read_b128 v[{r}:{r+3}], v{9+(i&3)} offset:{t*512 + (i>>2)*256}")
spin_lds_ge(vMISC, M_QCNT - R_M, 4, 13, sleep=0)
stamp(4)
for i in range(8):
    I(f"ds_read_b128 v[{qA+4*i}:{qA+4*i+3}], v8 offset:{i*64}")
for i in range(8):
    I(f"s_waitcnt lgkmcnt({7-i})")
    for t in range(2):
        acc = acc0 if t == 0 else acc1
        r = kB + (t*8+i)*4
        c = "0" if i == 0 else f"v[{acc}:{acc+3}]"
        I(f"v_mfma_f32_16x16x32_bf16 v[{acc}:{acc+3}], v[{qA+4*i}:{qA+4*i+3}], v[{r}:{r+3}], {c}")
CEXP = "0x3db8aa3b"
I(f"s_mov_b32 s{sT2}, {CEXP}")
I(f"s_lshl_b32 s{sT1}, s{sWAVE}, 3")
I(f"v_mov_b32 v8, s{sT1}")
I(f"v_add_u32 v8, {M_MAX}, v8")
nop(5)
I(f"v_cvt_pk_bf16_f32 v120, v{acc0}, v{acc1}")
I(f"v_cvt_pk_bf16_f32 v121, v{acc0+1}, v{acc1+1}")
I("v_lshlrev_b32 v16, 16, v120")
I("v_and_b32 v17, 0xffff0000, v120")
I("v_lshlrev_b32 v18, 16, v121")
I("v_and_b32 v19, 0xffff0000, v121")
I("v_max_f32 v20, v16, v17")
I("v_max_f32 v21, v18, v19")
for r in (1, 2, 4, 8):
    nop(1)
    I(f"v_max_f32_dpp v20, v20, v20 row_ror:{r} row_mask:0xf bank_mask:0xf")
    I(f"v_max_f32_dpp v21, v21, v21 row_ror:{r} row_mask:0xf bank_mask:0xf")
I("v_mov_b32 v9, 1")
I("s_mov_b64 exec, 1")
I("ds_write_b64 v8, v[20:21]")
I("s_waitcnt lgkmcnt(0)")
I(f"ds_add_u32 v{vMISC}, v9 offset:{M_QKDONE - R_M}")
I("s_mov_b64 exec, -1")
spin_lds_ge(vMISC, M_QKDONE - R_M, 4, 13, sleep=0)
I(f"ds_read_b128 v[24:27], v{vMISC} offset:{M_MAX - R_M}")
I(f"ds_read_b128 v[28:31], v{vMISC} offset:{M_MAX - R_M + 16}")
I("s_waitcnt lgkmcnt(0)")
I("v_max_f32 v20, v24, v26")
I("v_max_f32 v21, v25, v27")
I("v_max3_f32 v20, v20, v28, v30")
I("v_max3_f32 v21, v21, v29, v31")
I("v_sub_f32 v16, v16, v20")
I("v_sub_f32 v17, v17, v20")
I("v_sub_f32 v18, v18, v21")
I("v_sub_f32 v19, v19, v21")
for k in range(4):
    I(f"v_mul_f32 v{16+k}, s{sT2}, v{16+k}")
for k in range(4):
    I(f"v_exp_f32 v{16+k}, v{16+k}")
nop(1)
I("v_cvt_pk_bf16_f32 v24, v16, v17")
I("v_cvt_pk_bf16_f32 v25, v18, v19")
I("v_add_f32 v22, v16, v17")
I("v_add_f32 v23, v18, v19")
I(f"s_lshl_b32 s{sT1}, s{sWAVE}, 6")
I(f"s_add_u32 s{sT1}, s{sT1}, {R_P}")
I(f"v_lshlrev_b32 v8, 2, v{vN}")
I(f"v_add_u32 v8, s{sT1}, v8")
I("s_mov_b64 exec, 0xffff")
I("ds_write_b32 v8, v24")
I("ds_write_b32 v8, v25 offset:256")
I("s_mov_b64 exec, -1")
for r in (1, 2, 4, 8):
    nop(1)
    I(f"v_add_f32_dpp v22, v22, v22 row_ror:{r} row_mask:0xf bank_mask:0xf")
    I(f"v_add_f32_dpp v23, v23, v23 row_ror:{r} row_mask:0xf bank_mask:0xf")
I("s_mov_b64 exec, 1")
I(f"ds_add_f32 v{vMISC}, v22 offset:{M_LSUM - R_M}")
I(f"ds_add_f32 v{vMISC}, v23 offset:{M_LSUM - R_M + 4}")
I("s_waitcnt lgkmcnt(0)")
I(f"ds_add_u32 v{vMISC}, v9 offset:{M_PCNT - R_M}")
I("s_mov_b64 exec, -1")
I(f"v_and_b32 v10, 1, v{vLANE}")
I("v_lshlrev_b32 v10, 8, v10")
I(f"v_lshl_add_u32 v10, v{vG4}, 3, v10")
I(f"v_add_u32 v10, {R_P}, v10")
I(f"v_bfe_u32 v11, v{vLANE}, 2, 2")
I(f"v_lshl_add_u32 v12, v{vG4}, 2, v11")
I("v_and_b32 v13, 7, v12")
I(f"s_lshl_b32 s{sT1}, s{sWAVE}, 2")
I(f"v_xor_b32 v13, s{sT1}, v13")
I("v_lshlrev_b32 v13, 5, v13")
I("v_lshl_add_u32 v13, v12, 9, v13")
I(f"v_and_b32 v14, 3, v{vLANE}")
I("v_lshl_add_u32 v13, v14, 3, v13")
I(f"v_add_u32 v32, {R_V}, v13")
for tt in range(1, 4):
    I(f"v_xor_b32 v{32+tt}, {tt*32}, v32")
spin_lds_ge(vMISC, M_PCNT - R_M, 4, 13, sleep=0)
pA = 36
for s in range(4):
    I(f"ds_read2_b64 v[{pA+4*s}:{pA+4*s+3}], v10 offset0:{s*8} offset1:{s*8+4}")
sk = newlabel("NOSTAT")
I(f"s_cmp_lg_u32 s{sWAVE}, 0")
I(f"s_cbranch_scc1 {sk}")
I(f"ds_read_b64 v[22:23], v{vMISC} offset:{M_LSUM - R_M}")
I(f"v_cmp_eq_u32 vcc, 1, v{vLANE}")
I(f"s_lshl_b32 s{sT0}, s{sH}, 10")
I(f"s_lshl_b32 s{sT1}, s{sJ}, 4")
I(f"s_add_u32 s{sT0}, s{sT0}, s{sT1}")
I(f"s_add_u32 s{sT0}, s{sT0}, {WS_T}")
I(f"v_lshlrev_b32 v8, 9, v{vLANE}")
I("s_waitcnt lgkmcnt(0)")
I("v_cndmask_b32 v120, v20, v21, vcc")
I("v_cndmask_b32 v121, v22, v23, vcc")
I("s_mov_b64 exec, 3")
dual_store(4, "v[120:123]", 8, sT0, sT1)
I("s_mov_b64 exec, -1")
L(sk)
stamp(5)
I(f"s_cmp_eq_u32 s{sFFN}, 0")
I("s_cbranch_scc1 L_NOFFN1")
I(f"s_lshl_b32 s{sT2}, s{sA}, 11")
I(f"s_lshl_b32 s{sT1}, s{sRQ}, 9")
I(f"s_add_u32 s{sT2}, s{sT2}, s{sT1}")
I(f"s_lshl_b32 s{sT1}, s{sWAVE}, 7")
I(f"s_add_u32 s{sT2}, s{sT2}, s{sT1}")
I(f"s_add_u32 s{sT2}, s{sT2}, {WS_H}")
spin_prog_all(vPROG, stage["W1"], 136)
gemv_tile(112, 140, 156)
nop(2)
publish_pairs16(112, sT2)
L("L_NOFFN1")
vB = 52
accO = 68
for s in range(4):
    spin_prog_all(vPROG, stage[f"V{s}"], 136, sleep=(1 if s < 3 else 0))
    for tt in range(4):
        I(f"ds_read_b64_tr_b16 v[{vB+4*tt}:{vB+4*tt+1}], v{32+tt} offset:{s*16384}")
        I(f"ds_read_b64_tr_b16 v[{vB+4*tt+2}:{vB+4*tt+3}], v{32+tt} offset:{s*16384+8192}")
    for tt in range(4):
        I(f"s_waitcnt lgkmcnt({6-2*tt})")
        c = "0" if s == 0 else f"v[{accO+4*tt}:{accO+4*tt+3}]"
        I(f"v_mfma_f32_16x16x32_bf16 v[{accO+4*tt}:{accO+4*tt+3}], v[{pA+4*s}:{pA+4*s+3}], v[{vB+4*tt}:{vB+4*tt+3}], {c}")
    if s == 2:
        I(f"v_cmp_eq_u32 s[{sMA}:{sMA+1}], 2, v{vG4}")
        I(f"v_cmp_eq_u32 s[{sMB}:{sMB+1}], 3, v{vG4}")
        I(f"v_cmp_eq_u32 s[{sX0}:{sX0+1}], 1, v{vG4}")
        I(f"v_and_b32 v8, 1, v{vLANE}")
        I(f"v_cmp_eq_u32 s[{sX0+2}:{sX0+3}], 1, v8")
        I(f"v_lshl_add_u32 v9, v8, 4, v{vG4}")
        I("v_lshlrev_b32 v9, 12, v9")
        I(f"v_lshrrev_b32 v10, 1, v{vN}")
        I("v_lshl_add_u32 v9, v10, 4, v9")
        I(f"s_lshl_b32 s{sT3}, s{sH}, 5")
        I(f"s_lshl_b32 s{sT1}, s{sWAVE}, 2")
        I(f"s_add_u32 s{sT3}, s{sT3}, s{sT1}")
        I(f"s_lshl_b32 s{sT3}, s{sT3}, 12")
        I(f"s_lshl_b32 s{sT1}, s{sJ}, 7")
        I(f"s_add_u32 s{sT3}, s{sT3}, s{sT1}")
        I(f"s_add_u32 s{sT3}, s{sT3}, {WS_O}")
stamp(6)
nop(6)
G1, G2, G3, ODD = f"s[{sX0}:{sX0+1}]", f"s[{sMA}:{sMA+1}]", f"s[{sMB}:{sMB+1}]", f"s[{sX0+2}:{sX0+3}]"
I(f"v_cndmask_b32 v16, v{accO}, v{accO+4}, {G1}")
I(f"v_cndmask_b32 v17, v{accO+1}, v{accO+5}, {G1}")
I(f"v_cndmask_b32 v16, v16, v{accO+8}, {G2}")
I(f"v_cndmask_b32 v17, v17, v{accO+9}, {G2}")
I(f"v_cndmask_b32 v16, v16, v{accO+12}, {G3}")
I(f"v_cndmask_b32 v17, v17, v{accO+13}, {G3}")
nop(1)
I("v_mov_b32_dpp v18, v16 quad_perm:[1,0,3,2] row_mask:0xf bank_mask:0xf")
I("v_mov_b32_dpp v19, v17 quad_perm:[1,0,3,2] row_mask:0xf bank_mask:0xf")
nop(1)
I(f"v_cndmask_b32 v120, v16, v19, {ODD}")
I(f"v_cndmask_b32 v121, v18, v17, {ODD}")
dual_store(4, "v[120:123]", 9, sT3, sT1)
stamp(7)
I(f"s_lshl_b32 s{sT2}, s{sH}, 1")
I(f"s_add_u32 s{sT2}, s{sT2}, s{sHH}")
I(f"s_lshl_b32 s{sT2}, s{sT2}, 9")
I(f"s_add_u32 s{sT2}, s{sT2}, {WS_T}")
I(f"v_lshrrev_b32 v8, 3, v{vLANE}")
I("v_lshlrev_b32 v8, 4, v8")
I(f"s_mov_b32 s{sRND}, 0")
L("L_TPOLL")
pick(sT1, sT2)
for r in range(4):
    I(f"buffer_load_dwordx4 v[{16+4*r}:{19+4*r}], v8, {S4('h')}, s{sT1} offen offset:{r*128} sc1")
I("s_waitcnt vmcnt(0)")
tagcheck([16, 20, 24, 28], "L_TPOLL", "L_TPOLL_DONE")
L("L_TPOLL_DONE")
I(f"s_lshl_b32 s{sT3}, s{sH}, 5")
I(f"s_add_u32 s{sT3}, s{sT3}, s{sJ}")
I(f"s_lshl_b32 s{sT3}, s{sT3}, 12")
I(f"s_add_u32 s{sT3}, s{sT3}, {WS_O}")
I(f"v_lshlrev_b32 v9, 4, v{vLANE}")
I("v_max_f32 v40, v16, v20")
I("v_max3_f32 v40, v40, v24, v28")
xreduce(40, 41, "v_max_f32", (8,))
I(f"s_mov_b32 s{sT2}, {CEXP}")
for r in range(4):
    I(f"v_sub_f32 v{16+4*r}, v{16+4*r}, v40")
for r in range(4):
    I(f"v_mul_f32 v{16+4*r}, s{sT2}, v{16+4*r}")
for r in range(4):
    I(f"v_exp_f32 v{16+4*r}, v{16+4*r}")
nop(1)
I("v_mul_f32 v42, v16, v17")
for r in range(1, 4):
    I(f"v_fmac_f32 v42, v{16+4*r}, v{17+4*r}")
xreduce(42, 41, "v_add_f32", (8,))
I("v_rcp_f32 v42, v42")
nop(1)
for r in range(4):
    I(f"v_mul_f32 v{16+4*r}, v{16+4*r}, v42")
I(f"v_bfe_u32 v12, v{vLANE}, 2, 2")
I(f"v_lshl_add_u32 v12, v{vG4}, 2, v12")
I(f"v_mul_u32_u24 v12, {PITCH}, v12")
I(f"v_and_b32 v13, 3, v{vLANE}")
I("v_lshl_add_u32 v12, v13, 3, v12")
I(f"s_mul_i32 s{sT0}, s{sWAVE}, {7*32}")
I(f"v_add_u32 v12, s{sT0}, v12")
I(f"ds_read_b64 v[44:45], v{vMISC} offset:{M_G - R_M}")
accA = 68
accB = 96
wB = 140
w2B = 156
def pairs_to_A(vsrc, d0, d1):
    nop(1)
    for p in range(8):
        I(f"v_readlane_b32 s{92+p}, v{vsrc}, {p}")
    nop(2)
    I(f"v_mov_b32 v{d0}, s92")
    I(f"v_mov_b32 v{d1}, s93")
    for gi, G in enumerate((G1, G2, G3)):
        I(f"v_mov_b32 v42, s{94+2*gi}")
        I(f"v_mov_b32 v43, s{95+2*gi}")
        I(f"v_cndmask_b32 v{d0}, v{d0}, v42, {G}")
        I(f"v_cndmask_b32 v{d1}, v{d1}, v43, {G}")
I(f"s_cmp_eq_u32 s{sFFN}, 0")
I("s_cbranch_scc1 L_NOFFN2")
I(f"s_lshl_b32 s{sT2}, s{sA}, 11")
I(f"s_lshl_b32 s{sT1}, s{sRQ}, 7")
I(f"s_add_u32 s{sT2}, s{sT2}, s{sT1}")
I(f"s_add_u32 s{sT2}, s{sT2}, {WS_H}")
I(f"v_bfe_u32 v13, v{vLANE}, 3, 2")
I("v_lshlrev_b32 v13, 9, v13")
I(f"v_and_b32 v14, 7, v{vLANE}")
I("v_lshl_add_u32 v13, v14, 4, v13")
I("v_lshlrev_b32 v14, 2, v14")
I(f"s_lshl_b32 s{sT1}, s{sA}, 7")
I(f"s_lshl_b32 s{sT0}, s{sRQ}, 5")
I(f"s_add_u32 s{sT0}, s{sT0}, s{sT1}")
I(f"buffer_load_dword v64, v14, {S4('d')}, s{sT0} offen")
I(f"s_mov_b32 s{sRND}, 0")
L("L_HPOLL")
pick(sT1, sT2)
I(f"buffer_load_dwordx4 v[48:51], v13, {S4('h')}, s{sT1} offen sc1")
I("s_waitcnt vmcnt(0)")
tagcheck([48], "L_HPOLL", "L_HPOLL_DONE")
L("L_HPOLL_DONE")
xreduce2(48, 49, 50, 51, "v_add_f32", (8,), swaps=("v_permlane16_swap_b32",))
I("v_cvt_pk_bf16_f32 v48, v48, v49")
I("v_lshlrev_b32 v50, 16, v48")
I("v_and_b32 v51, 0xffff0000, v48")
I("v_lshlrev_b32 v52, 16, v64")
I("v_and_b32 v53, 0xffff0000, v64")
I("v_add_f32 v50, v50, v52")
I("v_add_f32 v51, v51, v53")
I("v_cvt_pk_bf16_f32 v48, v50, v51")
I("v_lshlrev_b32 v50, 16, v48")
I("v_and_b32 v51, 0xffff0000, v48")
I("v_max_f32 v50, 0, v50")
I("v_max_f32 v51, 0, v51")
I("v_mul_f32 v50, v50, v50")
I("v_mul_f32 v51, v51, v51")
I("v_cvt_pk_bf16_f32 v48, v50, v51")
pairs_to_A(48, 46, 47)
spin_prog_all(vPROG, max(stage["W2"], stage["WO"]), 136, sleep=0)
for t in range(7):
    I(f"ds_read_b64_tr_b16 v[{w2B+2*t}:{w2B+2*t+1}], v12 offset:{16*PITCH + t*32}")
for t in range(7):
    I(f"s_waitcnt lgkmcnt({6-t})")
    I(f"v_mfma_f32_16x16x16_bf16 v[{accB+4*t}:{accB+4*t+3}], v[46:47], v[{w2B+2*t}:{w2B+2*t+1}], 0")
I("s_branch L_WOB")
L("L_NOFFN2")
for t in range(7):
    I(f"v_mov_b32 v{accB+4*t}, 0")
spin_prog_all(vPROG, stage["WO"], 136, sleep=0)
L("L_WOB")
for t in range(7):
    I(f"ds_read_b64_tr_b16 v[{wB+2*t}:{wB+2*t+1}], v12 offset:{t*32}")
stamp(8)
I(f"s_mov_b32 s{sRND}, 0")
L("L_OPOLL")
pick(sT1, sT3)
for r in range(4):
    I(f"buffer_load_dwordx4 v[{48+4*r}:{51+4*r}], v9, {S4('h')}, s{sT1} offen offset:{r*1024} sc1")
I("s_waitcnt vmcnt(0)")
tagcheck([48, 52, 56, 60], "L_OPOLL", "L_OPOLL_DONE")
L("L_OPOLL_DONE")
stamp(9)
I("v_mul_f32 v40, v16, v48")
I("v_mul_f32 v41, v16, v49")
for r in range(1, 4):
    I(f"v_fmac_f32 v40, v{16+4*r}, v{48+4*r}")
    I(f"v_fmac_f32 v41, v{16+4*r}, v{49+4*r}")
xreduce2(40, 41, 42, 43, "v_add_f32", (8,))
I("v_cvt_pk_bf16_f32 v40, v40, v41")
pairs_to_A(40, 46, 47)
I("s_waitcnt lgkmcnt(0)")
nop(1)
for t in range(7):
    I(f"v_mfma_f32_16x16x16_bf16 v[{accA+4*t}:{accA+4*t+3}], v[46:47], v[{wB+2*t}:{wB+2*t+1}], 0")
I(f"v_and_b32 v8, 1, v{vLANE}")
I(f"v_lshl_add_u32 v9, v8, 2, v{vG4}")
I("v_lshlrev_b32 v9, 3, v9")
I(f"v_lshrrev_b32 v10, 1, v{vN}")
I("v_add_u32 v9, v9, v10")
I("v_lshlrev_b32 v9, 12, v9")
I(f"s_mul_i32 s{sT0}, s{sWAVE}, {7*8*4096}")
I(f"s_lshl_b32 s{sT1}, s2, 4")
I(f"s_add_u32 s{sT0}, s{sT0}, s{sT1}")
I(f"s_add_u32 s{sT0}, s{sT0}, {WS_P}")
for t in range(7):
    I(f"v_mul_f32 v{accB+4*t}, v45, v{accB+4*t}")
for t in range(7):
    I(f"v_fmac_f32 v{accB+4*t}, v44, v{accA+4*t}")
I(f"v_cndmask_b32 v16, v{accB}, v{accB+4}, {G1}")
I(f"v_cndmask_b32 v17, v{accB+16}, v{accB+20}, {G1}")
I(f"v_cndmask_b32 v16, v16, v{accB+8}, {G2}")
I(f"v_cndmask_b32 v17, v17, v{accB+24}, {G2}")
I(f"v_cndmask_b32 v16, v16, v{accB+12}, {G3}")
I(f"v_mov_b32 v126, s{sN0}")
I(f"v_mov_b32 v127, s{sN1}")
I("v_mov_b32_dpp v18, v16 quad_perm:[1,0,3,2] row_mask:0xf bank_mask:0xf")
I("v_mov_b32_dpp v19, v17 quad_perm:[1,0,3,2] row_mask:0xf bank_mask:0xf")
nop(1)
I(f"v_cndmask_b32 v124, v16, v19, {ODD}")
I(f"v_cndmask_b32 v125, v18, v17, {ODD}")
I("s_mov_b32 exec_hi, 0x5555ffff")
I(f"buffer_store_dwordx4 v[124:127], v9, {S4('h')}, s{sT0} offen sc1")
I("s_mov_b64 exec, -1")
stamp(10)
I("s_cmp_lt_u32 s2, 32")
I("s_cbranch_scc1 L_CEND")
I(f"s_sub_u32 s{sT3}, s2, 32")
I(f"s_lshl_b32 s{sT2}, s{sT3}, 12")
I(f"s_add_u32 s{sT2}, s{sT2}, {WS_P}")
I("v_lshlrev_b32 v8, 4, v0")
I(f"s_lshl_b32 s{sT1}, s{sT3}, 2")
I(f"v_mov_b32 v10, s{sT1}")
I(f"buffer_load_dword v24, v10, {S4('e')}, 0 offen")
L("L_FPOLL")
I(f"buffer_load_dwordx4 v[16:19], v8, {S4('h')}, s{sT2} offen sc1")
I("s_waitcnt vmcnt(0)")
tagcheck([16], "L_FPOLL", "L_FPOLL_DONE")
L("L_FPOLL_DONE")
stamp(11)
for r in (1, 2, 4, 8):
    nop(1)
    I(f"v_add_f32_dpp v16, v16, v16 row_ror:{r} row_mask:0xf bank_mask:0xf")
    I(f"v_add_f32_dpp v17, v17, v17 row_ror:{r} row_mask:0xf bank_mask:0xf")
I("s_mov_b32 exec_lo, 0x00010001")
I("s_mov_b32 exec_hi, 0x00010001")
I(f"ds_add_f32 v{vMISC}, v16 offset:{M_FSUM - R_M}")
I(f"ds_add_f32 v{vMISC}, v17 offset:{M_FSUM - R_M + 4}")
I("s_mov_b64 exec, 1")
I("v_mov_b32 v18, 1")
I("s_waitcnt lgkmcnt(0)")
I(f"ds_add_rtn_u32 v19, v{vMISC}, v18 offset:{M_FCNT - R_M}")
I("s_waitcnt lgkmcnt(0)")
I(f"v_readfirstlane_b32 s{sT0}, v19")
I(f"s_cmp_eq_u32 s{sT0}, 3")
I("s_cbranch_scc0 L_CEND")
I(f"ds_read_b64 v[16:17], v{vMISC} offset:{M_FSUM - R_M}")
I("v_lshlrev_b32 v22, 16, v24")
I("v_and_b32 v23, 0xffff0000, v24")
I("s_waitcnt lgkmcnt(0)")
I("v_fmac_f32 v16, v45, v22")
I("v_fmac_f32 v17, v45, v23")
I("v_cvt_pk_bf16_f32 v16, v16, v17")
I(f"buffer_store_dword v16, v10, {S4('f')}, 0 offen")
I("s_cmp_lg_u32 s2, 32")
I("s_cbranch_scc1 L_NOEP")
I(f"s_memrealtime s[{sX0+6}:{sX0+7}]")
I(f"v_mov_b32 v8, {WS_E}")
I("s_waitcnt lgkmcnt(0)")
I(f"v_mov_b32 v12, s{sX0+6}")
I(f"v_mov_b32 v13, s{sX0+7}")
I(f"buffer_store_dwordx2 v[12:13], v8, {S4('h')}, 0 offen sc1")
L("L_NOEP")
stamp(12)
L("L_CEND")
stamp_flush()
I("s_endpgm")

L("L_LOADER")
sL = sX0
I(f"s_sub_u32 s{sL}, s{sWAVE}, 4")
I(f"v_lshrrev_b32 v6, 3, v{vLANE}")
I("v_bfe_u32 v7, v6, 1, 2")
I("v_lshlrev_b32 v7, 1, v7")
I(f"v_and_b32 v11, 7, v{vLANE}")
I("v_xor_b32 v11, v11, v7")
I("v_lshlrev_b32 v11, 4, v11")
I(f"s_lshl_b32 s{sT0}, s{sL}, 3")
I(f"v_add_u32 v6, s{sT0}, v6")
I("v_lshl_add_u32 v7, v6, 13, v11")
I("v_mul_u32_u24 v10, 3584, v6")
I("v_add_u32 v10, v10, v11")
I(f"v_lshrrev_b32 v13, 5, v{vLANE}")
I("v_lshlrev_b32 v8, 9, v13")
I(f"v_and_b32 v9, 31, v{vLANE}")
I("v_lshl_add_u32 v8, v9, 4, v8")
I(f"s_lshl_b32 s{sT0}, s{sL}, 1")
I(f"v_add_u32 v13, s{sT0}, v13")
I("v_lshlrev_b32 v13, 5, v13")
I("v_xor_b32 v9, v8, v13")
I(f"s_lshl_b32 s{sT0}, s{sL}, 4")
I(f"v_xor_b32 v8, s{sT0}, v8")
I(f"v_lshlrev_b32 v11, 4, v{vLANE}")
I(f"s_lshl_b32 s{sT0}, s{sL}, 2")
I(f"s_add_u32 s{sT0}, s{sT0}, {R_F}")
I(f"v_add_u32 v12, s{sT0}, v11")
I(f"v_mov_b32 v{vMISC}, {R_M}")
sLK, sLV, sLW, sLO, sGO, sI3, sROT = sX0+1, sX0+2, sX0+3, sX0+4, sX0+5, sX0+6, sX0+7
I(f"s_lshl_b32 s{sLK}, s{sL}, 10")
I(f"s_add_u32 s{sLV}, s{sLK}, {R_V}")
I(f"s_add_u32 s{sLW}, s{sLK}, {R_W}")
I(f"s_mul_i32 s{sLO}, s{sL}, {4*PITCH}")
I(f"s_mul_i32 s{sGO}, s{sL}, {4*896}")
I(f"s_cmp_ge_u32 s{sL}, 2")
I(f"s_cselect_b32 s{sI3}, 2, 3")
I(f"s_mul_i32 s{sROT}, s2, {args.rotmul}")
I(f"s_add_u32 s{sROT}, s{sROT}, s{sL}")
I(f"s_lshl_b32 s{sROT}, s{sROT}, 10")
I("s_waitcnt lgkmcnt(0)")
I(f"s_mul_i32 s{sT0}, s{sRQ}, {112*8192}")
I(f"s_lshl_b32 s{sT1}, s{sH}, 10")
I(f"s_add_u32 s{sT0}, s{sT0}, s{sT1}")
I(f"s_lshr_b32 s{sT1}, s{sJ}, 2")
I(f"s_lshl_b32 s{sT1}, s{sT1}, 7")
I(f"s_add_u32 s{sT0}, s{sT0}, s{sT1}")
I(f"s_sub_u32 s{sT1}, {448*8192}, s{sT0}")
build_srd("f", 22, sT0, f"s{sT1}")
def issue_w(i, srdn, vaddr, rowbytes):
    if i == 3:
        I(f"s_lshl_b32 s{sT0}, s{sI3}, 12")
        I(f"s_add_u32 m0, s{sLW}, s{sT0}")
        I(f"s_mul_i32 s{sT0}, s{sI3}, {32*rowbytes}")
    else:
        I(f"s_add_u32 m0, s{sLW}, {i*4096}")
        I(f"s_mov_b32 s{sT0}, {i*32*rowbytes}")
    I(f"buffer_load_dwordx4 v{vaddr}, {S4(srdn)}, s{sT0} offen nt lds")
for i in range(3):
    issue_w(i, "f", 7, 8192)
build_srd("g", 16, None, 896)
I(f"s_cmp_eq_u32 s{sL}, 3")
I("s_cbranch_scc1 L_LX")
issue_w(3, "f", 7, 8192)
I("s_branch L_LX2")
L("L_LX")
I(f"s_mov_b32 m0, {R_X}")
I("s_nop 0")
I(f"buffer_load_dwordx4 v11, {S4('g')}, 0 offen lds")
L("L_LX2")
I(f"s_lshl_b32 s{sT0}, s{sH}, 25")
I(f"s_add_u32 s{sT0}, s{sT0}, 0x1E00000")
I(f"s_lshl_b32 s{sT1}, s{sJ}, 16")
I(f"s_add_u32 s{sT1}, s{sT1}, s{sT0}")
build_srd("a", 18, sT1, 65536)
build_srd("b", 20, sT1, 65536)
I(f"s_mul_i32 s{sT1}, s{sRQ}, {112*3584}")
I(f"s_lshl_b32 s{sT2}, s{sA}, 7")
I(f"s_add_u32 s{sT1}, s{sT1}, s{sT2}")
I(f"s_sub_u32 s{sT2}, {448*3584}, s{sT1}")
build_srd("c", 28, sT1, f"s{sT2}")
I(f"s_lshl_b32 s{sT1}, s{sH}, 9")
I(f"s_lshl_b32 s{sT2}, s{sJ}, 4")
I(f"s_add_u32 s{sT1}, s{sT1}, s{sT2}")
I(f"s_mul_i32 s{sT1}, s{sT1}, 896")
build_srd("d", 24, sT1, 16*896)
I(f"s_lshl_b32 s{sT1}, s{sA}, 2")
I(f"s_add_u32 s{sT1}, s{sT1}, s{sRQ}")
I(f"s_mul_i32 s{sT1}, s{sT1}, {16*896}")
build_srd("e", 32, sT1, 16*896)
build_srd("h", 42, None, hex(WS_RANGE))
stamp(0)
I(f"s_cmp_eq_u32 s{sFFN}, 0")
I("s_cbranch_scc1 L_LOADER_N")

def loader_stream(ffn):
    seq = [("WQ", i) for i in range(4)]
    for o in order:
        if o == "K": seq += [("K", i) for i in range(16)]
        elif o == "V": seq += [("V", i) for i in range(16)]
        elif o == "Va": seq += [("V", i) for i in range(12)]
        elif o == "Vb": seq += [("V", i) for i in range(12, 16)]
        elif o == "W1" and ffn: seq += [("W1", i) for i in range(4)]
        elif o == "WO": seq += [("WO", i) for i in range(4)]
        elif o == "W2" and ffn: seq += [("W2", i) for i in range(4)]
    last = {}
    for p, (k, i) in enumerate(seq):
        key = f"{k}{i//4}" if k in ("K", "V") else k
        last[stage[key]] = p
    stages = sorted(last.items(), key=lambda x: x[1])
    si = 0
    def flag(st):
        I(f"v_mov_b32 v14, {st}")
        I("ds_write_b32 v12, v14")
        if st <= 13:
            stamp(st)
    masked = False
    qk_waited = False
    for p, (k, i) in enumerate(seq):
        if k == "WQ":
            continue
        if p == max(W - 1, 4):
            I("s_barrier")
        if p >= W:
            I(f"s_waitcnt vmcnt({W-1})")
            landed = p - W
            done = None
            while si < len(stages) and stages[si][1] <= landed:
                done = stages[si][0]; si += 1
            if done is not None:
                flag(done)
        want_mask = k in ("WO", "W2")
        if want_mask and not qk_waited:
            spin_lds_ge(vMISC, M_QKDONE - R_M, 4, 15)
            qk_waited = True
        if want_mask != masked:
            I("s_mov_b32 exec_hi, 0x00ffffff" if want_mask else "s_mov_b32 exec_hi, -1")
            masked = want_mask
        if k == "K":
            I(f"v_xor_b32 v13, {(4*(i & 3)) << 4}, v8")
            I(f"s_add_u32 m0, s{sLK}, {i*4096}")
            I(f"s_add_u32 s{sT0}, s{sROT}, {i*4096}")
            I(f"s_and_b32 s{sT0}, s{sT0}, 0xffff")
            I(f"buffer_load_dwordx4 v13, {S4('a')}, s{sT0} offen nt lds")
        elif k == "W1":
            if i == 0:
                spin_lds_ge(vMISC, M_QTASK - R_M, 4, 15)
            issue_w(i, "c", 10, 3584)
        elif k == "V":
            I(f"s_add_u32 m0, s{sLV}, {i*4096}")
            I(f"s_add_u32 s{sT0}, s{sROT}, {i*4096}")
            I(f"s_and_b32 s{sT0}, s{sT0}, 0xffff")
            I(f"buffer_load_dwordx4 v9, {S4('b')}, s{sT0} offen nt lds")
        elif k == "WO":
            I(f"s_add_u32 m0, s{sLO}, {i*PITCH}")
            I(f"s_add_u32 s{sT0}, s{sGO}, {i*896}")
            I(f"buffer_load_dwordx4 v11, {S4('d')}, s{sT0} offen nt lds")
        elif k == "W2":
            I(f"s_add_u32 m0, s{sLO}, {(16+i)*PITCH}")
            I(f"s_add_u32 s{sT0}, s{sGO}, {i*896}")
            I(f"buffer_load_dwordx4 v11, {S4('e')}, s{sT0} offen nt lds")
    nn = len(seq)
    while si < len(stages):
        st, p = stages[si]
        I(f"s_waitcnt vmcnt({nn-1-p})")
        flag(st)
        si += 1
    stamp_flush()
    I("s_endpgm")

loader_stream(True)
L("L_LOADER_N")
loader_stream(False)

L("L_END")
I("s_endpgm")
A('.section .rodata,"a"')
A(".p2align 6")
A(f".amdhsa_kernel {NAME}")
A("  .amdhsa_next_free_vgpr 256")
A("  .amdhsa_next_free_sgpr 102")
A("  .amdhsa_accum_offset 256")
A("  .amdhsa_group_segment_fixed_size 0")
A("  .amdhsa_kernarg_size 112")
A("  .amdhsa_user_sgpr_count 2")
A("  .amdhsa_user_sgpr_kernarg_segment_ptr 1")
A("  .amdhsa_system_sgpr_workgroup_id_x 1")
A(".end_amdhsa_kernel")
txt = "\n".join(out)
if args.nont:
    txt = txt.replace(" nt lds", " lds")
print(txt)
```

```python
import sys, argparse

ap = argparse.ArgumentParser()
ap.add_argument("--W", type=int, default=7)
ap.add_argument("--stamps", action="store_true")
ap.add_argument("--name", default="gated_mix__sliding_block_cached__dense_activation_squared_relu__decode_kernel")
ap.add_argument("--spin", type=int, default=1 << 22)
ap.add_argument("--qsleep", type=int, default=4)
ap.add_argument("--fsleep", type=int, default=0)
ap.add_argument("--slowmask", type=int, default=31)
ap.add_argument("--order", default="K,W1,V,WO,W2")
ap.add_argument("--rotmul", type=int, default=7)
ap.add_argument("--nont", action="store_true")
ap.add_argument("--nopf", action="store_true")
ap.add_argument("--WF", type=int, default=0)
ap.add_argument("--preload", action="store_true")
ap.add_argument("--noqpoll", action="store_true")
ap.add_argument("--nopre", action="store_true")
ap.add_argument("--lonly", action="store_true")
args = ap.parse_args()
W = args.W
STAMPS = args.stamps
NAME = args.name

out = []
def A(s=""):
    out.append(s)
def I(s):
    out.append("    " + s)
def L(s):
    out.append(s + ":")
def nop(n):
    if n > 0:
        I(f"s_nop {n-1}")

PITCH = 928
R_A = 0
R_V = 65536
R_W = R_V + 65536
R_X = R_W + 14336
R_Q = R_X + 1024
R_P = R_Q + 1024
R_F = R_P + 512
R_M = R_F + 1024
M_MAX = R_M
M_LSUM = R_M + 32
M_QCNT = R_M + 256
M_NONCEFLAG = R_M + 260
M_QKDONE = R_M + 264
M_PCNT = R_M + 268
M_QTASK = R_M + 276
M_FCNT = R_M + 280
M_FSUM = R_M + 288
M_NONCE = R_M + 304
M_G = R_M + 320
LDS_TOTAL = R_M + 512
assert LDS_TOTAL <= 163840, LDS_TOTAL

WS_Q = 0x000000
WS_H = 0x040000
WS_T = 0x060000
WS_P2 = 0x0A0000
WS_O = 0x100000
WS_R = 0x200000
WS_E = 0x300000
WS_STAMP = 0x400000
FAST = 0x800000
WS_RANGE = 0x1000000

order = args.order.split(",")
stage = {"WQ": 1}
n = 2
for o in order:
    if o in ("K", "V"):
        for q in range(4):
            stage[f"{o}{q}"] = n; n += 1
    elif o in ("Va", "Vb"):
        for q in (range(3) if o == "Va" else range(3, 4)):
            stage[f"V{q}"] = n; n += 1
    else:
        stage[o] = n; n += 1

sWAVE, sH, sJ, sHH, sRQ, sA, sFFN = 3, 4, 5, 6, 7, 8, 9
sT0, sT1, sT2, sT3 = 10, 11, 12, 13
sSPIN = 14
sRND = 15
SRD = {}
def S4(name):
    b = SRD[name]
    return f"s[{b}:{b+3}]"
for i, nm in enumerate(["a", "b", "c", "d", "e", "f", "g", "h"]):
    SRD[nm] = 44 + 4 * i
sN0, sN1 = 76, 77
sMA, sMB = 78, 80
sX0 = 82
sWOK, sHOK = 90, 91
sOOFF, sFOFF = 100, 101
sOG, sRP, sDW = 92, 93, 94
M_REMOTE_OFF = 272

def build_srd(name, plo, off_sgpr, size):
    b = SRD[name]
    if off_sgpr is None:
        I(f"s_mov_b32 s{b}, s{plo}")
        I(f"s_mov_b32 s{b+1}, s{plo+1}")
    else:
        I(f"s_add_u32 s{b}, s{plo}, s{off_sgpr}")
        I(f"s_addc_u32 s{b+1}, s{plo+1}, 0")
    I(f"s_mov_b32 s{b+2}, {size}")
    I(f"s_mov_b32 s{b+3}, 0x00020000")

def stamp(k):
    if STAMPS:
        I(f"s_memrealtime s[{16+2*k}:{17+2*k}]")

def stamp_flush(n=14):
    if not STAMPS:
        return
    I("s_waitcnt lgkmcnt(0)")
    I("s_mov_b64 exec, 1")
    for k in range(16):
        I(f"v_mov_b32 v{232+k}, s{16+2*min(k,n-1)}")
    for k in range(0, 16, 4):
        I(f"buffer_store_dwordx4 v[{232+k}:{235+k}], v253, {S4('h')}, 0 offen offset:{4*k}")

lbl = [0]
def newlabel(p="L"):
    lbl[0] += 1
    return f"{p}_{lbl[0]}"

def spin_lds_ge(vaddr, off, val, vt, sleep=1):
    l = newlabel("SP"); d = newlabel("SD")
    L(l)
    I(f"ds_read_b32 v{vt}, v{vaddr} offset:{off}")
    I("s_waitcnt lgkmcnt(0)")
    I(f"v_readfirstlane_b32 s{sT0}, v{vt}")
    I(f"s_cmp_ge_u32 s{sT0}, {val}")
    I(f"s_cbranch_scc1 {d}")
    if sleep:
        I(f"s_sleep {sleep}")
    I(f"s_branch {l}")
    L(d)

def spin_prog_all(vaddr, val, vt, sleep=1):
    l = newlabel("SP"); d = newlabel("SD")
    L(l)
    I(f"ds_read_b128 v[{vt}:{vt+3}], v{vaddr}")
    I("s_waitcnt lgkmcnt(0)")
    I(f"v_min3_u32 v{vt}, v{vt}, v{vt+1}, v{vt+2}")
    I(f"v_min_u32 v{vt}, v{vt}, v{vt+3}")
    nop(1)
    I(f"v_readfirstlane_b32 s{sT0}, v{vt}")
    I(f"s_cmp_ge_u32 s{sT0}, {val}")
    I(f"s_cbranch_scc1 {d}")
    if sleep:
        I(f"s_sleep {sleep}")
    I(f"s_branch {l}")
    L(d)

def xreduce(v, t, op, rors, swaps=("v_permlane16_swap_b32", "v_permlane32_swap_b32")):
    for r in rors:
        nop(2)
        I(f"{op}_dpp v{v}, v{v}, v{v} row_ror:{r} row_mask:0xf bank_mask:0xf")
    for sw in swaps:
        I(f"v_mov_b32 v{t}, v{v}")
        nop(2)
        I(f"{sw} v{v}, v{t}")
        nop(1)
        I(f"{op} v{v}, v{v}, v{t}")

def xreduce2(v, w, t, u, op, rors, swaps=("v_permlane16_swap_b32", "v_permlane32_swap_b32")):
    for r in rors:
        nop(1)
        I(f"{op}_dpp v{v}, v{v}, v{v} row_ror:{r} row_mask:0xf bank_mask:0xf")
        I(f"{op}_dpp v{w}, v{w}, v{w} row_ror:{r} row_mask:0xf bank_mask:0xf")
    for sw in swaps:
        I(f"v_mov_b32 v{t}, v{v}")
        I(f"v_mov_b32 v{u}, v{w}")
        nop(1)
        I(f"{sw} v{v}, v{t}")
        I(f"{sw} v{w}, v{u}")
        nop(1)
        I(f"{op} v{v}, v{v}, v{t}")
        I(f"{op} v{w}, v{w}, v{u}")

def pick(sdst, sbase, on_slow=None):
    I(f"s_add_u32 s{sRND}, s{sRND}, 1")
    I(f"s_and_b32 s{sdst}, s{sRND}, {args.slowmask}")
    I(f"s_cmp_eq_u32 s{sdst}, 0")
    if on_slow is not None:
        f = newlabel("PF")
        I(f"s_cbranch_scc0 {f}")
        on_slow()
        I(f"s_cmp_eq_u32 0, 0")
        L(f)
    I(f"s_cselect_b32 s{sdst}, 0, {FAST}")
    I(f"s_add_u32 s{sdst}, s{sdst}, s{sbase}")

def fast_store(nn, data, vaddr, soff, stmp):
    I(f"s_add_u32 s{stmp}, s{soff}, {FAST}")
    I(f"buffer_store_dwordx{nn} {data}, v{vaddr}, {S4('h')}, s{stmp} offen")
def slow_store(nn, data, vaddr, soff):
    I(f"buffer_store_dwordx{nn} {data}, v{vaddr}, {S4('h')}, s{soff} offen sc1")

def pub_store(nn, data, vaddr, soff, stmp):
    f = newlabel("PS"); d = newlabel("PD")
    I(f"s_add_u32 s{stmp}, s{soff}, s{sFOFF}")
    I(f"s_cmp_eq_u32 s{sFOFF}, 0")
    I(f"s_cbranch_scc1 {f}")
    I(f"buffer_store_dwordx{nn} {data}, v{vaddr}, {S4('h')}, s{stmp} offen")
    I(f"s_branch {d}")
    L(f)
    I(f"buffer_store_dwordx{nn} {data}, v{vaddr}, {S4('h')}, s{stmp} offen sc1")
    L(d)

def tagmask(regs):
    I(f"v_cmp_eq_u64 vcc, s[{sN0}:{sN1}], v[{regs[0]+2}:{regs[0]+3}]")
    for r in regs[1:]:
        I(f"v_cmp_eq_u64 s[{sX0+4}:{sX0+5}], s[{sN0}:{sN1}], v[{r+2}:{r+3}]")
        I(f"s_and_b64 vcc, vcc, s[{sX0+4}:{sX0+5}]")

def tagcheck(regs, loop, done):
    tagmask(regs)
    I(f"s_sub_u32 s{sSPIN}, s{sSPIN}, 1")
    I(f"s_cbranch_scc1 {done}")
    I("s_cmp_eq_u64 vcc, exec")
    I(f"s_cbranch_scc0 {loop}")

A(f"; @launch grid=(256,1,1) block=(512,1,1) lds={LDS_TOTAL}")
A('.amdgcn_target "amdgcn-amd-amdhsa--gfx950"')
A(".text")
A(f".globl {NAME}")
A(".p2align 8")
A(f".type {NAME},@function")
L(NAME)
I("s_cmp_ge_u32 s2, 256")
I("s_cbranch_scc1 L_END")
I("s_load_dwordx16 s[16:31], s[0:1], 0")
I("s_load_dwordx8 s[32:39], s[0:1], 64")
I("s_load_dwordx4 s[40:43], s[0:1], 96")
I("v_lshrrev_b32 v2, 6, v0")
I("v_and_b32 v1, 63, v0")
I(f"s_and_b32 s{sH}, s2, 7")
I(f"v_readfirstlane_b32 s{sWAVE}, v2")
I(f"s_lshr_b32 s{sJ}, s2, 3")
if not args.nopf:
    I("s_getpc_b64 s[92:93]")
    L("L_PC")
    I(f"s_lshl_b32 s{sT0}, s{sJ}, 3")
    I(f"s_add_u32 s{sT0}, s{sT0}, s{sWAVE}")
    I(f"s_mul_i32 s{sT1}, s{sT0}, 0x1556")
    I(f"s_lshr_b32 s{sT1}, s{sT1}, 16")
    I(f"s_mul_i32 s{sT1}, s{sT1}, 12")
    I(f"s_sub_u32 s{sT0}, s{sT0}, s{sT1}")
    I(f"s_lshl_b32 s{sT0}, s{sT0}, 10")
    I(f"v_lshl_add_u32 v254, v1, 4, s{sT0}")
    I(f"v_min_u32 v254, CODE_BYTES_AFTER_PC-16, v254")
    I("global_load_dwordx4 v[248:251], v254, s[92:93]")
I(f"s_lshr_b32 s{sHH}, s{sJ}, 4")
I(f"s_and_b32 s{sRQ}, s{sJ}, 3")
I(f"s_lshr_b32 s{sA}, s{sJ}, 2")
I(f"s_lshl_b32 s{sA}, s{sA}, 3")
I(f"s_add_u32 s{sA}, s{sA}, s{sH}")
I(f"s_cmp_lt_u32 s{sA}, 28")
I(f"s_cselect_b32 s{sFFN}, 1, 0")
I(f"s_cselect_b32 s{sA}, s{sA}, 0")
if STAMPS:
    I(f"s_lshl_b32 s{sT0}, s2, 3")
    I(f"s_add_u32 s{sT0}, s{sT0}, s{sWAVE}")
    I(f"s_lshl_b32 s{sT0}, s{sT0}, 7")
    I(f"s_add_u32 s{sT0}, s{sT0}, {WS_STAMP}")
    I(f"v_mov_b32 v253, s{sT0}")
I(f"s_cmp_lt_u32 s{sWAVE}, 4")
I("s_cbranch_scc1 L_CONS")

vLANE = 1
vG4 = 3
vN = 4
vMISC = 5
vPROG = 6

sL = sX0
I(f"s_sub_u32 s{sL}, s{sWAVE}, 4")
I(f"v_lshrrev_b32 v6, 3, v{vLANE}")
I("v_bfe_u32 v7, v6, 1, 2")
I("v_lshlrev_b32 v7, 1, v7")
I(f"v_and_b32 v11, 7, v{vLANE}")
I("v_xor_b32 v11, v11, v7")
I("v_lshlrev_b32 v11, 4, v11")
I(f"s_lshl_b32 s{sT0}, s{sL}, 3")
I(f"v_add_u32 v6, s{sT0}, v6")
I("v_lshl_add_u32 v7, v6, 13, v11")
I("v_mul_u32_u24 v10, 3584, v6")
I("v_add_u32 v10, v10, v11")
I(f"v_lshrrev_b32 v13, 5, v{vLANE}")
I("v_lshlrev_b32 v8, 9, v13")
I(f"v_and_b32 v9, 31, v{vLANE}")
I("v_lshl_add_u32 v8, v9, 4, v8")
I(f"s_lshl_b32 s{sT0}, s{sL}, 1")
I(f"v_add_u32 v13, s{sT0}, v13")
I("v_lshlrev_b32 v13, 5, v13")
I("v_xor_b32 v9, v8, v13")
I(f"s_lshl_b32 s{sT0}, s{sL}, 4")
I(f"v_xor_b32 v8, s{sT0}, v8")
I(f"v_lshlrev_b32 v11, 4, v{vLANE}")
I(f"s_lshl_b32 s{sT0}, s{sL}, 2")
I(f"s_add_u32 s{sT0}, s{sT0}, {R_F}")
I(f"v_add_u32 v12, s{sT0}, v11")
I(f"v_mov_b32 v{vMISC}, {R_M}")
sLK, sLV, sLW, sLO, sGO, sI3, sROT = sX0+1, sX0+2, sX0+3, sX0+4, sX0+5, sX0+6, sX0+7
I(f"s_lshl_b32 s{sLK}, s{sL}, 10")
I(f"s_add_u32 s{sLV}, s{sLK}, {R_V}")
I(f"s_add_u32 s{sLW}, s{sLK}, {R_W}")
I(f"s_mul_i32 s{sLO}, s{sL}, {4*PITCH}")
I(f"s_mul_i32 s{sGO}, s{sL}, {4*896}")
I(f"s_cmp_ge_u32 s{sL}, 2")
I(f"s_cselect_b32 s{sI3}, 2, 3")
I(f"s_mul_i32 s{sROT}, s2, {args.rotmul}")
I(f"s_add_u32 s{sROT}, s{sROT}, s{sL}")
I(f"s_lshl_b32 s{sROT}, s{sROT}, 10")
I(f"s_mul_i32 s{sT2}, s{sRQ}, {112*8192}")
I(f"s_lshl_b32 s{sT1}, s{sH}, 10")
I(f"s_add_u32 s{sT2}, s{sT2}, s{sT1}")
I(f"s_lshr_b32 s{sT1}, s{sJ}, 2")
I(f"s_lshl_b32 s{sT1}, s{sT1}, 7")
I(f"s_add_u32 s{sT2}, s{sT2}, s{sT1}")
I(f"s_sub_u32 s{sT1}, {448*8192}, s{sT2}")
I(f"s_lshl_b32 s{sT3}, s{sH}, 25")
I(f"s_add_u32 s{sT3}, s{sT3}, 0x1E00000")
I(f"s_lshl_b32 s{sT0}, s{sJ}, 16")
I(f"s_add_u32 s{sT3}, s{sT3}, s{sT0}")
I("s_waitcnt lgkmcnt(0)")
build_srd("f", 22, sT2, f"s{sT1}")
def issue_w(i, srdn, vaddr, rowbytes):
    if i == 3:
        I(f"s_lshl_b32 s{sT0}, s{sI3}, 12")
        I(f"s_add_u32 m0, s{sLW}, s{sT0}")
        I(f"s_mul_i32 s{sT0}, s{sI3}, {32*rowbytes}")
    else:
        I(f"s_add_u32 m0, s{sLW}, {i*4096}")
        I(f"s_mov_b32 s{sT0}, {i*32*rowbytes}")
    I(f"buffer_load_dwordx4 v{vaddr}, {S4(srdn)}, s{sT0} offen nt lds")
for i in range(3):
    issue_w(i, "f", 7, 8192)
build_srd("g", 16, None, 896)
I(f"s_cmp_eq_u32 s{sL}, 3")
I("s_cbranch_scc1 L_LX")
issue_w(3, "f", 7, 8192)
I("s_branch L_LX2")
L("L_LX")
I(f"s_mov_b32 m0, {R_X}")
I("s_nop 0")
I(f"buffer_load_dwordx4 v11, {S4('g')}, 0 offen lds")
L("L_LX2")
build_srd("a", 18, sT3, 65536)
def issue_k(i):
    I(f"v_xor_b32 v13, {(4*(i & 3)) << 4}, v8")
    I(f"s_add_u32 m0, s{sLK}, {i*4096}")
    I(f"s_add_u32 s{sT0}, s{sROT}, {i*4096}")
    I(f"s_and_b32 s{sT0}, s{sT0}, 0xffff")
    I(f"buffer_load_dwordx4 v13, {S4('a')}, s{sT0} offen nt lds")
NPRE = max(0, W - 4)
assert order[0] == "K"
for i in range(NPRE):
    issue_k(i)
build_srd("b", 20, sT3, 65536)
I(f"s_mul_i32 s{sT1}, s{sRQ}, {112*3584}")
I(f"s_lshl_b32 s{sT2}, s{sA}, 7")
I(f"s_add_u32 s{sT1}, s{sT1}, s{sT2}")
I(f"s_sub_u32 s{sT2}, {448*3584}, s{sT1}")
build_srd("c", 28, sT1, f"s{sT2}")
I(f"s_lshl_b32 s{sT1}, s{sH}, 9")
I(f"s_lshl_b32 s{sT2}, s{sJ}, 4")
I(f"s_add_u32 s{sT1}, s{sT1}, s{sT2}")
I(f"s_mul_i32 s{sT1}, s{sT1}, 896")
build_srd("d", 24, sT1, 16*896)
I(f"s_lshl_b32 s{sT1}, s{sA}, 2")
I(f"s_add_u32 s{sT1}, s{sT1}, s{sRQ}")
I(f"s_mul_i32 s{sT1}, s{sT1}, {16*896}")
build_srd("e", 32, sT1, 16*896)
build_srd("h", 42, None, hex(WS_RANGE))
stamp(0)
I("s_barrier")

def loader_stream(ffn, start_p, stop_kind=None):
    pass

def make_seq(ffn):
    seq = [("WQ", i) for i in range(4)]
    for o in order:
        if o == "K": seq += [("K", i) for i in range(16)]
        elif o == "V": seq += [("V", i) for i in range(16)]
        elif o == "Va": seq += [("V", i) for i in range(12)]
        elif o == "Vb": seq += [("V", i) for i in range(12, 16)]
        elif o == "W1" and ffn: seq += [("W1", i) for i in range(4)]
        elif o == "WO": seq += [("WO", i) for i in range(4)]
        elif o == "W2" and ffn: seq += [("W2", i) for i in range(4)]
    return seq

def emit_stream(seq, p0, p1, st, W=W):
    stages = st["stages"]
    def flag(s_):
        I(f"v_mov_b32 v14, {s_}")
        I("ds_write_b32 v12, v14")
        if s_ <= 13:
            stamp(s_)
    for p in range(p0, p1):
        k, i = seq[p]
        if p >= W:
            I(f"s_waitcnt vmcnt({W-1})")
            landed = p - W
            done = None
            while st["si"] < len(stages) and stages[st["si"]][1] <= landed:
                done = stages[st["si"]][0]; st["si"] += 1
            if done is not None:
                flag(done)
        want_mask = k in ("WO", "W2")
        if want_mask and not st["qk_waited"]:
            spin_lds_ge(vMISC, M_QKDONE - R_M, 4, 15)
            st["qk_waited"] = True
        if want_mask != st["masked"]:
            I("s_mov_b32 exec_hi, 0x00ffffff" if want_mask else "s_mov_b32 exec_hi, -1")
            st["masked"] = want_mask
        if k == "K":
            issue_k(i)
        elif k == "W1":
            if i == 0:
                spin_lds_ge(vMISC, M_QTASK - R_M, 4, 15)
            issue_w(i, "c", 10, 3584)
        elif k == "V":
            I(f"s_add_u32 m0, s{sLV}, {i*4096}")
            I(f"s_add_u32 s{sT0}, s{sROT}, {i*4096}")
            I(f"s_and_b32 s{sT0}, s{sT0}, 0xffff")
            I(f"buffer_load_dwordx4 v9, {S4('b')}, s{sT0} offen nt lds")
        elif k == "WO":
            I(f"s_add_u32 m0, s{sLO}, {i*PITCH}")
            I(f"s_add_u32 s{sT0}, s{sGO}, {i*896}")
            I(f"buffer_load_dwordx4 v11, {S4('d')}, s{sT0} offen nt lds")
        elif k == "W2":
            I(f"s_add_u32 m0, s{sLO}, {(16+i)*PITCH}")
            I(f"s_add_u32 s{sT0}, s{sGO}, {i*896}")
            I(f"buffer_load_dwordx4 v11, {S4('e')}, s{sT0} offen nt lds")
    if p1 == len(seq):
        nn = len(seq)
        while st["si"] < len(stages):
            s_, p = stages[st["si"]]
            I(f"s_waitcnt vmcnt({nn-1-p})")
            flag(s_)
            st["si"] += 1
        stamp_flush()
        I("s_endpgm")

def stages_of(seq):
    last = {}
    for p, (k, i) in enumerate(seq):
        key = f"{k}{i//4}" if k in ("K", "V") else k
        last[stage[key]] = p
    return sorted(last.items(), key=lambda x: x[1])

seqF, seqN = make_seq(True), make_seq(False)
common = 0
while common < len(seqN) and seqF[common] == seqN[common]:
    common += 1
WF = args.WF or W
assert WF >= W
if WF != W:
    common = 4 + NPRE
stF = dict(si=0, masked=False, qk_waited=False, stages=stages_of(seqF))
emit_stream(seqF, 4 + NPRE, common, stF)
stN = dict(si=stF["si"], masked=stF["masked"], qk_waited=stF["qk_waited"], stages=stages_of(seqN))
I(f"s_cmp_eq_u32 s{sFFN}, 0")
I("s_cbranch_scc1 L_LOADER_N")
emit_stream(seqF, common, len(seqF), stF, WF)
L("L_LOADER_N")
emit_stream(seqN, common, len(seqN), stN)

L("L_CONS")
vGA, vGB = 128, 129
vB1, vB2 = 130, 131
I(f"v_lshrrev_b32 v{vG4}, 4, v{vLANE}")
I(f"v_and_b32 v{vN}, 15, v{vLANE}")
I(f"v_mov_b32 v{vMISC}, {R_M}")
I(f"v_mov_b32 v{vPROG}, {R_F}")
I(f"s_mov_b32 s{sSPIN}, {args.spin}")
I(f"s_mov_b32 s{sRND}, 0")
I(f"s_mov_b32 s{sWOK}, 0")
I(f"s_mov_b32 s{sHOK}, 0")
I("s_waitcnt lgkmcnt(0)")
I(f"s_add_u32 s94, s42, {WS_E}")
I("s_addc_u32 s95, s43, 0")
I(f"s_load_dwordx2 s[{sN0}:{sN1}], s[94:95], 0")
build_srd("h", 42, None, hex(WS_RANGE))
build_srd("a", 16, None, 896)
build_srd("c", 36, None, 896)
build_srd("d", 30, None, 3584)
build_srd("e", 34, None, 896)
build_srd("f", 38, None, 896)
stamp(0)
I(f"s_cmp_lg_u32 s{sWAVE}, 2")
I("s_cbranch_scc1 L_NOG")
I(f"v_lshlrev_b32 v8, 4, v{vLANE}")
I(f"buffer_load_dwordx4 v[16:19], v8, {S4('a')}, 0 offen")
I(f"buffer_load_dwordx4 v[20:23], v8, {S4('c')}, 0 offen")
L("L_NOG")
I(f"v_and_b32 v14, 1, v{vLANE}")
I(f"v_lshl_add_u32 v14, v{vG4}, 1, v14")
I("v_lshlrev_b32 v14, 2, v14")
I(f"s_lshl_b32 s{sT1}, s{sA}, 7")
I(f"s_lshl_b32 s{sT0}, s{sRQ}, 5")
I(f"s_add_u32 s{sT0}, s{sT0}, s{sT1}")
I(f"buffer_load_dword v{vB1}, v14, {S4('d')}, s{sT0} offen")
I(f"s_lshl_b32 s{sT0}, s{sJ}, 5")
I(f"v_add_u32 v133, s{sT0}, v14")
I(f"buffer_load_dword v{vB2}, v133, {S4('e')}, 0 offen")
I(f"s_cmp_lg_u32 s{sWAVE}, 3")
I("s_cbranch_scc1 L_NOZ")
I("v_mov_b32 v8, 0")
I("v_mov_b32 v9, 0")
I("v_mov_b32 v10, 0")
I("v_mov_b32 v11, 0")
I(f"v_lshlrev_b32 v12, 4, v{vLANE}")
I(f"v_add_u32 v12, {R_F}, v12")
I("ds_write_b128 v12, v[8:11]")
I("s_mov_b32 exec_hi, 0")
I("ds_write_b128 v12, v[8:11] offset:1024")
I("s_mov_b64 exec, -1")
L("L_NOZ")
I("s_waitcnt lgkmcnt(0)")
I(f"s_add_u32 s{sN0}, s{sN0}, 0x7f4a7c15")
I(f"s_andn2_b32 s{sN0}, s{sN0}, 15")
I(f"s_xor_b32 s{sN1}, s{sN1}, 0x9e3779b9")
I(f"s_not_b32 s{sT0}, s{sN0}")
I(f"v_mov_b32 v204, s{sT0}")
I(f"v_mov_b32 v205, s{sT0}")
I(f"v_mov_b32 v206, s{sT0}")
I(f"v_mov_b32 v207, s{sT0}")
I(f"v_lshlrev_b32 v8, 4, v{vLANE}")
I(f"s_lshl_b32 s{sT3}, s{sH}, 5")
I(f"s_add_u32 s{sT3}, s{sT3}, s{sJ}")
I(f"s_lshl_b32 s{sT0}, s{sH}, 14")
I(f"s_lshl_b32 s{sT1}, s{sRQ}, 12")
I(f"s_add_u32 s{sT0}, s{sT0}, s{sT1}")
I(f"s_lshr_b32 s{sT1}, s{sJ}, 2")
I(f"s_lshl_b32 s{sT1}, s{sT1}, 9")
I(f"s_add_u32 s{sT0}, s{sT0}, s{sT1}")
I(f"s_lshl_b32 s{sT2}, s{sWAVE}, 7")
I(f"s_add_u32 s{sT0}, s{sT0}, s{sT2}")
I(f"s_add_u32 s{sT0}, s{sT0}, {WS_Q + FAST}")
I("s_mov_b64 exec, 0xff")
I(f"buffer_store_dwordx4 v[204:207], v8, {S4('h')}, s{sT0} offen")
I(f"s_cmp_eq_u32 s{sFFN}, 0")
I("s_cbranch_scc1 L_C0B")
I(f"s_lshl_b32 s{sT0}, s{sA}, 11")
I(f"s_lshl_b32 s{sT1}, s{sRQ}, 9")
I(f"s_add_u32 s{sT0}, s{sT0}, s{sT1}")
I(f"s_add_u32 s{sT0}, s{sT0}, s{sT2}")
I(f"s_add_u32 s{sT0}, s{sT0}, {WS_H + FAST}")
I(f"buffer_store_dwordx4 v[204:207], v8, {S4('h')}, s{sT0} offen")
L("L_C0B")
I("s_mov_b64 exec, -1")
I(f"s_cmp_eq_u32 s{sWAVE}, 1")
I("s_cbranch_scc1 L_C1")
I(f"s_cmp_eq_u32 s{sWAVE}, 2")
I("s_cbranch_scc1 L_C2")
I(f"s_cmp_eq_u32 s{sWAVE}, 3")
I("s_cbranch_scc1 L_C3")
I("s_mov_b32 exec_hi, 0")
I(f"s_lshl_b32 s{sT0}, s{sT3}, 9")
I(f"s_add_u32 s{sT0}, s{sT0}, {WS_T + FAST}")
I(f"buffer_store_dwordx4 v[204:207], v8, {S4('h')}, s{sT0} offen")
I("s_mov_b64 exec, -1")
I("s_barrier")
I("s_branch L_CQ")

L("L_C1")
I(f"s_lshl_b32 s{sT0}, s{sT3}, 12")
I(f"s_add_u32 s{sT0}, s{sT0}, {WS_O + FAST}")
for r in range(4):
    I(f"buffer_store_dwordx4 v[204:207], v8, {S4('h')}, s{sT0} offen offset:{r*1024}")
I("s_barrier")
I("s_branch L_CQ")

L("L_C2")
I("s_barrier")
I("s_waitcnt vmcnt(3)")
I("v_mov_b32 v9, 0")
for k in range(4):
    I(f"v_lshlrev_b32 v10, 16, v{16+k}")
    I(f"v_lshlrev_b32 v11, 16, v{20+k}")
    I(f"v_and_b32 v12, 0xffff0000, v{16+k}")
    I(f"v_and_b32 v13, 0xffff0000, v{20+k}")
    I("v_mul_f32 v10, v10, v11")
    I("v_mul_f32 v12, v12, v13")
    I("v_cvt_pk_bf16_f32 v10, v10, v12")
    I("v_lshlrev_b32 v11, 16, v10")
    I("v_and_b32 v12, 0xffff0000, v10")
    I("v_add_f32 v9, v9, v11")
    I("v_add_f32 v9, v9, v12")
xreduce(9, 10, "v_add_f32", (1, 2, 4, 8))
I("v_cvt_pk_bf16_f32 v9, v9, v9")
I("v_lshlrev_b32 v9, 16, v9")
I("v_mul_f32 v9, 0xbfb8aa3b, v9")
I("v_exp_f32 v9, v9")
nop(1)
I("v_add_f32 v9, 1.0, v9")
I("v_rcp_f32 v9, v9")
nop(1)
I("v_cvt_pk_bf16_f32 v9, v9, v9")
I("v_lshlrev_b32 v10, 16, v9")
I("v_sub_f32 v11, 1.0, v10")
I("v_cvt_pk_bf16_f32 v11, v11, v11")
I("v_lshlrev_b32 v11, 16, v11")
I("s_mov_b64 exec, 1")
I(f"ds_write_b64 v{vMISC}, v[10:11] offset:{M_G - R_M}")
I("s_mov_b64 exec, -1")
I("s_branch L_CQ")

L("L_C3")
I(f"s_lshl_b32 s{sT0}, s{sT3}, 12")
I(f"s_add_u32 s{sT0}, s{sT0}, {WS_R + FAST}")
for r in range(4):
    I(f"buffer_store_dwordx4 v[204:207], v8, {S4('h')}, s{sT0} offen offset:{r*1024}")
I("s_barrier")

def gemv_tile(acc, A0, B0):
    for k in range(3):
        I(f"ds_read2_b64 v[{A0+4*k}:{A0+4*k+3}], v{vGA} offset0:{k*8} offset1:{k*8+4}")
        I(f"ds_read_b64_tr_b16 v[{B0+4*k}:{B0+4*k+1}], v{vGB} offset:{k*4096}")
        I(f"ds_read_b64_tr_b16 v[{B0+4*k+2}:{B0+4*k+3}], v{vGB} offset:{k*4096+2048}")
    I(f"ds_read_b64 v[{A0+12}:{A0+13}], v{vGA} offset:192")
    I(f"ds_read_b64_tr_b16 v[{B0+12}:{B0+13}], v{vGB} offset:{3*4096}")
    for k in range(3):
        I(f"s_waitcnt lgkmcnt({8-3*k})")
        c = "0" if k == 0 else f"v[{acc}:{acc+3}]"
        I(f"v_mfma_f32_16x16x32_bf16 v[{acc}:{acc+3}], v[{A0+4*k}:{A0+4*k+3}], v[{B0+4*k}:{B0+4*k+3}], {c}")
    I("s_waitcnt lgkmcnt(0)")
    I(f"v_mfma_f32_16x16x16_bf16 v[{acc+4}:{acc+7}], v[{A0+12}:{A0+13}], v[{B0+12}:{B0+13}], 0")

def pairs16(acc, d):
    nop(8)
    I(f"v_add_f32 v{d}, v{acc}, v{acc+4}")
    nop(2)
    I(f"v_mov_b32_dpp v{d+1}, v{d} quad_perm:[1,0,3,2] row_mask:0xf bank_mask:0xf")

L("L_CQ")
if args.lonly:
    I("v_mov_b32 v9, 1")
    I("s_mov_b64 exec, 1")
    I(f"ds_add_u32 v{vMISC}, v9 offset:{M_QTASK - R_M}")
    I(f"ds_add_u32 v{vMISC}, v9 offset:{M_QKDONE - R_M}")
    I("s_branch L_CEND")
I(f"s_mul_i32 s{sT0}, s{sRQ}, 224")
I(f"s_add_u32 s{sT0}, s{sT0}, {R_X}")
I(f"v_lshlrev_b32 v{vGA}, 3, v{vG4}")
I(f"v_add_u32 v{vGA}, s{sT0}, v{vGA}")
I(f"v_bfe_u32 v10, v{vLANE}, 2, 2")
I(f"v_lshl_add_u32 v10, v{vG4}, 2, v10")
I("v_bfe_u32 v11, v10, 1, 2")
I(f"v_xor_b32 v11, s{sWAVE}, v11")
I("v_lshlrev_b32 v11, 5, v11")
I("v_lshl_add_u32 v11, v10, 7, v11")
I(f"v_and_b32 v10, 3, v{vLANE}")
I("v_lshl_add_u32 v11, v10, 3, v11")
I(f"v_add_u32 v{vGB}, {R_W}, v11")
I(f"s_lshl_b32 s{sT3}, s{sH}, 14")
I(f"s_lshl_b32 s{sT1}, s{sRQ}, 12")
I(f"s_add_u32 s{sT3}, s{sT3}, s{sT1}")
I(f"s_lshr_b32 s{sT1}, s{sJ}, 2")
I(f"s_lshl_b32 s{sT1}, s{sT1}, 9")
I(f"s_add_u32 s{sT3}, s{sT3}, s{sT1}")
I(f"s_lshl_b32 s{sT1}, s{sWAVE}, 7")
I(f"s_add_u32 s{sT3}, s{sT3}, s{sT1}")
I(f"s_add_u32 s{sT3}, s{sT3}, {WS_Q}")
I(f"v_lshlrev_b32 v132, 3, v{vLANE}")
spin_prog_all(vPROG, stage["WQ"], 136, sleep=0)
stamp(1)
I(f"s_getreg_b32 s{sWOK}, hwreg(HW_REG_XCC_ID, 0, 4)")
I(f"s_or_b32 s{sWOK}, s{sWOK}, s{sN0}")
I(f"v_mov_b32 v122, s{sWOK}")
I(f"v_mov_b32 v123, s{sN1}")
gemv_tile(112, 16, 32)
I("v_mov_b32 v9, 1")
I("s_mov_b64 exec, 1")
I(f"ds_add_u32 v{vMISC}, v9 offset:{M_QTASK - R_M}")
I("s_mov_b64 exec, -1")
pairs16(112, 120)
I("s_waitcnt vmcnt(0)")
I("s_mov_b64 exec, 0x5555")
fast_store(4, "v[120:123]", 132, sT3, sT1)
I("s_mov_b64 exec, -1")
stamp(2)
def q_slow():
    I("s_mov_b64 exec, 0x5555")
    slow_store(4, "v[120:123]", 132, sT3)
    I("s_mov_b64 exec, -1")
I(f"v_lshlrev_b32 v8, 4, v{vLANE}")
I(f"s_lshl_b32 s{sT1}, s{sWAVE}, 10")
I(f"s_lshl_b32 s{sT2}, s{sH}, 14")
I(f"s_add_u32 s{sT2}, s{sT2}, s{sT1}")
I(f"s_add_u32 s{sT2}, s{sT2}, {WS_Q}")
I(f"v_add_u32 v9, 4096, v8")
I(f"v_add_u32 v10, 8192, v8")
I(f"v_add_u32 v11, 12288, v8")
if args.noqpoll:
    I("s_branch L_QPOLL_DONE")
L("L_QPOLL")
I(f"s_sleep {args.qsleep}")
pick(sT1, sT2, q_slow)
for r in range(4):
    I(f"buffer_load_dwordx4 v[{16+4*r}:{19+4*r}], v{8+r}, {S4('h')}, s{sT1} offen sc1")
I("s_waitcnt vmcnt(0)")
for r in range(4):
    I(f"v_xor_b32 v{32+r}, s{sWOK}, v{18+4*r}")
    I(f"v_and_b32 v{18+4*r}, -16, v{18+4*r}")
tagcheck([16, 20, 24, 28], "L_QPOLL", "L_QPOLL_DONE")
L("L_QPOLL_DONE")
q_slow()
I("v_or3_b32 v32, v32, v33, v34")
I("v_or_b32 v32, v32, v35")
I("v_cmp_ne_u32 vcc, 0, v32")
I(f"s_mov_b32 s{sWOK}, 0")
I("s_cmp_lg_u64 vcc, 0")
I(f"s_cselect_b32 s{sT0}, 1, 0")
I(f"v_mov_b32 v33, s{sT0}")
I("s_mov_b64 exec, 1")
I(f"ds_add_u32 v{vMISC}, v33 offset:{M_REMOTE_OFF}")
I("s_mov_b64 exec, -1")
I(f"v_mov_b32 v122, s{sN0}")
I("v_add_f32 v16, v16, v20")
I("v_add_f32 v17, v17, v21")
I("v_add_f32 v24, v24, v28")
I("v_add_f32 v25, v25, v29")
I("v_add_f32 v16, v16, v24")
I("v_add_f32 v17, v17, v25")
I("v_cvt_pk_bf16_f32 v16, v16, v17")
I(f"s_lshl_b32 s{sT1}, s{sWAVE}, 8")
I(f"s_add_u32 s{sT1}, s{sT1}, {R_Q}")
I(f"v_lshlrev_b32 v9, 2, v{vLANE}")
I(f"v_add_u32 v9, s{sT1}, v9")
I("v_mov_b32 v10, 1")
I("ds_write_b32 v9, v16")
I("s_waitcnt lgkmcnt(0)")
I("s_mov_b64 exec, 1")
I(f"ds_add_u32 v{vMISC}, v10 offset:{M_QCNT - R_M}")
I("s_mov_b64 exec, -1")
stamp(3)
qA = 40
kB = 140
acc0, acc1 = 112, 116
I(f"v_and_b32 v8, 1, v{vLANE}")
I("v_lshlrev_b32 v8, 9, v8")
I(f"v_lshl_add_u32 v8, v{vG4}, 4, v8")
I(f"v_add_u32 v8, {R_Q}, v8")
I(f"v_and_b32 v9, 3, v{vN}")
I(f"v_xor_b32 v9, v{vG4}, v9")
I(f"v_and_b32 v10, 12, v{vN}")
I("v_or_b32 v9, v9, v10")
I("v_lshlrev_b32 v9, 4, v9")
I(f"v_lshl_add_u32 v9, v{vN}, 10, v9")
I(f"s_lshl_b32 s{sT0}, s{sWAVE}, 14")
I(f"v_add_u32 v9, s{sT0}, v9")
for q in range(1, 4):
    I(f"v_xor_b32 v{9+q}, {q*64}, v9")
I(f"s_add_u32 s{sT3}, s{sWAVE}, {stage['K0']}")
spin_prog_all(vPROG, f"s{sT3}", 136)
for t in range(2):
    for i in range(8):
        r = kB + (t*8+i)*4
        I(f"ds_read_b128 v[{r}:{r+3}], v{9+(i&3)} offset:{t*512 + (i>>2)*256}")
spin_lds_ge(vMISC, M_QCNT - R_M, 4, 13, sleep=0)
stamp(4)
I(f"ds_read_b32 v14, v{vMISC} offset:{M_REMOTE_OFF}")
for i in range(8):
    I(f"ds_read_b128 v[{qA+4*i}:{qA+4*i+3}], v8 offset:{i*64}")
for i in range(8):
    I(f"s_waitcnt lgkmcnt({7-i})")
    if i == 1:
        I(f"v_readfirstlane_b32 s{sFOFF}, v14")
        I(f"s_cmp_eq_u32 s{sFOFF}, 0")
        I(f"s_cselect_b32 s{sFOFF}, {FAST}, 0")
    for t in range(2):
        acc = acc0 if t == 0 else acc1
        r = kB + (t*8+i)*4
        c = "0" if i == 0 else f"v[{acc}:{acc+3}]"
        I(f"v_mfma_f32_16x16x32_bf16 v[{acc}:{acc+3}], v[{qA+4*i}:{qA+4*i+3}], v[{r}:{r+3}], {c}")
CEXP = "0x3db8aa3b"
I(f"s_mov_b32 s{sT2}, {CEXP}")
I(f"s_lshl_b32 s{sT1}, s{sWAVE}, 3")
I(f"v_mov_b32 v8, s{sT1}")
I(f"v_add_u32 v8, {M_MAX}, v8")
nop(5)
I(f"v_cvt_pk_bf16_f32 v120, v{acc0}, v{acc1}")
I(f"v_cvt_pk_bf16_f32 v121, v{acc0+1}, v{acc1+1}")
I("v_lshlrev_b32 v16, 16, v120")
I("v_and_b32 v17, 0xffff0000, v120")
I("v_lshlrev_b32 v18, 16, v121")
I("v_and_b32 v19, 0xffff0000, v121")
I("v_max_f32 v20, v16, v17")
I("v_max_f32 v21, v18, v19")
for r in (1, 2, 4, 8):
    nop(1)
    I(f"v_max_f32_dpp v20, v20, v20 row_ror:{r} row_mask:0xf bank_mask:0xf")
    I(f"v_max_f32_dpp v21, v21, v21 row_ror:{r} row_mask:0xf bank_mask:0xf")
I("v_mov_b32 v9, 1")
I("s_mov_b64 exec, 1")
I("ds_write_b64 v8, v[20:21]")
I("s_waitcnt lgkmcnt(0)")
I(f"ds_add_u32 v{vMISC}, v9 offset:{M_QKDONE - R_M}")
I("s_mov_b64 exec, -1")
spin_lds_ge(vMISC, M_QKDONE - R_M, 4, 13, sleep=0)
I(f"ds_read_b128 v[24:27], v{vMISC} offset:{M_MAX - R_M}")
I(f"ds_read_b128 v[28:31], v{vMISC} offset:{M_MAX - R_M + 16}")
I("s_waitcnt lgkmcnt(0)")
I("v_max_f32 v20, v24, v26")
I("v_max_f32 v21, v25, v27")
I("v_max3_f32 v20, v20, v28, v30")
I("v_max3_f32 v21, v21, v29, v31")
I("v_sub_f32 v16, v16, v20")
I("v_sub_f32 v17, v17, v20")
I("v_sub_f32 v18, v18, v21")
I("v_sub_f32 v19, v19, v21")
for k in range(4):
    I(f"v_mul_f32 v{16+k}, s{sT2}, v{16+k}")
for k in range(4):
    I(f"v_exp_f32 v{16+k}, v{16+k}")
nop(1)
I("v_cvt_pk_bf16_f32 v24, v16, v17")
I("v_cvt_pk_bf16_f32 v25, v18, v19")
I("v_add_f32 v22, v16, v17")
I("v_add_f32 v23, v18, v19")
I(f"s_lshl_b32 s{sT1}, s{sWAVE}, 6")
I(f"s_add_u32 s{sT1}, s{sT1}, {R_P}")
I(f"v_lshlrev_b32 v8, 2, v{vN}")
I(f"v_add_u32 v8, s{sT1}, v8")
I("s_mov_b64 exec, 0xffff")
I("ds_write_b32 v8, v24")
I("ds_write_b32 v8, v25 offset:256")
I("s_mov_b64 exec, -1")
for r in (1, 2, 4, 8):
    nop(1)
    I(f"v_add_f32_dpp v22, v22, v22 row_ror:{r} row_mask:0xf bank_mask:0xf")
    I(f"v_add_f32_dpp v23, v23, v23 row_ror:{r} row_mask:0xf bank_mask:0xf")
I("s_mov_b64 exec, 1")
I(f"ds_add_f32 v{vMISC}, v22 offset:{M_LSUM - R_M}")
I(f"ds_add_f32 v{vMISC}, v23 offset:{M_LSUM - R_M + 4}")
I("s_waitcnt lgkmcnt(0)")
I(f"ds_add_u32 v{vMISC}, v9 offset:{M_PCNT - R_M}")
I("s_mov_b64 exec, -1")
I(f"v_and_b32 v10, 1, v{vLANE}")
I("v_lshlrev_b32 v10, 8, v10")
I(f"v_lshl_add_u32 v10, v{vG4}, 3, v10")
I(f"v_add_u32 v10, {R_P}, v10")
I(f"v_bfe_u32 v11, v{vLANE}, 2, 2")
I(f"v_lshl_add_u32 v12, v{vG4}, 2, v11")
I("v_and_b32 v13, 7, v12")
I(f"s_lshl_b32 s{sT1}, s{sWAVE}, 2")
I(f"v_xor_b32 v13, s{sT1}, v13")
I("v_lshlrev_b32 v13, 5, v13")
I("v_lshl_add_u32 v13, v12, 9, v13")
I(f"v_and_b32 v14, 3, v{vLANE}")
I("v_lshl_add_u32 v13, v14, 3, v13")
I(f"v_add_u32 v32, {R_V}, v13")
for tt in range(1, 4):
    I(f"v_xor_b32 v{32+tt}, {tt*32}, v32")
I(f"v_mul_u32_u24 v134, {PITCH}, v12")
I("v_lshl_add_u32 v134, v14, 3, v134")
I(f"s_mul_i32 s{sT0}, s{sWAVE}, {7*32}")
I(f"v_add_u32 v134, s{sT0}, v134")
spin_lds_ge(vMISC, M_PCNT - R_M, 4, 13, sleep=0)
pA = 36
for s in range(4):
    I(f"ds_read2_b64 v[{pA+4*s}:{pA+4*s+3}], v10 offset0:{s*8} offset1:{s*8+4}")
I(f"ds_read_b64 v[220:221], v{vMISC} offset:{M_G - R_M}")
sk = newlabel("NOSTAT")
I(f"s_cmp_lg_u32 s{sWAVE}, 0")
I(f"s_cbranch_scc1 {sk}")
I(f"ds_read_b64 v[22:23], v{vMISC} offset:{M_LSUM - R_M}")
I(f"v_cmp_eq_u32 vcc, 1, v{vG4}")
I(f"s_lshl_b32 s{sT0}, s{sH}, 14")
I(f"s_lshl_b32 s{sT1}, s{sJ}, 4")
I(f"s_add_u32 s{sT0}, s{sT0}, s{sT1}")
I(f"s_add_u32 s{sT0}, s{sT0}, {WS_T}")
I(f"v_lshlrev_b32 v8, 9, v{vLANE}")
I("s_waitcnt lgkmcnt(0)")
I("v_cndmask_b32 v120, v20, v21, vcc")
I("v_cndmask_b32 v121, v22, v23, vcc")
I("s_mov_b32 exec_hi, 0")
pub_store(4, "v[120:123]", 8, sT0, sT1)
I("s_mov_b64 exec, -1")
L(sk)
G1, G2, G3, ODD = f"s[{sX0}:{sX0+1}]", f"s[{sMA}:{sMA+1}]", f"s[{sMB}:{sMB+1}]", f"s[{sX0+2}:{sX0+3}]"
I(f"v_cmp_eq_u32 {G2}, 2, v{vG4}")
I(f"v_cmp_eq_u32 {G3}, 3, v{vG4}")
I(f"v_cmp_eq_u32 {G1}, 1, v{vG4}")
I(f"v_and_b32 v8, 1, v{vLANE}")
I(f"v_cmp_eq_u32 {ODD}, 1, v8")
I(f"v_lshl_add_u32 v135, v8, 4, v{vG4}")
I("v_lshlrev_b32 v135, 12, v135")
I(f"v_lshrrev_b32 v10, 1, v{vN}")
I("v_lshl_add_u32 v135, v10, 4, v135")
I(f"s_lshl_b32 s{sOOFF}, s{sH}, 5")
I(f"s_lshl_b32 s{sT1}, s{sWAVE}, 2")
I(f"s_add_u32 s{sOOFF}, s{sOOFF}, s{sT1}")
I(f"s_lshl_b32 s{sOOFF}, s{sOOFF}, 12")
I(f"s_lshl_b32 s{sT1}, s{sJ}, 7")
I(f"s_add_u32 s{sOOFF}, s{sOOFF}, s{sT1}")
I(f"s_add_u32 s{sOOFF}, s{sOOFF}, {WS_O}")
stamp(5)
W1LATE = stage['W1'] > stage['V3']
def ffn1_block():
    I(f"s_cmp_eq_u32 s{sFFN}, 0")
    I("s_cbranch_scc1 L_NOFFN1")
    I(f"s_lshl_b32 s{sT2}, s{sA}, 11")
    I(f"s_lshl_b32 s{sT1}, s{sRQ}, 9")
    I(f"s_add_u32 s{sT2}, s{sT2}, s{sT1}")
    I(f"s_lshl_b32 s{sT1}, s{sWAVE}, 7")
    I(f"s_add_u32 s{sT2}, s{sT2}, s{sT1}")
    I(f"s_add_u32 s{sT2}, s{sT2}, {WS_H}")
    spin_prog_all(vPROG, stage["W1"], 136)
    gemv_tile(112, 140, 156)
    pairs16(112, 120)
    I("s_mov_b64 exec, 0x5555")
    pub_store(4, "v[120:123]", 132, sT2, sT1)
    I("s_mov_b64 exec, -1")
    L("L_NOFFN1")


if not W1LATE:
    ffn1_block()
sTS, sHS = 98, 99
I(f"s_lshl_b32 s{sTS}, s{sH}, 5")
I(f"s_add_u32 s{sTS}, s{sTS}, s{sJ}")
I(f"s_lshl_b32 s{sOG}, s{sTS}, 12")
I(f"s_lshl_b32 s{sTS}, s{sTS}, 9")
I(f"s_add_u32 s{sTS}, s{sTS}, {WS_T}")
I(f"s_add_u32 s{sTS}, s{sTS}, s{sFOFF}")
I(f"s_add_u32 s{sOG}, s{sOG}, s{sFOFF}")
I(f"v_bfe_u32 v14, v{vLANE}, 1, 3")
I("v_lshlrev_b32 v192, 4, v14")
I(f"v_and_b32 v15, 1, v{vLANE}")
I(f"v_lshl_add_u32 v15, v{vG4}, 1, v15")
I("v_lshlrev_b32 v15, 4, v15")
I("v_lshl_add_u32 v197, v14, 7, v15")
I(f"s_lshl_b32 s{sHS}, s{sA}, 11")
I(f"s_lshl_b32 s{sT1}, s{sRQ}, 7")
I(f"s_add_u32 s{sHS}, s{sHS}, s{sT1}")
I(f"s_add_u32 s{sHS}, s{sHS}, {WS_H}")
I(f"s_add_u32 s{sHS}, s{sHS}, s{sFOFF}")
I("v_and_b32 v14, 3, v14")
I("v_lshl_add_u32 v193, v14, 9, v15")
I(f"v_and_b32 v8, 1, v{vLANE}")
I(f"v_lshl_add_u32 v222, v8, 2, v{vG4}")
I("v_lshlrev_b32 v222, 12, v222")
I(f"v_lshrrev_b32 v10, 1, v{vN}")
I("v_lshl_add_u32 v222, v10, 4, v222")
I(f"s_mul_i32 s{sRP}, s{sWAVE}, 7")
I(f"s_lshl_b32 s{sT1}, s{sH}, 5")
I(f"s_add_u32 s{sRP}, s{sRP}, s{sT1}")
I(f"s_lshl_b32 s{sRP}, s{sRP}, 12")
I(f"s_lshl_b32 s{sT1}, s{sJ}, 7")
I(f"s_add_u32 s{sRP}, s{sRP}, s{sT1}")
I(f"s_add_u32 s{sRP}, s{sRP}, {WS_R}")
I(f"v_mov_b32 v126, s{sN0}")
I(f"v_mov_b32 v127, s{sN1}")
I(f"v_mov_b32 v202, s{sN0}")
I(f"v_mov_b32 v203, s{sN1}")
I(f"s_mov_b32 s{sDW}, 0")
ST = [172, 176, 180, 184]
HR = 188
def ror1(v, op, rors):
    for r in rors:
        nop(2)
        I(f"{op}_dpp v{v}, v{v}, v{v} row_ror:{r} row_mask:0xf bank_mask:0xf")
def ror2(v, w, op, rors):
    for r in rors:
        nop(1)
        I(f"{op}_dpp v{v}, v{v}, v{v} row_ror:{r} row_mask:0xf bank_mask:0xf")
        I(f"{op}_dpp v{w}, v{w}, v{w} row_ror:{r} row_mask:0xf bank_mask:0xf")
def stats_loads(soff):
    for r in range(4):
        I(f"buffer_load_dwordx4 v[{ST[r]}:{ST[r]+3}], v192, {S4('h')}, s{soff} offen offset:{r*128} sc1")
def stats_weights():
    I(f"v_max_f32 v194, v{ST[0]}, v{ST[1]}")
    I(f"v_max3_f32 v194, v194, v{ST[2]}, v{ST[3]}")
    ror1(194, "v_max_f32", (2, 4, 8))
    I(f"s_mov_b32 s{sT2}, {CEXP}")
    for r in ST:
        I(f"v_sub_f32 v{r}, v{r}, v194")
    for r in ST:
        I(f"v_mul_f32 v{r}, s{sT2}, v{r}")
    for r in ST:
        I(f"v_exp_f32 v{r}, v{r}")
    nop(1)
    I(f"v_mul_f32 v196, v{ST[0]}, v{ST[0]+1}")
    for r in ST[1:]:
        I(f"v_fmac_f32 v196, v{r}, v{r+1}")
    ror1(196, "v_add_f32", (2, 4, 8))
    I("v_rcp_f32 v196, v196")
    nop(1)
    for r in ST:
        I(f"v_mul_f32 v{r}, v{r}, v196")
    I(f"s_mov_b32 s{sWOK}, 1")
def pairs_to_A(vsrc, d0, d1):
    nop(2)
    I(f"v_mov_b32_dpp v{d0}, v{vsrc} quad_perm:[0,0,2,2] row_mask:0xf bank_mask:0xf")
    I(f"v_mov_b32_dpp v{d1}, v{vsrc} quad_perm:[1,1,3,3] row_mask:0xf bank_mask:0xf")
def h_compute():
    ror2(HR, HR+1, "v_add_f32", (2, 4))
    I(f"v_cvt_pk_bf16_f32 v{HR}, v{HR}, v{HR+1}")
    I(f"v_lshlrev_b32 v{HR+2}, 16, v{HR}")
    I(f"v_and_b32 v{HR+3}, 0xffff0000, v{HR}")
    I(f"v_lshlrev_b32 v194, 16, v{vB1}")
    I(f"v_and_b32 v195, 0xffff0000, v{vB1}")
    I(f"v_add_f32 v{HR+2}, v{HR+2}, v194")
    I(f"v_add_f32 v{HR+3}, v{HR+3}, v195")
    I(f"v_cvt_pk_bf16_f32 v{HR}, v{HR+2}, v{HR+3}")
    I(f"v_lshlrev_b32 v{HR+2}, 16, v{HR}")
    I(f"v_and_b32 v{HR+3}, 0xffff0000, v{HR}")
    I(f"v_max_f32 v{HR+2}, 0, v{HR+2}")
    I(f"v_max_f32 v{HR+3}, 0, v{HR+3}")
    I(f"v_mul_f32 v{HR+2}, v{HR+2}, v{HR+2}")
    I(f"v_mul_f32 v{HR+3}, v{HR+3}, v{HR+3}")
    I(f"v_cvt_pk_bf16_f32 v{HR}, v{HR+2}, v{HR+3}")
    pairs_to_A(HR, 198, 199)
    I(f"s_mov_b32 s{sHOK}, 1")

vB = 52
accO = 68
for s in range(4):
    spin_prog_all(vPROG, stage[f"V{s}"], 136, sleep=(1 if s < 3 else 0))
    for tt in range(4):
        I(f"ds_read_b64_tr_b16 v[{vB+4*tt}:{vB+4*tt+1}], v{32+tt} offset:{s*16384}")
        I(f"ds_read_b64_tr_b16 v[{vB+4*tt+2}:{vB+4*tt+3}], v{32+tt} offset:{s*16384+8192}")
    for tt in range(4):
        I(f"s_waitcnt lgkmcnt({6-2*tt})")
        c = "0" if s == 0 else f"v[{accO+4*tt}:{accO+4*tt+3}]"
        I(f"v_mfma_f32_16x16x32_bf16 v[{accO+4*tt}:{accO+4*tt+3}], v[{pA+4*s}:{pA+4*s+3}], v[{vB+4*tt}:{vB+4*tt+3}], {c}")
    if s == 1:
        stats_loads(sTS)
        if not W1LATE:
            I(f"buffer_load_dwordx4 v[{HR}:{HR+3}], v193, {S4('h')}, s{sHS} offen sc1")
    if s == 2:
        I("s_waitcnt vmcnt(0)")
        e1 = newlabel("E1")
        tagmask(ST)
        I("s_cmp_eq_u64 vcc, exec")
        I(f"s_cbranch_scc0 {e1}")
        stats_weights()
        L(e1)
        if not W1LATE:
            e2 = newlabel("E2")
            I(f"s_cmp_eq_u32 s{sFFN}, 0")
            I(f"s_cbranch_scc1 {e2}")
            tagmask([HR])
            I("s_cmp_eq_u64 vcc, exec")
            I(f"s_cbranch_scc0 {e2}")
            h_compute()
            L(e2)
stamp(6)
nop(6)
I(f"v_cndmask_b32 v16, v{accO}, v{accO+4}, {G1}")
I(f"v_cndmask_b32 v17, v{accO+1}, v{accO+5}, {G1}")
I(f"v_cndmask_b32 v16, v16, v{accO+8}, {G2}")
I(f"v_cndmask_b32 v17, v17, v{accO+9}, {G2}")
I(f"v_cndmask_b32 v16, v16, v{accO+12}, {G3}")
I(f"v_cndmask_b32 v17, v17, v{accO+13}, {G3}")
nop(1)
I("v_mov_b32_dpp v18, v16 quad_perm:[1,0,3,2] row_mask:0xf bank_mask:0xf")
I("v_mov_b32_dpp v19, v17 quad_perm:[1,0,3,2] row_mask:0xf bank_mask:0xf")
nop(1)
I(f"v_cndmask_b32 v200, v16, v19, {ODD}")
I(f"v_cndmask_b32 v201, v18, v17, {ODD}")
pub_store(4, "v[200:203]", 135, sOOFF, sT1)
stamp(7)
if W1LATE:
    ffn1_block()
I(f"s_cmp_lg_u32 s{sWOK}, 0")
I("s_cbranch_scc1 L_TOK")
L("L_TPOLL")
stats_loads(sTS)
I("s_waitcnt vmcnt(0)")
tagcheck(ST, "L_TPOLL", "L_TPOLL_DONE")
L("L_TPOLL_DONE")
stats_weights()
L("L_TOK")
accA = 68
accB = 96
wB = 140
w2B = 156
I(f"s_cmp_eq_u32 s{sFFN}, 0")
I("s_cbranch_scc1 L_HOK")
I(f"s_cmp_lg_u32 s{sHOK}, 0")
I("s_cbranch_scc1 L_HOK")
L("L_HPOLL")
I(f"buffer_load_dwordx4 v[{HR}:{HR+3}], v193, {S4('h')}, s{sHS} offen sc1")
I("s_waitcnt vmcnt(0)")
tagcheck([HR], "L_HPOLL", "L_HPOLL_DONE")
L("L_HPOLL_DONE")
h_compute()
L("L_HOK")
I(f"s_cmp_eq_u32 s{sFFN}, 0")
I(f"s_cselect_b32 s{sT3}, {stage['WO']}, {max(stage['WO'], stage['W2'])}")
I(f"s_add_u32 s{sT2}, s{sOG}, {WS_O}")
def weight_work():
    nf = newlabel("NF"); dn = newlabel("WD")
    for t in range(7):
        I(f"ds_read_b64_tr_b16 v[{wB+2*t}:{wB+2*t+1}], v134 offset:{t*32}")
    I(f"s_cmp_eq_u32 s{sFFN}, 0")
    I(f"s_cbranch_scc1 {nf}")
    for t in range(7):
        I(f"ds_read_b64_tr_b16 v[{w2B+2*t}:{w2B+2*t+1}], v134 offset:{16*PITCH + t*32}")
    for t in range(7):
        I(f"s_waitcnt lgkmcnt({6-t})")
        I(f"v_mfma_f32_16x16x16_bf16 v[{accB+4*t}:{accB+4*t+3}], v[198:199], v[{w2B+2*t}:{w2B+2*t+1}], 0")
    nop(3)
    for t in range(7):
        if t == 6:
            nop(2)
        I(f"v_mul_f32 v{accB+4*t}, v221, v{accB+4*t}")
    I(f"s_branch {dn}")
    L(nf)
    for t in range(7):
        I(f"v_mov_b32 v{accB+4*t}, 0")
    L(dn)
    I(f"s_mov_b32 s{sDW}, 1")
L("L_OPOLL")
for r in range(4):
    I(f"buffer_load_dwordx4 v[{48+4*r}:{51+4*r}], v197, {S4('h')}, s{sT2} offen offset:{r*1024} sc1")
I(f"s_cmp_lg_u32 s{sDW}, 0")
I("s_cbranch_scc1 L_OCHK")
I(f"ds_read_b128 v[136:139], v{vPROG}")
I("s_waitcnt lgkmcnt(0)")
I("v_min3_u32 v136, v136, v137, v138")
I("v_min_u32 v136, v136, v139")
nop(1)
I(f"v_readfirstlane_b32 s{sT0}, v136")
I(f"s_cmp_ge_u32 s{sT0}, s{sT3}")
I("s_cbranch_scc0 L_OCHK")
weight_work()
L("L_OCHK")
I("s_waitcnt vmcnt(0)")
tagcheck([48, 52, 56, 60], "L_OPOLL", "L_OPOLL_DONE")
L("L_OPOLL_DONE")
stamp(8)
I(f"v_mul_f32 v40, v{ST[0]}, v48")
I(f"v_mul_f32 v41, v{ST[0]}, v49")
for r in range(1, 4):
    I(f"v_fmac_f32 v40, v{ST[r]}, v{48+4*r}")
    I(f"v_fmac_f32 v41, v{ST[r]}, v{49+4*r}")
ror2(40, 41, "v_add_f32", (2, 4, 8))
I("v_cvt_pk_bf16_f32 v40, v40, v41")
pairs_to_A(40, 46, 47)
I(f"s_cmp_lg_u32 s{sDW}, 0")
I("s_cbranch_scc1 L_WDONE")
spin_prog_all(vPROG, f"s{sT3}", 136, sleep=0)
weight_work()
L("L_WDONE")
I("s_waitcnt lgkmcnt(0)")
for t in range(7):
    I(f"v_mfma_f32_16x16x16_bf16 v[{accA+4*t}:{accA+4*t+3}], v[46:47], v[{wB+2*t}:{wB+2*t+1}], 0")
nop(3)
for t in range(7):
    if t == 6:
        nop(1)
    I(f"v_fmac_f32 v{accB+4*t}, v220, v{accA+4*t}")
stamp(9)
I(f"v_cndmask_b32 v16, v{accB}, v{accB+4}, {G1}")
I(f"v_cndmask_b32 v17, v{accB+16}, v{accB+20}, {G1}")
I(f"v_cndmask_b32 v16, v16, v{accB+8}, {G2}")
I(f"v_cndmask_b32 v17, v17, v{accB+24}, {G2}")
I(f"v_cndmask_b32 v16, v16, v{accB+12}, {G3}")
nop(2)
I("v_mov_b32_dpp v18, v16 quad_perm:[1,0,3,2] row_mask:0xf bank_mask:0xf")
I("v_mov_b32_dpp v19, v17 quad_perm:[1,0,3,2] row_mask:0xf bank_mask:0xf")
nop(1)
I(f"v_cndmask_b32 v124, v16, v19, {ODD}")
I(f"v_cndmask_b32 v125, v18, v17, {ODD}")
I("s_mov_b32 exec_hi, 0x5555ffff")
pub_store(4, "v[124:127]", 222, sRP, sT1)
I("s_mov_b64 exec, -1")
stamp(10)
I(f"s_cmp_eq_u32 s{sWAVE}, 0")
I(f"s_cselect_b32 s{sT0}, s{sJ}, 99")
I(f"s_cmp_lt_u32 s{sT0}, 28")
I("s_cbranch_scc0 L_CEND")
I(f"s_add_u32 s{sT3}, s{sOG}, {WS_R}")
I(f"s_lshl_b32 s{sT2}, s{sJ}, 10")
I(f"s_add_u32 s{sT2}, s{sT2}, {WS_P2}")
I(f"s_lshl_b32 s{sT1}, s{sH}, 7")
I(f"s_add_u32 s{sT1}, s{sT1}, s{sT2}")
L("L_RPOLL")
for r in range(4):
    I(f"buffer_load_dwordx4 v[{48+4*r}:{51+4*r}], v197, {S4('h')}, s{sT3} offen offset:{r*1024} sc1")
I("s_waitcnt vmcnt(0)")
tagcheck([48, 52, 56, 60], "L_RPOLL", "L_RPOLL_DONE")
L("L_RPOLL_DONE")
I("v_add_f32 v48, v48, v52")
I("v_add_f32 v49, v49, v53")
I("v_add_f32 v56, v56, v60")
I("v_add_f32 v57, v57, v61")
I("v_add_f32 v48, v48, v56")
I("v_add_f32 v49, v49, v57")
ror2(48, 49, "v_add_f32", (2, 4, 8))
I(f"v_mov_b32 v50, s{sN0}")
I(f"v_mov_b32 v51, s{sN1}")
I("s_mov_b32 exec_lo, 0x00030003")
I("s_mov_b32 exec_hi, 0x00030003")
I(f"buffer_store_dwordx4 v[48:51], v197, {S4('h')}, s{sT1} offen sc1")
I("s_mov_b64 exec, -1")
stamp(11)
I(f"s_and_b32 s{sT0}, s{sJ}, 7")
I(f"s_cmp_eq_u32 s{sT0}, s{sH}")
I("s_cbranch_scc0 L_CEND")
I(f"v_lshlrev_b32 v22, 16, v{vB2}")
I(f"v_and_b32 v23, 0xffff0000, v{vB2}")
L("L_FPOLL")
I(f"buffer_load_dwordx4 v[16:19], v197, {S4('h')}, s{sT2} offen sc1")
I("s_waitcnt vmcnt(0)")
tagcheck([16], "L_FPOLL", "L_FPOLL_DONE")
L("L_FPOLL_DONE")
ror2(16, 17, "v_add_f32", (2, 4, 8))
I("v_fmac_f32 v16, v221, v22")
I("v_fmac_f32 v17, v221, v23")
I("v_cvt_pk_bf16_f32 v16, v16, v17")
I("s_mov_b32 exec_lo, 0x00030003")
I("s_mov_b32 exec_hi, 0x00030003")
I(f"buffer_store_dword v16, v133, {S4('f')}, 0 offen")
I(f"s_cmp_lg_u32 s2, 0")
I("s_cbranch_scc1 L_NOEP")
I(f"s_memrealtime s[96:97]")
I(f"v_mov_b32 v8, {WS_E}")
I("s_waitcnt lgkmcnt(0)")
I(f"v_mov_b32 v12, s96")
I(f"v_mov_b32 v13, s97")
I("s_mov_b64 exec, 1")
I(f"buffer_store_dwordx2 v[12:13], v8, {S4('h')}, 0 offen sc1")
L("L_NOEP")
stamp(12)
L("L_CEND")
stamp_flush()
L("L_END")
I("s_endpgm")
L("L_CODE_END")
if not args.nopf:
    A(".set CODE_BYTES_AFTER_PC, L_CODE_END - L_PC")
A('.section .rodata,"a"')
A(".p2align 6")
A(f".amdhsa_kernel {NAME}")
A("  .amdhsa_next_free_vgpr 256")
A("  .amdhsa_next_free_sgpr 102")
A("  .amdhsa_accum_offset 256")
A("  .amdhsa_group_segment_fixed_size 0")
A("  .amdhsa_kernarg_size 112")
A("  .amdhsa_user_sgpr_count 2")
A("  .amdhsa_user_sgpr_kernarg_segment_ptr 1")
A("  .amdhsa_system_sgpr_workgroup_id_x 1")
A(".end_amdhsa_kernel")
txt = "\n".join(out)
import re
if args.nopre:
    txt = re.sub(r"    buffer_store_dwordx4 v\[204:207\], .*\n", "", txt)
if args.preload:
    import re
    txt = re.sub(r"buffer_store_dwordx4 v\[204:207\], (v8, s\[72:75\], s10 offen(?: offset:\d+)?)", r"buffer_load_dwordx4 v[208:211], \1 sc1", txt)
if args.nont:
    txt = txt.replace(" nt lds", " lds")
print(txt)
```

```python
import sys, argparse

ap = argparse.ArgumentParser()
ap.add_argument("--W", type=int, default=7)
ap.add_argument("--stamps", action="store_true")
ap.add_argument("--name", default="gated_mix__sliding_block_cached__dense_activation_squared_relu__decode_kernel")
ap.add_argument("--spin", type=int, default=1 << 22)
ap.add_argument("--qsleep", type=int, default=4)
ap.add_argument("--fsleep", type=int, default=0)
ap.add_argument("--slowmask", type=int, default=31)
ap.add_argument("--order", default="K,W1,V,WO,W2")
ap.add_argument("--rotmul", type=int, default=7)
ap.add_argument("--nont", action="store_true")
ap.add_argument("--nopf", action="store_true")
ap.add_argument("--WF", type=int, default=0)
ap.add_argument("--preload", action="store_true")
ap.add_argument("--noqpoll", action="store_true")
ap.add_argument("--nopre", action="store_true")
ap.add_argument("--lonly", action="store_true")
ap.add_argument("--dbgstamps", action="store_true")
args = ap.parse_args()
W = args.W
STAMPS = args.stamps or args.dbgstamps
NAME = args.name

out = []
def A(s=""):
    out.append(s)
def I(s):
    out.append("    " + s)
def L(s):
    out.append(s + ":")
def nop(n):
    if n > 0:
        I(f"s_nop {n-1}")

PITCH = 928
R_A = 0
R_V = 65536
R_W = R_V + 65536
R_X = R_W + 14336
R_Q = R_X + 1024
R_P = R_Q + 1024
R_F = R_P + 512
R_M = R_F + 1024
M_MAX = R_M
M_LSUM = R_M + 32
M_QCNT = R_M + 256
M_NONCEFLAG = R_M + 260
M_QKDONE = R_M + 264
M_PCNT = R_M + 268
M_QTASK = R_M + 276
M_FCNT = R_M + 280
M_FSUM = R_M + 288
M_NONCE = R_M + 304
M_G = R_M + 320
LDS_TOTAL = R_M + 512
assert LDS_TOTAL <= 163840, LDS_TOTAL

WS_Q = 0x000000
WS_H = 0x040000
WS_T = 0x060000
WS_P2 = 0x0A0000
WS_O = 0x100000
WS_R = 0x200000
WS_E = 0x300000
WS_STAMP = 0x400000
FAST = 0x800000
WS_RANGE = 0x1000000

order = args.order.split(",")
stage = {"WQ": 1}
n = 2
for o in order:
    if o in ("K", "V"):
        for q in range(4):
            stage[f"{o}{q}"] = n; n += 1
    elif o in ("Va", "Vb"):
        for q in (range(3) if o == "Va" else range(3, 4)):
            stage[f"V{q}"] = n; n += 1
    else:
        stage[o] = n; n += 1

sWAVE, sH, sJ, sHH, sRQ, sA, sFFN = 3, 4, 5, 6, 7, 8, 9
sT0, sT1, sT2, sT3 = 10, 11, 12, 13
sSPIN = 14
sRND = 15
SRD = {}
def S4(name):
    b = SRD[name]
    return f"s[{b}:{b+3}]"
for i, nm in enumerate(["a", "b", "c", "d", "e", "f", "g", "h"]):
    SRD[nm] = 44 + 4 * i
sN0, sN1 = 76, 77
sMA, sMB = 78, 80
sX0 = 82
sWOK, sHOK = 90, 91
sOOFF, sFOFF = 100, 101
sOG, sRP, sDW = 92, 93, 94
M_REMOTE_OFF = 272

def build_srd(name, plo, off_sgpr, size):
    b = SRD[name]
    if off_sgpr is None:
        I(f"s_mov_b32 s{b}, s{plo}")
        I(f"s_mov_b32 s{b+1}, s{plo+1}")
    else:
        I(f"s_add_u32 s{b}, s{plo}, s{off_sgpr}")
        I(f"s_addc_u32 s{b+1}, s{plo+1}, 0")
    I(f"s_mov_b32 s{b+2}, {size}")
    I(f"s_mov_b32 s{b+3}, 0x00020000")

def stamp(k):
    if STAMPS:
        I(f"s_memrealtime s[{16+2*k}:{17+2*k}]")

def stamp_flush(n=14, cons=False):
    if not STAMPS:
        return
    if args.dbgstamps:
        if not cons:
            return
        sk = "L_NODBG"
        I(f"s_cmp_lg_u32 s2, 0")
        I(f"s_cbranch_scc1 {sk}")
        I(f"s_cmp_lg_u32 s{sWAVE}, 0")
        I(f"s_cbranch_scc1 {sk}")
        I("s_waitcnt lgkmcnt(0)")
        I("s_mov_b64 exec, 1")
        for k in range(13):
            I(f"s_sub_u32 s{sT0}, s{16+2*k}, s{SRD['b']}")
            I(f"v_mov_b32 v{232+k}, s{sT0}")
        I("v_mov_b32 v248, 0")
        for k in range(0, 12, 4):
            I(f"buffer_store_dwordx4 v[{232+k}:{235+k}], v248, {S4('g')}, 0 offen offset:{4*k}")
        I(f"buffer_store_dword v244, v248, {S4('g')}, 0 offen offset:48")
        L(sk)
        return
    I("s_waitcnt lgkmcnt(0)")
    I("s_mov_b64 exec, 1")
    for k in range(16):
        I(f"v_mov_b32 v{232+k}, s{16+2*min(k,n-1)}")
    for k in range(0, 16, 4):
        I(f"buffer_store_dwordx4 v[{232+k}:{235+k}], v253, {S4('h')}, 0 offen offset:{4*k}")

lbl = [0]
def newlabel(p="L"):
    lbl[0] += 1
    return f"{p}_{lbl[0]}"

def spin_lds_ge(vaddr, off, val, vt, sleep=1):
    l = newlabel("SP"); d = newlabel("SD")
    L(l)
    I(f"ds_read_b32 v{vt}, v{vaddr} offset:{off}")
    I("s_waitcnt lgkmcnt(0)")
    I(f"v_readfirstlane_b32 s{sT0}, v{vt}")
    I(f"s_cmp_ge_u32 s{sT0}, {val}")
    I(f"s_cbranch_scc1 {d}")
    if sleep:
        I(f"s_sleep {sleep}")
    I(f"s_branch {l}")
    L(d)

def spin_prog_all(vaddr, val, vt, sleep=1):
    l = newlabel("SP"); d = newlabel("SD")
    L(l)
    I(f"ds_read_b128 v[{vt}:{vt+3}], v{vaddr}")
    I("s_waitcnt lgkmcnt(0)")
    I(f"v_min3_u32 v{vt}, v{vt}, v{vt+1}, v{vt+2}")
    I(f"v_min_u32 v{vt}, v{vt}, v{vt+3}")
    nop(1)
    I(f"v_readfirstlane_b32 s{sT0}, v{vt}")
    I(f"s_cmp_ge_u32 s{sT0}, {val}")
    I(f"s_cbranch_scc1 {d}")
    if sleep:
        I(f"s_sleep {sleep}")
    I(f"s_branch {l}")
    L(d)

def xreduce(v, t, op, rors, swaps=("v_permlane16_swap_b32", "v_permlane32_swap_b32")):
    for r in rors:
        nop(2)
        I(f"{op}_dpp v{v}, v{v}, v{v} row_ror:{r} row_mask:0xf bank_mask:0xf")
    for sw in swaps:
        I(f"v_mov_b32 v{t}, v{v}")
        nop(2)
        I(f"{sw} v{v}, v{t}")
        nop(1)
        I(f"{op} v{v}, v{v}, v{t}")

def xreduce2(v, w, t, u, op, rors, swaps=("v_permlane16_swap_b32", "v_permlane32_swap_b32")):
    for r in rors:
        nop(1)
        I(f"{op}_dpp v{v}, v{v}, v{v} row_ror:{r} row_mask:0xf bank_mask:0xf")
        I(f"{op}_dpp v{w}, v{w}, v{w} row_ror:{r} row_mask:0xf bank_mask:0xf")
    for sw in swaps:
        I(f"v_mov_b32 v{t}, v{v}")
        I(f"v_mov_b32 v{u}, v{w}")
        nop(1)
        I(f"{sw} v{v}, v{t}")
        I(f"{sw} v{w}, v{u}")
        nop(1)
        I(f"{op} v{v}, v{v}, v{t}")
        I(f"{op} v{w}, v{w}, v{u}")

def pick(sdst, sbase, on_slow=None):
    I(f"s_add_u32 s{sRND}, s{sRND}, 1")
    I(f"s_and_b32 s{sdst}, s{sRND}, {args.slowmask}")
    I(f"s_cmp_eq_u32 s{sdst}, 0")
    if on_slow is not None:
        f = newlabel("PF")
        I(f"s_cbranch_scc0 {f}")
        on_slow()
        I(f"s_cmp_eq_u32 0, 0")
        L(f)
    I(f"s_cselect_b32 s{sdst}, 0, {FAST}")
    I(f"s_add_u32 s{sdst}, s{sdst}, s{sbase}")

def fast_store(nn, data, vaddr, soff, stmp):
    I(f"s_add_u32 s{stmp}, s{soff}, {FAST}")
    I(f"buffer_store_dwordx{nn} {data}, v{vaddr}, {S4('h')}, s{stmp} offen")
def slow_store(nn, data, vaddr, soff):
    I(f"buffer_store_dwordx{nn} {data}, v{vaddr}, {S4('h')}, s{soff} offen sc1")

def pub_store(nn, data, vaddr, soff, stmp):
    f = newlabel("PS"); d = newlabel("PD")
    I(f"s_add_u32 s{stmp}, s{soff}, s{sFOFF}")
    I(f"s_cmp_eq_u32 s{sFOFF}, 0")
    I(f"s_cbranch_scc1 {f}")
    I(f"buffer_store_dwordx{nn} {data}, v{vaddr}, {S4('h')}, s{stmp} offen")
    I(f"s_branch {d}")
    L(f)
    I(f"buffer_store_dwordx{nn} {data}, v{vaddr}, {S4('h')}, s{stmp} offen sc1")
    L(d)

def tagmask(regs):
    I(f"v_cmp_eq_u64 vcc, s[{sN0}:{sN1}], v[{regs[0]+2}:{regs[0]+3}]")
    for r in regs[1:]:
        I(f"v_cmp_eq_u64 s[{sX0+4}:{sX0+5}], s[{sN0}:{sN1}], v[{r+2}:{r+3}]")
        I(f"s_and_b64 vcc, vcc, s[{sX0+4}:{sX0+5}]")

def tagcheck(regs, loop, done):
    tagmask(regs)
    I(f"s_sub_u32 s{sSPIN}, s{sSPIN}, 1")
    I(f"s_cbranch_scc1 {done}")
    I("s_cmp_eq_u64 vcc, exec")
    I(f"s_cbranch_scc0 {loop}")

A(f"; @launch grid=(256,1,1) block=(512,1,1) lds={LDS_TOTAL}")
A('.amdgcn_target "amdgcn-amd-amdhsa--gfx950"')
A(".text")
A(f".globl {NAME}")
A(".p2align 8")
A(f".type {NAME},@function")
L(NAME)
I("s_cmp_ge_u32 s2, 256")
I("s_cbranch_scc1 L_END")
if args.dbgstamps:
    I("s_memrealtime s[96:97]")
I("s_load_dwordx16 s[16:31], s[0:1], 0")
I("s_load_dwordx8 s[32:39], s[0:1], 64")
I("s_load_dwordx4 s[40:43], s[0:1], 96")
I("v_lshrrev_b32 v2, 6, v0")
I("v_and_b32 v1, 63, v0")
I(f"s_and_b32 s{sH}, s2, 7")
I(f"v_readfirstlane_b32 s{sWAVE}, v2")
I(f"s_lshr_b32 s{sJ}, s2, 3")
if not args.nopf:
    I("s_getpc_b64 s[92:93]")
    L("L_PC")
    I(f"s_lshl_b32 s{sT0}, s{sJ}, 3")
    I(f"s_add_u32 s{sT0}, s{sT0}, s{sWAVE}")
    I(f"s_mul_i32 s{sT1}, s{sT0}, 0x1556")
    I(f"s_lshr_b32 s{sT1}, s{sT1}, 16")
    I(f"s_mul_i32 s{sT1}, s{sT1}, 12")
    I(f"s_sub_u32 s{sT0}, s{sT0}, s{sT1}")
    I(f"s_lshl_b32 s{sT0}, s{sT0}, 10")
    I(f"v_lshl_add_u32 v254, v1, 4, s{sT0}")
    I(f"v_min_u32 v254, CODE_BYTES_AFTER_PC-16, v254")
    I("global_load_dwordx4 v[248:251], v254, s[92:93]")
I(f"s_lshr_b32 s{sHH}, s{sJ}, 4")
I(f"s_and_b32 s{sRQ}, s{sJ}, 3")
I(f"s_lshr_b32 s{sA}, s{sJ}, 2")
I(f"s_lshl_b32 s{sA}, s{sA}, 3")
I(f"s_add_u32 s{sA}, s{sA}, s{sH}")
I(f"s_cmp_lt_u32 s{sA}, 28")
I(f"s_cselect_b32 s{sFFN}, 1, 0")
I(f"s_cselect_b32 s{sA}, s{sA}, 0")
if STAMPS:
    I(f"s_lshl_b32 s{sT0}, s2, 3")
    I(f"s_add_u32 s{sT0}, s{sT0}, s{sWAVE}")
    I(f"s_lshl_b32 s{sT0}, s{sT0}, 7")
    I(f"s_add_u32 s{sT0}, s{sT0}, {WS_STAMP}")
    I(f"v_mov_b32 v253, s{sT0}")
I(f"s_cmp_lt_u32 s{sWAVE}, 4")
I("s_cbranch_scc1 L_CONS")

vLANE = 1
vG4 = 3
vN = 4
vMISC = 5
vPROG = 6

sL = sX0
I(f"s_sub_u32 s{sL}, s{sWAVE}, 4")
I(f"v_lshrrev_b32 v6, 3, v{vLANE}")
I("v_bfe_u32 v7, v6, 1, 2")
I("v_lshlrev_b32 v7, 1, v7")
I(f"v_and_b32 v11, 7, v{vLANE}")
I("v_xor_b32 v11, v11, v7")
I("v_lshlrev_b32 v11, 4, v11")
I(f"s_lshl_b32 s{sT0}, s{sL}, 3")
I(f"v_add_u32 v6, s{sT0}, v6")
I("v_lshl_add_u32 v7, v6, 13, v11")
I("v_mul_u32_u24 v10, 3584, v6")
I("v_add_u32 v10, v10, v11")
I(f"v_lshrrev_b32 v13, 5, v{vLANE}")
I("v_lshlrev_b32 v8, 9, v13")
I(f"v_and_b32 v9, 31, v{vLANE}")
I("v_lshl_add_u32 v8, v9, 4, v8")
I(f"s_lshl_b32 s{sT0}, s{sL}, 1")
I(f"v_add_u32 v13, s{sT0}, v13")
I("v_lshlrev_b32 v13, 5, v13")
I("v_xor_b32 v9, v8, v13")
I(f"s_lshl_b32 s{sT0}, s{sL}, 4")
I(f"v_xor_b32 v8, s{sT0}, v8")
I(f"v_lshlrev_b32 v11, 4, v{vLANE}")
I(f"s_lshl_b32 s{sT0}, s{sL}, 2")
I(f"s_add_u32 s{sT0}, s{sT0}, {R_F}")
I(f"v_add_u32 v12, s{sT0}, v11")
I(f"v_mov_b32 v{vMISC}, {R_M}")
sLK, sLV, sLW, sLO, sGO, sI3, sROT = sX0+1, sX0+2, sX0+3, sX0+4, sX0+5, sX0+6, sX0+7
I(f"s_lshl_b32 s{sLK}, s{sL}, 10")
I(f"s_add_u32 s{sLV}, s{sLK}, {R_V}")
I(f"s_add_u32 s{sLW}, s{sLK}, {R_W}")
I(f"s_mul_i32 s{sLO}, s{sL}, {4*PITCH}")
I(f"s_mul_i32 s{sGO}, s{sL}, {4*896}")
I(f"s_cmp_ge_u32 s{sL}, 2")
I(f"s_cselect_b32 s{sI3}, 2, 3")
I(f"s_mul_i32 s{sROT}, s2, {args.rotmul}")
I(f"s_add_u32 s{sROT}, s{sROT}, s{sL}")
I(f"s_lshl_b32 s{sROT}, s{sROT}, 10")
I(f"s_mul_i32 s{sT2}, s{sRQ}, {112*8192}")
I(f"s_lshl_b32 s{sT1}, s{sH}, 10")
I(f"s_add_u32 s{sT2}, s{sT2}, s{sT1}")
I(f"s_lshr_b32 s{sT1}, s{sJ}, 2")
I(f"s_lshl_b32 s{sT1}, s{sT1}, 7")
I(f"s_add_u32 s{sT2}, s{sT2}, s{sT1}")
I(f"s_sub_u32 s{sT1}, {448*8192}, s{sT2}")
I(f"s_lshl_b32 s{sT3}, s{sH}, 25")
I(f"s_add_u32 s{sT3}, s{sT3}, 0x1E00000")
I(f"s_lshl_b32 s{sT0}, s{sJ}, 16")
I(f"s_add_u32 s{sT3}, s{sT3}, s{sT0}")
I("s_waitcnt lgkmcnt(0)")
build_srd("f", 22, sT2, f"s{sT1}")
def issue_w(i, srdn, vaddr, rowbytes):
    if i == 3:
        I(f"s_lshl_b32 s{sT0}, s{sI3}, 12")
        I(f"s_add_u32 m0, s{sLW}, s{sT0}")
        I(f"s_mul_i32 s{sT0}, s{sI3}, {32*rowbytes}")
    else:
        I(f"s_add_u32 m0, s{sLW}, {i*4096}")
        I(f"s_mov_b32 s{sT0}, {i*32*rowbytes}")
    I(f"buffer_load_dwordx4 v{vaddr}, {S4(srdn)}, s{sT0} offen nt lds")
for i in range(3):
    issue_w(i, "f", 7, 8192)
build_srd("g", 16, None, 896)
I(f"s_cmp_eq_u32 s{sL}, 3")
I("s_cbranch_scc1 L_LX")
issue_w(3, "f", 7, 8192)
I("s_branch L_LX2")
L("L_LX")
I(f"s_mov_b32 m0, {R_X}")
I("s_nop 0")
I(f"buffer_load_dwordx4 v11, {S4('g')}, 0 offen lds")
L("L_LX2")
build_srd("a", 18, sT3, 65536)
def issue_k(i):
    I(f"v_xor_b32 v13, {(4*(i & 3)) << 4}, v8")
    I(f"s_add_u32 m0, s{sLK}, {i*4096}")
    I(f"s_add_u32 s{sT0}, s{sROT}, {i*4096}")
    I(f"s_and_b32 s{sT0}, s{sT0}, 0xffff")
    I(f"buffer_load_dwordx4 v13, {S4('a')}, s{sT0} offen nt lds")
NPRE = max(0, W - 4)
assert order[0] == "K"
for i in range(NPRE):
    issue_k(i)
build_srd("b", 20, sT3, 65536)
I(f"s_mul_i32 s{sT1}, s{sRQ}, {112*3584}")
I(f"s_lshl_b32 s{sT2}, s{sA}, 7")
I(f"s_add_u32 s{sT1}, s{sT1}, s{sT2}")
I(f"s_sub_u32 s{sT2}, {448*3584}, s{sT1}")
build_srd("c", 28, sT1, f"s{sT2}")
I(f"s_lshl_b32 s{sT1}, s{sH}, 9")
I(f"s_lshl_b32 s{sT2}, s{sJ}, 4")
I(f"s_add_u32 s{sT1}, s{sT1}, s{sT2}")
I(f"s_mul_i32 s{sT1}, s{sT1}, 896")
build_srd("d", 24, sT1, 16*896)
I(f"s_lshl_b32 s{sT1}, s{sA}, 2")
I(f"s_add_u32 s{sT1}, s{sT1}, s{sRQ}")
I(f"s_mul_i32 s{sT1}, s{sT1}, {16*896}")
build_srd("e", 32, sT1, 16*896)
build_srd("h", 42, None, hex(WS_RANGE))
stamp(0)
I("s_barrier")

def loader_stream(ffn, start_p, stop_kind=None):
    pass

def make_seq(ffn):
    seq = [("WQ", i) for i in range(4)]
    for o in order:
        if o == "K": seq += [("K", i) for i in range(16)]
        elif o == "V": seq += [("V", i) for i in range(16)]
        elif o == "Va": seq += [("V", i) for i in range(12)]
        elif o == "Vb": seq += [("V", i) for i in range(12, 16)]
        elif o == "W1" and ffn: seq += [("W1", i) for i in range(4)]
        elif o == "WO": seq += [("WO", i) for i in range(4)]
        elif o == "W2" and ffn: seq += [("W2", i) for i in range(4)]
    return seq

def emit_stream(seq, p0, p1, st, W=W):
    stages = st["stages"]
    def flag(s_):
        I(f"v_mov_b32 v14, {s_}")
        I("ds_write_b32 v12, v14")
        if s_ <= 13:
            stamp(s_)
    for p in range(p0, p1):
        k, i = seq[p]
        if p >= W:
            I(f"s_waitcnt vmcnt({W-1})")
            landed = p - W
            done = None
            while st["si"] < len(stages) and stages[st["si"]][1] <= landed:
                done = stages[st["si"]][0]; st["si"] += 1
            if done is not None:
                flag(done)
        want_mask = k in ("WO", "W2")
        if want_mask and not st["qk_waited"]:
            spin_lds_ge(vMISC, M_QKDONE - R_M, 4, 15)
            st["qk_waited"] = True
        if want_mask != st["masked"]:
            I("s_mov_b32 exec_hi, 0x00ffffff" if want_mask else "s_mov_b32 exec_hi, -1")
            st["masked"] = want_mask
        if k == "K":
            issue_k(i)
        elif k == "W1":
            if i == 0:
                spin_lds_ge(vMISC, M_QTASK - R_M, 4, 15)
            issue_w(i, "c", 10, 3584)
        elif k == "V":
            I(f"s_add_u32 m0, s{sLV}, {i*4096}")
            I(f"s_add_u32 s{sT0}, s{sROT}, {i*4096}")
            I(f"s_and_b32 s{sT0}, s{sT0}, 0xffff")
            I(f"buffer_load_dwordx4 v9, {S4('b')}, s{sT0} offen nt lds")
        elif k == "WO":
            I(f"s_add_u32 m0, s{sLO}, {i*PITCH}")
            I(f"s_add_u32 s{sT0}, s{sGO}, {i*896}")
            I(f"buffer_load_dwordx4 v11, {S4('d')}, s{sT0} offen nt lds")
        elif k == "W2":
            I(f"s_add_u32 m0, s{sLO}, {(16+i)*PITCH}")
            I(f"s_add_u32 s{sT0}, s{sGO}, {i*896}")
            I(f"buffer_load_dwordx4 v11, {S4('e')}, s{sT0} offen nt lds")
    if p1 == len(seq):
        nn = len(seq)
        while st["si"] < len(stages):
            s_, p = stages[st["si"]]
            I(f"s_waitcnt vmcnt({nn-1-p})")
            flag(s_)
            st["si"] += 1
        stamp_flush()
        I("s_endpgm")

def stages_of(seq):
    last = {}
    for p, (k, i) in enumerate(seq):
        key = f"{k}{i//4}" if k in ("K", "V") else k
        last[stage[key]] = p
    return sorted(last.items(), key=lambda x: x[1])

seqF, seqN = make_seq(True), make_seq(False)
common = 0
while common < len(seqN) and seqF[common] == seqN[common]:
    common += 1
WF = args.WF or W
assert WF >= W
if WF != W:
    common = 4 + NPRE
stF = dict(si=0, masked=False, qk_waited=False, stages=stages_of(seqF))
emit_stream(seqF, 4 + NPRE, common, stF)
stN = dict(si=stF["si"], masked=stF["masked"], qk_waited=stF["qk_waited"], stages=stages_of(seqN))
I(f"s_cmp_eq_u32 s{sFFN}, 0")
I("s_cbranch_scc1 L_LOADER_N")
emit_stream(seqF, common, len(seqF), stF, WF)
L("L_LOADER_N")
emit_stream(seqN, common, len(seqN), stN)

L("L_CONS")
vGA, vGB = 128, 129
vB1, vB2 = 130, 131
I(f"v_lshrrev_b32 v{vG4}, 4, v{vLANE}")
I(f"v_and_b32 v{vN}, 15, v{vLANE}")
I(f"v_mov_b32 v{vMISC}, {R_M}")
I(f"v_mov_b32 v{vPROG}, {R_F}")
I(f"s_mov_b32 s{sSPIN}, {args.spin}")
I(f"s_mov_b32 s{sRND}, 0")
I(f"s_mov_b32 s{sWOK}, 0")
I(f"s_mov_b32 s{sHOK}, 0")
I("s_waitcnt lgkmcnt(0)")
I(f"s_add_u32 s94, s42, {WS_E}")
I("s_addc_u32 s95, s43, 0")
I(f"s_load_dwordx2 s[{sN0}:{sN1}], s[94:95], 0")
build_srd("h", 42, None, hex(WS_RANGE))
build_srd("a", 16, None, 896)
build_srd("c", 36, None, 896)
build_srd("d", 30, None, 3584)
build_srd("e", 34, None, 896)
build_srd("f", 38, None, 896)
build_srd("g", 40, None, 256)
if args.dbgstamps:
    I(f"s_mov_b32 s{SRD['b']}, s96")
stamp(0)
I(f"s_cmp_lg_u32 s{sWAVE}, 2")
I("s_cbranch_scc1 L_NOG")
I(f"v_lshlrev_b32 v8, 4, v{vLANE}")
I(f"buffer_load_dwordx4 v[16:19], v8, {S4('a')}, 0 offen")
I(f"buffer_load_dwordx4 v[20:23], v8, {S4('c')}, 0 offen")
L("L_NOG")
I(f"v_and_b32 v14, 1, v{vLANE}")
I(f"v_lshl_add_u32 v14, v{vG4}, 1, v14")
I("v_lshlrev_b32 v14, 2, v14")
I(f"s_lshl_b32 s{sT1}, s{sA}, 7")
I(f"s_lshl_b32 s{sT0}, s{sRQ}, 5")
I(f"s_add_u32 s{sT0}, s{sT0}, s{sT1}")
I(f"buffer_load_dword v{vB1}, v14, {S4('d')}, s{sT0} offen")
I(f"s_lshl_b32 s{sT0}, s{sJ}, 5")
I(f"v_add_u32 v133, s{sT0}, v14")
I(f"buffer_load_dword v{vB2}, v133, {S4('e')}, 0 offen")
I(f"s_cmp_lg_u32 s{sWAVE}, 3")
I("s_cbranch_scc1 L_NOZ")
I("v_mov_b32 v8, 0")
I("v_mov_b32 v9, 0")
I("v_mov_b32 v10, 0")
I("v_mov_b32 v11, 0")
I(f"v_lshlrev_b32 v12, 4, v{vLANE}")
I(f"v_add_u32 v12, {R_F}, v12")
I("ds_write_b128 v12, v[8:11]")
I("s_mov_b32 exec_hi, 0")
I("ds_write_b128 v12, v[8:11] offset:1024")
I("s_mov_b64 exec, -1")
L("L_NOZ")
I("s_waitcnt lgkmcnt(0)")
I(f"s_add_u32 s{sN0}, s{sN0}, 0x7f4a7c15")
I(f"s_andn2_b32 s{sN0}, s{sN0}, 15")
I(f"s_xor_b32 s{sN1}, s{sN1}, 0x9e3779b9")
I(f"s_not_b32 s{sT0}, s{sN0}")
I(f"v_mov_b32 v204, s{sT0}")
I(f"v_mov_b32 v205, s{sT0}")
I(f"v_mov_b32 v206, s{sT0}")
I(f"v_mov_b32 v207, s{sT0}")
I(f"v_lshlrev_b32 v8, 4, v{vLANE}")
I(f"s_lshl_b32 s{sT3}, s{sH}, 5")
I(f"s_add_u32 s{sT3}, s{sT3}, s{sJ}")
I(f"s_lshl_b32 s{sT0}, s{sH}, 14")
I(f"s_lshl_b32 s{sT1}, s{sRQ}, 12")
I(f"s_add_u32 s{sT0}, s{sT0}, s{sT1}")
I(f"s_lshr_b32 s{sT1}, s{sJ}, 2")
I(f"s_lshl_b32 s{sT1}, s{sT1}, 9")
I(f"s_add_u32 s{sT0}, s{sT0}, s{sT1}")
I(f"s_lshl_b32 s{sT2}, s{sWAVE}, 7")
I(f"s_add_u32 s{sT0}, s{sT0}, s{sT2}")
I(f"s_add_u32 s{sT0}, s{sT0}, {WS_Q + FAST}")
I("s_mov_b64 exec, 0xff")
I(f"buffer_store_dwordx4 v[204:207], v8, {S4('h')}, s{sT0} offen")
I(f"s_cmp_eq_u32 s{sFFN}, 0")
I("s_cbranch_scc1 L_C0B")
I(f"s_lshl_b32 s{sT0}, s{sA}, 11")
I(f"s_lshl_b32 s{sT1}, s{sRQ}, 9")
I(f"s_add_u32 s{sT0}, s{sT0}, s{sT1}")
I(f"s_add_u32 s{sT0}, s{sT0}, s{sT2}")
I(f"s_add_u32 s{sT0}, s{sT0}, {WS_H + FAST}")
I(f"buffer_store_dwordx4 v[204:207], v8, {S4('h')}, s{sT0} offen")
L("L_C0B")
I("s_mov_b64 exec, -1")
I(f"s_cmp_eq_u32 s{sWAVE}, 1")
I("s_cbranch_scc1 L_C1")
I(f"s_cmp_eq_u32 s{sWAVE}, 2")
I("s_cbranch_scc1 L_C2")
I(f"s_cmp_eq_u32 s{sWAVE}, 3")
I("s_cbranch_scc1 L_C3")
I("s_mov_b32 exec_hi, 0")
I(f"s_lshl_b32 s{sT0}, s{sT3}, 9")
I(f"s_add_u32 s{sT0}, s{sT0}, {WS_T + FAST}")
I(f"buffer_store_dwordx4 v[204:207], v8, {S4('h')}, s{sT0} offen")
I("s_mov_b64 exec, -1")
I("s_barrier")
I("s_branch L_CQ")

L("L_C1")
I(f"s_lshl_b32 s{sT0}, s{sT3}, 12")
I(f"s_add_u32 s{sT0}, s{sT0}, {WS_O + FAST}")
for r in range(4):
    I(f"buffer_store_dwordx4 v[204:207], v8, {S4('h')}, s{sT0} offen offset:{r*1024}")
I("s_barrier")
I("s_branch L_CQ")

L("L_C2")
I("s_barrier")
I("s_waitcnt vmcnt(3)")
I("v_mov_b32 v9, 0")
for k in range(4):
    I(f"v_lshlrev_b32 v10, 16, v{16+k}")
    I(f"v_lshlrev_b32 v11, 16, v{20+k}")
    I(f"v_and_b32 v12, 0xffff0000, v{16+k}")
    I(f"v_and_b32 v13, 0xffff0000, v{20+k}")
    I("v_mul_f32 v10, v10, v11")
    I("v_mul_f32 v12, v12, v13")
    I("v_cvt_pk_bf16_f32 v10, v10, v12")
    I("v_lshlrev_b32 v11, 16, v10")
    I("v_and_b32 v12, 0xffff0000, v10")
    I("v_add_f32 v9, v9, v11")
    I("v_add_f32 v9, v9, v12")
xreduce(9, 10, "v_add_f32", (1, 2, 4, 8))
I("v_cvt_pk_bf16_f32 v9, v9, v9")
I("v_lshlrev_b32 v9, 16, v9")
I("v_mul_f32 v9, 0xbfb8aa3b, v9")
I("v_exp_f32 v9, v9")
nop(1)
I("v_add_f32 v9, 1.0, v9")
I("v_rcp_f32 v9, v9")
nop(1)
I("v_cvt_pk_bf16_f32 v9, v9, v9")
I("v_lshlrev_b32 v10, 16, v9")
I("v_sub_f32 v11, 1.0, v10")
I("v_cvt_pk_bf16_f32 v11, v11, v11")
I("v_lshlrev_b32 v11, 16, v11")
I("s_mov_b64 exec, 1")
I(f"ds_write_b64 v{vMISC}, v[10:11] offset:{M_G - R_M}")
I("s_mov_b64 exec, -1")
I("s_branch L_CQ")

L("L_C3")
I(f"s_lshl_b32 s{sT0}, s{sT3}, 12")
I(f"s_add_u32 s{sT0}, s{sT0}, {WS_R + FAST}")
for r in range(4):
    I(f"buffer_store_dwordx4 v[204:207], v8, {S4('h')}, s{sT0} offen offset:{r*1024}")
I("s_barrier")

def gemv_tile(acc, A0, B0):
    for k in range(3):
        I(f"ds_read2_b64 v[{A0+4*k}:{A0+4*k+3}], v{vGA} offset0:{k*8} offset1:{k*8+4}")
        I(f"ds_read_b64_tr_b16 v[{B0+4*k}:{B0+4*k+1}], v{vGB} offset:{k*4096}")
        I(f"ds_read_b64_tr_b16 v[{B0+4*k+2}:{B0+4*k+3}], v{vGB} offset:{k*4096+2048}")
    I(f"ds_read_b64 v[{A0+12}:{A0+13}], v{vGA} offset:192")
    I(f"ds_read_b64_tr_b16 v[{B0+12}:{B0+13}], v{vGB} offset:{3*4096}")
    for k in range(3):
        I(f"s_waitcnt lgkmcnt({8-3*k})")
        c = "0" if k == 0 else f"v[{acc}:{acc+3}]"
        I(f"v_mfma_f32_16x16x32_bf16 v[{acc}:{acc+3}], v[{A0+4*k}:{A0+4*k+3}], v[{B0+4*k}:{B0+4*k+3}], {c}")
    I("s_waitcnt lgkmcnt(0)")
    I(f"v_mfma_f32_16x16x16_bf16 v[{acc+4}:{acc+7}], v[{A0+12}:{A0+13}], v[{B0+12}:{B0+13}], 0")

def pairs16(acc, d):
    nop(8)
    I(f"v_add_f32 v{d}, v{acc}, v{acc+4}")
    nop(2)
    I(f"v_mov_b32_dpp v{d+1}, v{d} quad_perm:[1,0,3,2] row_mask:0xf bank_mask:0xf")

L("L_CQ")
if args.lonly:
    I("v_mov_b32 v9, 1")
    I("s_mov_b64 exec, 1")
    I(f"ds_add_u32 v{vMISC}, v9 offset:{M_QTASK - R_M}")
    I(f"ds_add_u32 v{vMISC}, v9 offset:{M_QKDONE - R_M}")
    I("s_branch L_CEND")
I(f"s_mul_i32 s{sT0}, s{sRQ}, 224")
I(f"s_add_u32 s{sT0}, s{sT0}, {R_X}")
I(f"v_lshlrev_b32 v{vGA}, 3, v{vG4}")
I(f"v_add_u32 v{vGA}, s{sT0}, v{vGA}")
I(f"v_bfe_u32 v10, v{vLANE}, 2, 2")
I(f"v_lshl_add_u32 v10, v{vG4}, 2, v10")
I("v_bfe_u32 v11, v10, 1, 2")
I(f"v_xor_b32 v11, s{sWAVE}, v11")
I("v_lshlrev_b32 v11, 5, v11")
I("v_lshl_add_u32 v11, v10, 7, v11")
I(f"v_and_b32 v10, 3, v{vLANE}")
I("v_lshl_add_u32 v11, v10, 3, v11")
I(f"v_add_u32 v{vGB}, {R_W}, v11")
I(f"s_lshl_b32 s{sT3}, s{sH}, 14")
I(f"s_lshl_b32 s{sT1}, s{sRQ}, 12")
I(f"s_add_u32 s{sT3}, s{sT3}, s{sT1}")
I(f"s_lshr_b32 s{sT1}, s{sJ}, 2")
I(f"s_lshl_b32 s{sT1}, s{sT1}, 9")
I(f"s_add_u32 s{sT3}, s{sT3}, s{sT1}")
I(f"s_lshl_b32 s{sT1}, s{sWAVE}, 7")
I(f"s_add_u32 s{sT3}, s{sT3}, s{sT1}")
I(f"s_add_u32 s{sT3}, s{sT3}, {WS_Q}")
I(f"v_lshlrev_b32 v132, 3, v{vLANE}")
spin_prog_all(vPROG, stage["WQ"], 136, sleep=0)
stamp(1)
I(f"s_getreg_b32 s{sWOK}, hwreg(HW_REG_XCC_ID, 0, 4)")
I(f"s_or_b32 s{sWOK}, s{sWOK}, s{sN0}")
I(f"v_mov_b32 v122, s{sWOK}")
I(f"v_mov_b32 v123, s{sN1}")
gemv_tile(112, 16, 32)
I("v_mov_b32 v9, 1")
I("s_mov_b64 exec, 1")
I(f"ds_add_u32 v{vMISC}, v9 offset:{M_QTASK - R_M}")
I("s_mov_b64 exec, -1")
pairs16(112, 120)
I("s_waitcnt vmcnt(0)")
I("s_mov_b64 exec, 0x5555")
fast_store(4, "v[120:123]", 132, sT3, sT1)
I("s_mov_b64 exec, -1")
stamp(2)
def q_slow():
    I("s_mov_b64 exec, 0x5555")
    slow_store(4, "v[120:123]", 132, sT3)
    I("s_mov_b64 exec, -1")
I(f"v_lshlrev_b32 v8, 4, v{vLANE}")
I(f"s_lshl_b32 s{sT1}, s{sWAVE}, 10")
I(f"s_lshl_b32 s{sT2}, s{sH}, 14")
I(f"s_add_u32 s{sT2}, s{sT2}, s{sT1}")
I(f"s_add_u32 s{sT2}, s{sT2}, {WS_Q}")
I(f"v_add_u32 v9, 4096, v8")
I(f"v_add_u32 v10, 8192, v8")
I(f"v_add_u32 v11, 12288, v8")
if args.noqpoll:
    I("s_branch L_QPOLL_DONE")
L("L_QPOLL")
I(f"s_sleep {args.qsleep}")
pick(sT1, sT2, q_slow)
for r in range(4):
    I(f"buffer_load_dwordx4 v[{16+4*r}:{19+4*r}], v{8+r}, {S4('h')}, s{sT1} offen sc1")
I("s_waitcnt vmcnt(0)")
for r in range(4):
    I(f"v_xor_b32 v{32+r}, s{sWOK}, v{18+4*r}")
    I(f"v_and_b32 v{18+4*r}, -16, v{18+4*r}")
tagcheck([16, 20, 24, 28], "L_QPOLL", "L_QPOLL_DONE")
L("L_QPOLL_DONE")
q_slow()
I("v_or3_b32 v32, v32, v33, v34")
I("v_or_b32 v32, v32, v35")
I("v_cmp_ne_u32 vcc, 0, v32")
I(f"s_mov_b32 s{sWOK}, 0")
I("s_cmp_lg_u64 vcc, 0")
I(f"s_cselect_b32 s{sT0}, 1, 0")
I(f"v_mov_b32 v33, s{sT0}")
I("s_mov_b64 exec, 1")
I(f"ds_add_u32 v{vMISC}, v33 offset:{M_REMOTE_OFF}")
I("s_mov_b64 exec, -1")
I(f"v_mov_b32 v122, s{sN0}")
I("v_add_f32 v16, v16, v20")
I("v_add_f32 v17, v17, v21")
I("v_add_f32 v24, v24, v28")
I("v_add_f32 v25, v25, v29")
I("v_add_f32 v16, v16, v24")
I("v_add_f32 v17, v17, v25")
I("v_cvt_pk_bf16_f32 v16, v16, v17")
I(f"s_lshl_b32 s{sT1}, s{sWAVE}, 8")
I(f"s_add_u32 s{sT1}, s{sT1}, {R_Q}")
I(f"v_lshlrev_b32 v9, 2, v{vLANE}")
I(f"v_add_u32 v9, s{sT1}, v9")
I("v_mov_b32 v10, 1")
I("ds_write_b32 v9, v16")
I("s_waitcnt lgkmcnt(0)")
I("s_mov_b64 exec, 1")
I(f"ds_add_u32 v{vMISC}, v10 offset:{M_QCNT - R_M}")
I("s_mov_b64 exec, -1")
stamp(3)
qA = 40
kB = 140
acc0, acc1 = 112, 116
I(f"v_and_b32 v8, 1, v{vLANE}")
I("v_lshlrev_b32 v8, 9, v8")
I(f"v_lshl_add_u32 v8, v{vG4}, 4, v8")
I(f"v_add_u32 v8, {R_Q}, v8")
I(f"v_and_b32 v9, 3, v{vN}")
I(f"v_xor_b32 v9, v{vG4}, v9")
I(f"v_and_b32 v10, 12, v{vN}")
I("v_or_b32 v9, v9, v10")
I("v_lshlrev_b32 v9, 4, v9")
I(f"v_lshl_add_u32 v9, v{vN}, 10, v9")
I(f"s_lshl_b32 s{sT0}, s{sWAVE}, 14")
I(f"v_add_u32 v9, s{sT0}, v9")
for q in range(1, 4):
    I(f"v_xor_b32 v{9+q}, {q*64}, v9")
I(f"s_add_u32 s{sT3}, s{sWAVE}, {stage['K0']}")
spin_prog_all(vPROG, f"s{sT3}", 136)
for t in range(2):
    for i in range(8):
        r = kB + (t*8+i)*4
        I(f"ds_read_b128 v[{r}:{r+3}], v{9+(i&3)} offset:{t*512 + (i>>2)*256}")
spin_lds_ge(vMISC, M_QCNT - R_M, 4, 13, sleep=0)
stamp(4)
I(f"ds_read_b32 v14, v{vMISC} offset:{M_REMOTE_OFF}")
for i in range(8):
    I(f"ds_read_b128 v[{qA+4*i}:{qA+4*i+3}], v8 offset:{i*64}")
for i in range(8):
    I(f"s_waitcnt lgkmcnt({7-i})")
    if i == 1:
        I(f"v_readfirstlane_b32 s{sFOFF}, v14")
        I(f"s_cmp_eq_u32 s{sFOFF}, 0")
        I(f"s_cselect_b32 s{sFOFF}, {FAST}, 0")
    for t in range(2):
        acc = acc0 if t == 0 else acc1
        r = kB + (t*8+i)*4
        c = "0" if i == 0 else f"v[{acc}:{acc+3}]"
        I(f"v_mfma_f32_16x16x32_bf16 v[{acc}:{acc+3}], v[{qA+4*i}:{qA+4*i+3}], v[{r}:{r+3}], {c}")
CEXP = "0x3db8aa3b"
I(f"s_mov_b32 s{sT2}, {CEXP}")
I(f"s_lshl_b32 s{sT1}, s{sWAVE}, 3")
I(f"v_mov_b32 v8, s{sT1}")
I(f"v_add_u32 v8, {M_MAX}, v8")
nop(5)
I(f"v_cvt_pk_bf16_f32 v120, v{acc0}, v{acc1}")
I(f"v_cvt_pk_bf16_f32 v121, v{acc0+1}, v{acc1+1}")
I("v_lshlrev_b32 v16, 16, v120")
I("v_and_b32 v17, 0xffff0000, v120")
I("v_lshlrev_b32 v18, 16, v121")
I("v_and_b32 v19, 0xffff0000, v121")
I("v_max_f32 v20, v16, v17")
I("v_max_f32 v21, v18, v19")
for r in (1, 2, 4, 8):
    nop(1)
    I(f"v_max_f32_dpp v20, v20, v20 row_ror:{r} row_mask:0xf bank_mask:0xf")
    I(f"v_max_f32_dpp v21, v21, v21 row_ror:{r} row_mask:0xf bank_mask:0xf")
I("v_mov_b32 v9, 1")
I("s_mov_b64 exec, 1")
I("ds_write_b64 v8, v[20:21]")
I("s_waitcnt lgkmcnt(0)")
I(f"ds_add_u32 v{vMISC}, v9 offset:{M_QKDONE - R_M}")
I("s_mov_b64 exec, -1")
spin_lds_ge(vMISC, M_QKDONE - R_M, 4, 13, sleep=0)
I(f"ds_read_b128 v[24:27], v{vMISC} offset:{M_MAX - R_M}")
I(f"ds_read_b128 v[28:31], v{vMISC} offset:{M_MAX - R_M + 16}")
I("s_waitcnt lgkmcnt(0)")
I("v_max_f32 v20, v24, v26")
I("v_max_f32 v21, v25, v27")
I("v_max3_f32 v20, v20, v28, v30")
I("v_max3_f32 v21, v21, v29, v31")
I("v_sub_f32 v16, v16, v20")
I("v_sub_f32 v17, v17, v20")
I("v_sub_f32 v18, v18, v21")
I("v_sub_f32 v19, v19, v21")
for k in range(4):
    I(f"v_mul_f32 v{16+k}, s{sT2}, v{16+k}")
for k in range(4):
    I(f"v_exp_f32 v{16+k}, v{16+k}")
nop(1)
I("v_cvt_pk_bf16_f32 v24, v16, v17")
I("v_cvt_pk_bf16_f32 v25, v18, v19")
I("v_add_f32 v22, v16, v17")
I("v_add_f32 v23, v18, v19")
I(f"s_lshl_b32 s{sT1}, s{sWAVE}, 6")
I(f"s_add_u32 s{sT1}, s{sT1}, {R_P}")
I(f"v_lshlrev_b32 v8, 2, v{vN}")
I(f"v_add_u32 v8, s{sT1}, v8")
I("s_mov_b64 exec, 0xffff")
I("ds_write_b32 v8, v24")
I("ds_write_b32 v8, v25 offset:256")
I("s_mov_b64 exec, -1")
for r in (1, 2, 4, 8):
    nop(1)
    I(f"v_add_f32_dpp v22, v22, v22 row_ror:{r} row_mask:0xf bank_mask:0xf")
    I(f"v_add_f32_dpp v23, v23, v23 row_ror:{r} row_mask:0xf bank_mask:0xf")
I("s_mov_b64 exec, 1")
I(f"ds_add_f32 v{vMISC}, v22 offset:{M_LSUM - R_M}")
I(f"ds_add_f32 v{vMISC}, v23 offset:{M_LSUM - R_M + 4}")
I("s_waitcnt lgkmcnt(0)")
I(f"ds_add_u32 v{vMISC}, v9 offset:{M_PCNT - R_M}")
I("s_mov_b64 exec, -1")
I(f"v_and_b32 v10, 1, v{vLANE}")
I("v_lshlrev_b32 v10, 8, v10")
I(f"v_lshl_add_u32 v10, v{vG4}, 3, v10")
I(f"v_add_u32 v10, {R_P}, v10")
I(f"v_bfe_u32 v11, v{vLANE}, 2, 2")
I(f"v_lshl_add_u32 v12, v{vG4}, 2, v11")
I("v_and_b32 v13, 7, v12")
I(f"s_lshl_b32 s{sT1}, s{sWAVE}, 2")
I(f"v_xor_b32 v13, s{sT1}, v13")
I("v_lshlrev_b32 v13, 5, v13")
I("v_lshl_add_u32 v13, v12, 9, v13")
I(f"v_and_b32 v14, 3, v{vLANE}")
I("v_lshl_add_u32 v13, v14, 3, v13")
I(f"v_add_u32 v32, {R_V}, v13")
for tt in range(1, 4):
    I(f"v_xor_b32 v{32+tt}, {tt*32}, v32")
I(f"v_mul_u32_u24 v134, {PITCH}, v12")
I("v_lshl_add_u32 v134, v14, 3, v134")
I(f"s_mul_i32 s{sT0}, s{sWAVE}, {7*32}")
I(f"v_add_u32 v134, s{sT0}, v134")
spin_lds_ge(vMISC, M_PCNT - R_M, 4, 13, sleep=0)
pA = 36
for s in range(4):
    I(f"ds_read2_b64 v[{pA+4*s}:{pA+4*s+3}], v10 offset0:{s*8} offset1:{s*8+4}")
I(f"ds_read_b64 v[220:221], v{vMISC} offset:{M_G - R_M}")
sk = newlabel("NOSTAT")
I(f"s_cmp_lg_u32 s{sWAVE}, 0")
I(f"s_cbranch_scc1 {sk}")
I(f"ds_read_b64 v[22:23], v{vMISC} offset:{M_LSUM - R_M}")
I(f"v_cmp_eq_u32 vcc, 1, v{vG4}")
I(f"s_lshl_b32 s{sT0}, s{sH}, 14")
I(f"s_lshl_b32 s{sT1}, s{sJ}, 4")
I(f"s_add_u32 s{sT0}, s{sT0}, s{sT1}")
I(f"s_add_u32 s{sT0}, s{sT0}, {WS_T}")
I(f"v_lshlrev_b32 v8, 9, v{vLANE}")
I("s_waitcnt lgkmcnt(0)")
I("v_cndmask_b32 v120, v20, v21, vcc")
I("v_cndmask_b32 v121, v22, v23, vcc")
I("s_mov_b32 exec_hi, 0")
pub_store(4, "v[120:123]", 8, sT0, sT1)
I("s_mov_b64 exec, -1")
L(sk)
G1, G2, G3, ODD = f"s[{sX0}:{sX0+1}]", f"s[{sMA}:{sMA+1}]", f"s[{sMB}:{sMB+1}]", f"s[{sX0+2}:{sX0+3}]"
I(f"v_cmp_eq_u32 {G2}, 2, v{vG4}")
I(f"v_cmp_eq_u32 {G3}, 3, v{vG4}")
I(f"v_cmp_eq_u32 {G1}, 1, v{vG4}")
I(f"v_and_b32 v8, 1, v{vLANE}")
I(f"v_cmp_eq_u32 {ODD}, 1, v8")
I(f"v_lshl_add_u32 v135, v8, 4, v{vG4}")
I("v_lshlrev_b32 v135, 12, v135")
I(f"v_lshrrev_b32 v10, 1, v{vN}")
I("v_lshl_add_u32 v135, v10, 4, v135")
I(f"s_lshl_b32 s{sOOFF}, s{sH}, 5")
I(f"s_lshl_b32 s{sT1}, s{sWAVE}, 2")
I(f"s_add_u32 s{sOOFF}, s{sOOFF}, s{sT1}")
I(f"s_lshl_b32 s{sOOFF}, s{sOOFF}, 12")
I(f"s_lshl_b32 s{sT1}, s{sJ}, 7")
I(f"s_add_u32 s{sOOFF}, s{sOOFF}, s{sT1}")
I(f"s_add_u32 s{sOOFF}, s{sOOFF}, {WS_O}")
stamp(5)
W1LATE = stage['W1'] > stage['V3']
def ffn1_block():
    I(f"s_cmp_eq_u32 s{sFFN}, 0")
    I("s_cbranch_scc1 L_NOFFN1")
    I(f"s_lshl_b32 s{sT2}, s{sA}, 11")
    I(f"s_lshl_b32 s{sT1}, s{sRQ}, 9")
    I(f"s_add_u32 s{sT2}, s{sT2}, s{sT1}")
    I(f"s_lshl_b32 s{sT1}, s{sWAVE}, 7")
    I(f"s_add_u32 s{sT2}, s{sT2}, s{sT1}")
    I(f"s_add_u32 s{sT2}, s{sT2}, {WS_H}")
    spin_prog_all(vPROG, stage["W1"], 136)
    gemv_tile(112, 140, 156)
    pairs16(112, 120)
    I("s_mov_b64 exec, 0x5555")
    pub_store(4, "v[120:123]", 132, sT2, sT1)
    I("s_mov_b64 exec, -1")
    L("L_NOFFN1")


if not W1LATE:
    ffn1_block()
sTS, sHS = 98, 99
I(f"s_lshl_b32 s{sTS}, s{sH}, 5")
I(f"s_add_u32 s{sTS}, s{sTS}, s{sJ}")
I(f"s_lshl_b32 s{sOG}, s{sTS}, 12")
I(f"s_lshl_b32 s{sTS}, s{sTS}, 9")
I(f"s_add_u32 s{sTS}, s{sTS}, {WS_T}")
I(f"s_add_u32 s{sTS}, s{sTS}, s{sFOFF}")
I(f"s_add_u32 s{sOG}, s{sOG}, s{sFOFF}")
I(f"v_bfe_u32 v14, v{vLANE}, 1, 3")
I("v_lshlrev_b32 v192, 4, v14")
I(f"v_and_b32 v15, 1, v{vLANE}")
I(f"v_lshl_add_u32 v15, v{vG4}, 1, v15")
I("v_lshlrev_b32 v15, 4, v15")
I("v_lshl_add_u32 v197, v14, 7, v15")
I(f"s_lshl_b32 s{sHS}, s{sA}, 11")
I(f"s_lshl_b32 s{sT1}, s{sRQ}, 7")
I(f"s_add_u32 s{sHS}, s{sHS}, s{sT1}")
I(f"s_add_u32 s{sHS}, s{sHS}, {WS_H}")
I(f"s_add_u32 s{sHS}, s{sHS}, s{sFOFF}")
I("v_and_b32 v14, 3, v14")
I("v_lshl_add_u32 v193, v14, 9, v15")
I(f"v_and_b32 v8, 1, v{vLANE}")
I(f"v_lshl_add_u32 v222, v8, 2, v{vG4}")
I("v_lshlrev_b32 v222, 12, v222")
I(f"v_lshrrev_b32 v10, 1, v{vN}")
I("v_lshl_add_u32 v222, v10, 4, v222")
I(f"s_mul_i32 s{sRP}, s{sWAVE}, 7")
I(f"s_lshl_b32 s{sT1}, s{sH}, 5")
I(f"s_add_u32 s{sRP}, s{sRP}, s{sT1}")
I(f"s_lshl_b32 s{sRP}, s{sRP}, 12")
I(f"s_lshl_b32 s{sT1}, s{sJ}, 7")
I(f"s_add_u32 s{sRP}, s{sRP}, s{sT1}")
I(f"s_add_u32 s{sRP}, s{sRP}, {WS_R}")
I(f"v_mov_b32 v126, s{sN0}")
I(f"v_mov_b32 v127, s{sN1}")
I(f"v_mov_b32 v202, s{sN0}")
I(f"v_mov_b32 v203, s{sN1}")
I(f"s_mov_b32 s{sDW}, 0")
ST = [172, 176, 180, 184]
HR = 188
def ror1(v, op, rors):
    for r in rors:
        nop(2)
        I(f"{op}_dpp v{v}, v{v}, v{v} row_ror:{r} row_mask:0xf bank_mask:0xf")
def ror2(v, w, op, rors):
    for r in rors:
        nop(1)
        I(f"{op}_dpp v{v}, v{v}, v{v} row_ror:{r} row_mask:0xf bank_mask:0xf")
        I(f"{op}_dpp v{w}, v{w}, v{w} row_ror:{r} row_mask:0xf bank_mask:0xf")
def stats_loads(soff):
    for r in range(4):
        I(f"buffer_load_dwordx4 v[{ST[r]}:{ST[r]+3}], v192, {S4('h')}, s{soff} offen offset:{r*128} sc1")
def stats_weights():
    I(f"v_max_f32 v194, v{ST[0]}, v{ST[1]}")
    I(f"v_max3_f32 v194, v194, v{ST[2]}, v{ST[3]}")
    ror1(194, "v_max_f32", (2, 4, 8))
    I(f"s_mov_b32 s{sT2}, {CEXP}")
    for r in ST:
        I(f"v_sub_f32 v{r}, v{r}, v194")
    for r in ST:
        I(f"v_mul_f32 v{r}, s{sT2}, v{r}")
    for r in ST:
        I(f"v_exp_f32 v{r}, v{r}")
    nop(1)
    I(f"v_mul_f32 v196, v{ST[0]}, v{ST[0]+1}")
    for r in ST[1:]:
        I(f"v_fmac_f32 v196, v{r}, v{r+1}")
    ror1(196, "v_add_f32", (2, 4, 8))
    I("v_rcp_f32 v196, v196")
    nop(1)
    for r in ST:
        I(f"v_mul_f32 v{r}, v{r}, v196")
    I(f"s_mov_b32 s{sWOK}, 1")
def pairs_to_A(vsrc, d0, d1):
    nop(2)
    I(f"v_mov_b32_dpp v{d0}, v{vsrc} quad_perm:[0,0,2,2] row_mask:0xf bank_mask:0xf")
    I(f"v_mov_b32_dpp v{d1}, v{vsrc} quad_perm:[1,1,3,3] row_mask:0xf bank_mask:0xf")
def h_compute():
    ror2(HR, HR+1, "v_add_f32", (2, 4))
    I(f"v_cvt_pk_bf16_f32 v{HR}, v{HR}, v{HR+1}")
    I(f"v_lshlrev_b32 v{HR+2}, 16, v{HR}")
    I(f"v_and_b32 v{HR+3}, 0xffff0000, v{HR}")
    I(f"v_lshlrev_b32 v194, 16, v{vB1}")
    I(f"v_and_b32 v195, 0xffff0000, v{vB1}")
    I(f"v_add_f32 v{HR+2}, v{HR+2}, v194")
    I(f"v_add_f32 v{HR+3}, v{HR+3}, v195")
    I(f"v_cvt_pk_bf16_f32 v{HR}, v{HR+2}, v{HR+3}")
    I(f"v_lshlrev_b32 v{HR+2}, 16, v{HR}")
    I(f"v_and_b32 v{HR+3}, 0xffff0000, v{HR}")
    I(f"v_max_f32 v{HR+2}, 0, v{HR+2}")
    I(f"v_max_f32 v{HR+3}, 0, v{HR+3}")
    I(f"v_mul_f32 v{HR+2}, v{HR+2}, v{HR+2}")
    I(f"v_mul_f32 v{HR+3}, v{HR+3}, v{HR+3}")
    I(f"v_cvt_pk_bf16_f32 v{HR}, v{HR+2}, v{HR+3}")
    pairs_to_A(HR, 198, 199)
    I(f"s_mov_b32 s{sHOK}, 1")

vB = 52
accO = 68
for s in range(4):
    spin_prog_all(vPROG, stage[f"V{s}"], 136, sleep=(1 if s < 3 else 0))
    for tt in range(4):
        I(f"ds_read_b64_tr_b16 v[{vB+4*tt}:{vB+4*tt+1}], v{32+tt} offset:{s*16384}")
        I(f"ds_read_b64_tr_b16 v[{vB+4*tt+2}:{vB+4*tt+3}], v{32+tt} offset:{s*16384+8192}")
    for tt in range(4):
        I(f"s_waitcnt lgkmcnt({6-2*tt})")
        c = "0" if s == 0 else f"v[{accO+4*tt}:{accO+4*tt+3}]"
        I(f"v_mfma_f32_16x16x32_bf16 v[{accO+4*tt}:{accO+4*tt+3}], v[{pA+4*s}:{pA+4*s+3}], v[{vB+4*tt}:{vB+4*tt+3}], {c}")
    if s == 1:
        stats_loads(sTS)
        if not W1LATE:
            I(f"buffer_load_dwordx4 v[{HR}:{HR+3}], v193, {S4('h')}, s{sHS} offen sc1")
    if s == 2:
        I("s_waitcnt vmcnt(0)")
        e1 = newlabel("E1")
        tagmask(ST)
        I("s_cmp_eq_u64 vcc, exec")
        I(f"s_cbranch_scc0 {e1}")
        stats_weights()
        L(e1)
        if not W1LATE:
            e2 = newlabel("E2")
            I(f"s_cmp_eq_u32 s{sFFN}, 0")
            I(f"s_cbranch_scc1 {e2}")
            tagmask([HR])
            I("s_cmp_eq_u64 vcc, exec")
            I(f"s_cbranch_scc0 {e2}")
            h_compute()
            L(e2)
stamp(6)
nop(6)
I(f"v_cndmask_b32 v16, v{accO}, v{accO+4}, {G1}")
I(f"v_cndmask_b32 v17, v{accO+1}, v{accO+5}, {G1}")
I(f"v_cndmask_b32 v16, v16, v{accO+8}, {G2}")
I(f"v_cndmask_b32 v17, v17, v{accO+9}, {G2}")
I(f"v_cndmask_b32 v16, v16, v{accO+12}, {G3}")
I(f"v_cndmask_b32 v17, v17, v{accO+13}, {G3}")
nop(1)
I("v_mov_b32_dpp v18, v16 quad_perm:[1,0,3,2] row_mask:0xf bank_mask:0xf")
I("v_mov_b32_dpp v19, v17 quad_perm:[1,0,3,2] row_mask:0xf bank_mask:0xf")
nop(1)
I(f"v_cndmask_b32 v200, v16, v19, {ODD}")
I(f"v_cndmask_b32 v201, v18, v17, {ODD}")
pub_store(4, "v[200:203]", 135, sOOFF, sT1)
stamp(7)
if W1LATE:
    ffn1_block()
I(f"s_cmp_lg_u32 s{sWOK}, 0")
I("s_cbranch_scc1 L_TOK")
L("L_TPOLL")
stats_loads(sTS)
I("s_waitcnt vmcnt(0)")
tagcheck(ST, "L_TPOLL", "L_TPOLL_DONE")
L("L_TPOLL_DONE")
stats_weights()
L("L_TOK")
accA = 68
accB = 96
wB = 140
w2B = 156
I(f"s_cmp_eq_u32 s{sFFN}, 0")
I("s_cbranch_scc1 L_HOK")
I(f"s_cmp_lg_u32 s{sHOK}, 0")
I("s_cbranch_scc1 L_HOK")
L("L_HPOLL")
I(f"buffer_load_dwordx4 v[{HR}:{HR+3}], v193, {S4('h')}, s{sHS} offen sc1")
I("s_waitcnt vmcnt(0)")
tagcheck([HR], "L_HPOLL", "L_HPOLL_DONE")
L("L_HPOLL_DONE")
h_compute()
L("L_HOK")
I(f"s_cmp_eq_u32 s{sFFN}, 0")
I(f"s_cselect_b32 s{sT3}, {stage['WO']}, {max(stage['WO'], stage['W2'])}")
I(f"s_add_u32 s{sT2}, s{sOG}, {WS_O}")
def weight_work():
    nf = newlabel("NF"); dn = newlabel("WD")
    for t in range(7):
        I(f"ds_read_b64_tr_b16 v[{wB+2*t}:{wB+2*t+1}], v134 offset:{t*32}")
    I(f"s_cmp_eq_u32 s{sFFN}, 0")
    I(f"s_cbranch_scc1 {nf}")
    for t in range(7):
        I(f"ds_read_b64_tr_b16 v[{w2B+2*t}:{w2B+2*t+1}], v134 offset:{16*PITCH + t*32}")
    for t in range(7):
        I(f"s_waitcnt lgkmcnt({6-t})")
        I(f"v_mfma_f32_16x16x16_bf16 v[{accB+4*t}:{accB+4*t+3}], v[198:199], v[{w2B+2*t}:{w2B+2*t+1}], 0")
    nop(3)
    for t in range(7):
        if t == 6:
            nop(2)
        I(f"v_mul_f32 v{accB+4*t}, v221, v{accB+4*t}")
    I(f"s_branch {dn}")
    L(nf)
    for t in range(7):
        I(f"v_mov_b32 v{accB+4*t}, 0")
    L(dn)
    I(f"s_mov_b32 s{sDW}, 1")
L("L_OPOLL")
for r in range(4):
    I(f"buffer_load_dwordx4 v[{48+4*r}:{51+4*r}], v197, {S4('h')}, s{sT2} offen offset:{r*1024} sc1")
I(f"s_cmp_lg_u32 s{sDW}, 0")
I("s_cbranch_scc1 L_OCHK")
I(f"ds_read_b128 v[136:139], v{vPROG}")
I("s_waitcnt lgkmcnt(0)")
I("v_min3_u32 v136, v136, v137, v138")
I("v_min_u32 v136, v136, v139")
nop(1)
I(f"v_readfirstlane_b32 s{sT0}, v136")
I(f"s_cmp_ge_u32 s{sT0}, s{sT3}")
I("s_cbranch_scc0 L_OCHK")
weight_work()
L("L_OCHK")
I("s_waitcnt vmcnt(0)")
tagcheck([48, 52, 56, 60], "L_OPOLL", "L_OPOLL_DONE")
L("L_OPOLL_DONE")
stamp(8)
I(f"v_mul_f32 v40, v{ST[0]}, v48")
I(f"v_mul_f32 v41, v{ST[0]}, v49")
for r in range(1, 4):
    I(f"v_fmac_f32 v40, v{ST[r]}, v{48+4*r}")
    I(f"v_fmac_f32 v41, v{ST[r]}, v{49+4*r}")
ror2(40, 41, "v_add_f32", (2, 4, 8))
I("v_cvt_pk_bf16_f32 v40, v40, v41")
pairs_to_A(40, 46, 47)
I(f"s_cmp_lg_u32 s{sDW}, 0")
I("s_cbranch_scc1 L_WDONE")
spin_prog_all(vPROG, f"s{sT3}", 136, sleep=0)
weight_work()
L("L_WDONE")
I("s_waitcnt lgkmcnt(0)")
for t in range(7):
    I(f"v_mfma_f32_16x16x16_bf16 v[{accA+4*t}:{accA+4*t+3}], v[46:47], v[{wB+2*t}:{wB+2*t+1}], 0")
nop(3)
for t in range(7):
    if t == 6:
        nop(1)
    I(f"v_fmac_f32 v{accB+4*t}, v220, v{accA+4*t}")
stamp(9)
I(f"v_cndmask_b32 v16, v{accB}, v{accB+4}, {G1}")
I(f"v_cndmask_b32 v17, v{accB+16}, v{accB+20}, {G1}")
I(f"v_cndmask_b32 v16, v16, v{accB+8}, {G2}")
I(f"v_cndmask_b32 v17, v17, v{accB+24}, {G2}")
I(f"v_cndmask_b32 v16, v16, v{accB+12}, {G3}")
nop(2)
I("v_mov_b32_dpp v18, v16 quad_perm:[1,0,3,2] row_mask:0xf bank_mask:0xf")
I("v_mov_b32_dpp v19, v17 quad_perm:[1,0,3,2] row_mask:0xf bank_mask:0xf")
nop(1)
I(f"v_cndmask_b32 v124, v16, v19, {ODD}")
I(f"v_cndmask_b32 v125, v18, v17, {ODD}")
I("s_mov_b32 exec_hi, 0x5555ffff")
pub_store(4, "v[124:127]", 222, sRP, sT1)
I("s_mov_b64 exec, -1")
stamp(10)
I(f"s_cmp_eq_u32 s{sWAVE}, 0")
I(f"s_cselect_b32 s{sT0}, s{sJ}, 99")
I(f"s_cmp_lt_u32 s{sT0}, 28")
I("s_cbranch_scc0 L_CEND")
I(f"s_add_u32 s{sT3}, s{sOG}, {WS_R}")
I(f"s_lshl_b32 s{sT2}, s{sJ}, 10")
I(f"s_add_u32 s{sT2}, s{sT2}, {WS_P2}")
I(f"s_lshl_b32 s{sT1}, s{sH}, 7")
I(f"s_add_u32 s{sT1}, s{sT1}, s{sT2}")
L("L_RPOLL")
for r in range(4):
    I(f"buffer_load_dwordx4 v[{48+4*r}:{51+4*r}], v197, {S4('h')}, s{sT3} offen offset:{r*1024} sc1")
I("s_waitcnt vmcnt(0)")
tagcheck([48, 52, 56, 60], "L_RPOLL", "L_RPOLL_DONE")
L("L_RPOLL_DONE")
I("v_add_f32 v48, v48, v52")
I("v_add_f32 v49, v49, v53")
I("v_add_f32 v56, v56, v60")
I("v_add_f32 v57, v57, v61")
I("v_add_f32 v48, v48, v56")
I("v_add_f32 v49, v49, v57")
ror2(48, 49, "v_add_f32", (2, 4, 8))
I(f"v_mov_b32 v50, s{sN0}")
I(f"v_mov_b32 v51, s{sN1}")
I("s_mov_b32 exec_lo, 0x00030003")
I("s_mov_b32 exec_hi, 0x00030003")
I(f"buffer_store_dwordx4 v[48:51], v197, {S4('h')}, s{sT1} offen sc1")
I("s_mov_b64 exec, -1")
stamp(11)
I(f"s_and_b32 s{sT0}, s{sJ}, 7")
I(f"s_cmp_eq_u32 s{sT0}, s{sH}")
I("s_cbranch_scc0 L_CEND")
I(f"v_lshlrev_b32 v22, 16, v{vB2}")
I(f"v_and_b32 v23, 0xffff0000, v{vB2}")
L("L_FPOLL")
I(f"buffer_load_dwordx4 v[16:19], v197, {S4('h')}, s{sT2} offen sc1")
I("s_waitcnt vmcnt(0)")
tagcheck([16], "L_FPOLL", "L_FPOLL_DONE")
L("L_FPOLL_DONE")
ror2(16, 17, "v_add_f32", (2, 4, 8))
I("v_fmac_f32 v16, v221, v22")
I("v_fmac_f32 v17, v221, v23")
I("v_cvt_pk_bf16_f32 v16, v16, v17")
I("s_mov_b32 exec_lo, 0x00030003")
I("s_mov_b32 exec_hi, 0x00030003")
I(f"buffer_store_dword v16, v133, {S4('f')}, 0 offen")
I(f"s_cmp_lg_u32 s2, 0")
I("s_cbranch_scc1 L_NOEP")
I(f"s_memrealtime s[96:97]")
I(f"v_mov_b32 v8, {WS_E}")
I("s_waitcnt lgkmcnt(0)")
I(f"v_mov_b32 v12, s96")
I(f"v_mov_b32 v13, s97")
I("s_mov_b64 exec, 1")
I(f"buffer_store_dwordx2 v[12:13], v8, {S4('h')}, 0 offen sc1")
L("L_NOEP")
stamp(12)
L("L_CEND")
stamp_flush(cons=True)
L("L_END")
I("s_endpgm")
L("L_CODE_END")
if not args.nopf:
    A(".set CODE_BYTES_AFTER_PC, L_CODE_END - L_PC")
A('.section .rodata,"a"')
A(".p2align 6")
A(f".amdhsa_kernel {NAME}")
A("  .amdhsa_next_free_vgpr 256")
A("  .amdhsa_next_free_sgpr 102")
A("  .amdhsa_accum_offset 256")
A("  .amdhsa_group_segment_fixed_size 0")
A("  .amdhsa_kernarg_size 112")
A("  .amdhsa_user_sgpr_count 2")
A("  .amdhsa_user_sgpr_kernarg_segment_ptr 1")
A("  .amdhsa_system_sgpr_workgroup_id_x 1")
A(".end_amdhsa_kernel")
txt = "\n".join(out)
import re
if args.nopre:
    txt = re.sub(r"    buffer_store_dwordx4 v\[204:207\], .*\n", "", txt)
if args.preload:
    import re
    txt = re.sub(r"buffer_store_dwordx4 v\[204:207\], (v8, s\[72:75\], s10 offen(?: offset:\d+)?)", r"buffer_load_dwordx4 v[208:211], \1 sc1", txt)
if args.nont:
    txt = txt.replace(" nt lds", " lds")
print(txt)
```

```python
import sys, argparse

ap = argparse.ArgumentParser()
ap.add_argument("--W", type=int, default=7)
ap.add_argument("--stamps", action="store_true")
ap.add_argument("--name", default="gated_mix__sliding_block_cached__dense_activation_squared_relu__decode_kernel")
ap.add_argument("--spin", type=int, default=1 << 22)
ap.add_argument("--qsleep", type=int, default=4)
ap.add_argument("--fsleep", type=int, default=0)
ap.add_argument("--slowmask", type=int, default=31)
ap.add_argument("--order", default="K,W1,V,WO,W2")
ap.add_argument("--rotmul", type=int, default=7)
ap.add_argument("--nont", action="store_true")
ap.add_argument("--nopf", action="store_true")
ap.add_argument("--WF", type=int, default=0)
ap.add_argument("--preload", action="store_true")
ap.add_argument("--noqpoll", action="store_true")
ap.add_argument("--nopre", action="store_true")
ap.add_argument("--lonly", action="store_true")
ap.add_argument("--dbgstamps", action="store_true")
ap.add_argument("--perm", type=int, default=0)
args = ap.parse_args()
W = args.W
STAMPS = args.stamps or args.dbgstamps
NAME = args.name

out = []
def A(s=""):
    out.append(s)
def I(s):
    out.append("    " + s)
def L(s):
    out.append(s + ":")
def nop(n):
    if n > 0:
        I(f"s_nop {n-1}")

PITCH = 928
R_A = 0
R_V = 65536
R_W = R_V + 65536
R_X = R_W + 14336
R_Q = R_X + 1024
R_P = R_Q + 1024
R_F = R_P + 512
R_M = R_F + 1024
M_MAX = R_M
M_LSUM = R_M + 32
M_QCNT = R_M + 256
M_NONCEFLAG = R_M + 260
M_QKDONE = R_M + 264
M_PCNT = R_M + 268
M_QTASK = R_M + 276
M_FCNT = R_M + 280
M_FSUM = R_M + 288
M_NONCE = R_M + 304
M_G = R_M + 320
LDS_TOTAL = R_M + 512
assert LDS_TOTAL <= 163840, LDS_TOTAL

WS_Q = 0x000000
WS_H = 0x040000
WS_T = 0x060000
WS_P2 = 0x0A0000
WS_O = 0x100000
WS_R = 0x200000
WS_E = 0x300000
WS_STAMP = 0x400000
FAST = 0x800000
WS_RANGE = 0x1000000

order = args.order.split(",")
stage = {"WQ": 1}
n = 2
for o in order:
    if o in ("K", "V"):
        for q in range(4):
            stage[f"{o}{q}"] = n; n += 1
    elif o in ("Va", "Vb"):
        for q in (range(3) if o == "Va" else range(3, 4)):
            stage[f"V{q}"] = n; n += 1
    else:
        stage[o] = n; n += 1

sWAVE, sH, sJ, sHH, sRQ, sA, sFFN = 3, 4, 5, 6, 7, 8, 9
sT0, sT1, sT2, sT3 = 10, 11, 12, 13
sSPIN = 14
sRND = 15
SRD = {}
def S4(name):
    b = SRD[name]
    return f"s[{b}:{b+3}]"
for i, nm in enumerate(["a", "b", "c", "d", "e", "f", "g", "h"]):
    SRD[nm] = 44 + 4 * i
sN0, sN1 = 76, 77
sMA, sMB = 78, 80
sX0 = 82
sWOK, sHOK = 90, 91
sOOFF, sFOFF = 100, 101
sOG, sRP, sDW = 92, 93, 94
M_REMOTE_OFF = 272

def build_srd(name, plo, off_sgpr, size):
    b = SRD[name]
    if off_sgpr is None:
        I(f"s_mov_b32 s{b}, s{plo}")
        I(f"s_mov_b32 s{b+1}, s{plo+1}")
    else:
        I(f"s_add_u32 s{b}, s{plo}, s{off_sgpr}")
        I(f"s_addc_u32 s{b+1}, s{plo+1}, 0")
    I(f"s_mov_b32 s{b+2}, {size}")
    I(f"s_mov_b32 s{b+3}, 0x00020000")

def stamp(k):
    if STAMPS:
        I(f"s_memrealtime s[{16+2*k}:{17+2*k}]")

def stamp_flush(n=14, cons=False):
    if not STAMPS:
        return
    if args.dbgstamps:
        if not cons:
            return
        sk = "L_NODBG"
        I(f"s_cmp_lg_u32 s2, 0")
        I(f"s_cbranch_scc1 {sk}")
        I(f"s_cmp_lg_u32 s{sWAVE}, 0")
        I(f"s_cbranch_scc1 {sk}")
        I("s_waitcnt lgkmcnt(0)")
        I("s_mov_b64 exec, 1")
        for k in range(13):
            I(f"s_sub_u32 s{sT0}, s{16+2*k}, s{SRD['b']}")
            I(f"v_mov_b32 v{232+k}, s{sT0}")
        I("v_mov_b32 v248, 0")
        for k in range(0, 12, 4):
            I(f"buffer_store_dwordx4 v[{232+k}:{235+k}], v248, {S4('g')}, 0 offen offset:{4*k}")
        I(f"buffer_store_dword v244, v248, {S4('g')}, 0 offen offset:48")
        L(sk)
        return
    I("s_waitcnt lgkmcnt(0)")
    I("s_mov_b64 exec, 1")
    for k in range(16):
        I(f"v_mov_b32 v{232+k}, s{16+2*min(k,n-1)}")
    for k in range(0, 16, 4):
        I(f"buffer_store_dwordx4 v[{232+k}:{235+k}], v253, {S4('h')}, 0 offen offset:{4*k}")

lbl = [0]
def newlabel(p="L"):
    lbl[0] += 1
    return f"{p}_{lbl[0]}"

def spin_lds_ge(vaddr, off, val, vt, sleep=1):
    l = newlabel("SP"); d = newlabel("SD")
    L(l)
    I(f"ds_read_b32 v{vt}, v{vaddr} offset:{off}")
    I("s_waitcnt lgkmcnt(0)")
    I(f"v_readfirstlane_b32 s{sT0}, v{vt}")
    I(f"s_cmp_ge_u32 s{sT0}, {val}")
    I(f"s_cbranch_scc1 {d}")
    if sleep:
        I(f"s_sleep {sleep}")
    I(f"s_branch {l}")
    L(d)

def spin_prog_all(vaddr, val, vt, sleep=1):
    l = newlabel("SP"); d = newlabel("SD")
    L(l)
    I(f"ds_read_b128 v[{vt}:{vt+3}], v{vaddr}")
    I("s_waitcnt lgkmcnt(0)")
    I(f"v_min3_u32 v{vt}, v{vt}, v{vt+1}, v{vt+2}")
    I(f"v_min_u32 v{vt}, v{vt}, v{vt+3}")
    nop(1)
    I(f"v_readfirstlane_b32 s{sT0}, v{vt}")
    I(f"s_cmp_ge_u32 s{sT0}, {val}")
    I(f"s_cbranch_scc1 {d}")
    if sleep:
        I(f"s_sleep {sleep}")
    I(f"s_branch {l}")
    L(d)

def xreduce(v, t, op, rors, swaps=("v_permlane16_swap_b32", "v_permlane32_swap_b32")):
    for r in rors:
        nop(2)
        I(f"{op}_dpp v{v}, v{v}, v{v} row_ror:{r} row_mask:0xf bank_mask:0xf")
    for sw in swaps:
        I(f"v_mov_b32 v{t}, v{v}")
        nop(2)
        I(f"{sw} v{v}, v{t}")
        nop(1)
        I(f"{op} v{v}, v{v}, v{t}")

def xreduce2(v, w, t, u, op, rors, swaps=("v_permlane16_swap_b32", "v_permlane32_swap_b32")):
    for r in rors:
        nop(1)
        I(f"{op}_dpp v{v}, v{v}, v{v} row_ror:{r} row_mask:0xf bank_mask:0xf")
        I(f"{op}_dpp v{w}, v{w}, v{w} row_ror:{r} row_mask:0xf bank_mask:0xf")
    for sw in swaps:
        I(f"v_mov_b32 v{t}, v{v}")
        I(f"v_mov_b32 v{u}, v{w}")
        nop(1)
        I(f"{sw} v{v}, v{t}")
        I(f"{sw} v{w}, v{u}")
        nop(1)
        I(f"{op} v{v}, v{v}, v{t}")
        I(f"{op} v{w}, v{w}, v{u}")

def pick(sdst, sbase, on_slow=None):
    I(f"s_add_u32 s{sRND}, s{sRND}, 1")
    I(f"s_and_b32 s{sdst}, s{sRND}, {args.slowmask}")
    I(f"s_cmp_eq_u32 s{sdst}, 0")
    if on_slow is not None:
        f = newlabel("PF")
        I(f"s_cbranch_scc0 {f}")
        on_slow()
        I(f"s_cmp_eq_u32 0, 0")
        L(f)
    I(f"s_cselect_b32 s{sdst}, 0, {FAST}")
    I(f"s_add_u32 s{sdst}, s{sdst}, s{sbase}")

def fast_store(nn, data, vaddr, soff, stmp):
    I(f"s_add_u32 s{stmp}, s{soff}, {FAST}")
    I(f"buffer_store_dwordx{nn} {data}, v{vaddr}, {S4('h')}, s{stmp} offen")
def slow_store(nn, data, vaddr, soff):
    I(f"buffer_store_dwordx{nn} {data}, v{vaddr}, {S4('h')}, s{soff} offen sc1")

def pub_store(nn, data, vaddr, soff, stmp):
    f = newlabel("PS"); d = newlabel("PD")
    I(f"s_add_u32 s{stmp}, s{soff}, s{sFOFF}")
    I(f"s_cmp_eq_u32 s{sFOFF}, 0")
    I(f"s_cbranch_scc1 {f}")
    I(f"buffer_store_dwordx{nn} {data}, v{vaddr}, {S4('h')}, s{stmp} offen")
    I(f"s_branch {d}")
    L(f)
    I(f"buffer_store_dwordx{nn} {data}, v{vaddr}, {S4('h')}, s{stmp} offen sc1")
    L(d)

def tagmask(regs):
    I(f"v_cmp_eq_u64 vcc, s[{sN0}:{sN1}], v[{regs[0]+2}:{regs[0]+3}]")
    for r in regs[1:]:
        I(f"v_cmp_eq_u64 s[{sX0+4}:{sX0+5}], s[{sN0}:{sN1}], v[{r+2}:{r+3}]")
        I(f"s_and_b64 vcc, vcc, s[{sX0+4}:{sX0+5}]")

def tagcheck(regs, loop, done):
    tagmask(regs)
    I(f"s_sub_u32 s{sSPIN}, s{sSPIN}, 1")
    I(f"s_cbranch_scc1 {done}")
    I("s_cmp_eq_u64 vcc, exec")
    I(f"s_cbranch_scc0 {loop}")

A(f"; @launch grid=(256,1,1) block=(512,1,1) lds={LDS_TOTAL}")
A('.amdgcn_target "amdgcn-amd-amdhsa--gfx950"')
A(".text")
A(f".globl {NAME}")
A(".p2align 8")
A(f".type {NAME},@function")
L(NAME)
I("s_cmp_ge_u32 s2, 256")
I("s_cbranch_scc1 L_END")
if args.dbgstamps:
    I("s_memrealtime s[96:97]")
if args.perm == 1:
    I("s_lshr_b32 s3, s2, 3")
    I("s_and_b32 s2, s2, 7")
    I("s_lshl_b32 s2, s2, 5")
    I("s_or_b32 s2, s2, s3")
elif args.perm == 2:
    I("s_xor_b32 s3, s2, 1")
    I("s_cmp_lt_u32 s2, 4")
    I("s_cselect_b32 s2, s3, s2")
I("s_load_dwordx16 s[16:31], s[0:1], 0")
I("s_load_dwordx8 s[32:39], s[0:1], 64")
I("s_load_dwordx4 s[40:43], s[0:1], 96")
I("v_lshrrev_b32 v2, 6, v0")
I("v_and_b32 v1, 63, v0")
I(f"s_and_b32 s{sH}, s2, 7")
I(f"v_readfirstlane_b32 s{sWAVE}, v2")
I(f"s_lshr_b32 s{sJ}, s2, 3")
if not args.nopf:
    I("s_getpc_b64 s[92:93]")
    L("L_PC")
    I(f"s_lshl_b32 s{sT0}, s{sJ}, 3")
    I(f"s_add_u32 s{sT0}, s{sT0}, s{sWAVE}")
    I(f"s_mul_i32 s{sT1}, s{sT0}, 0x1556")
    I(f"s_lshr_b32 s{sT1}, s{sT1}, 16")
    I(f"s_mul_i32 s{sT1}, s{sT1}, 12")
    I(f"s_sub_u32 s{sT0}, s{sT0}, s{sT1}")
    I(f"s_lshl_b32 s{sT0}, s{sT0}, 10")
    I(f"v_lshl_add_u32 v254, v1, 4, s{sT0}")
    I(f"v_min_u32 v254, CODE_BYTES_AFTER_PC-16, v254")
    I("global_load_dwordx4 v[248:251], v254, s[92:93]")
I(f"s_lshr_b32 s{sHH}, s{sJ}, 4")
I(f"s_and_b32 s{sRQ}, s{sJ}, 3")
I(f"s_lshr_b32 s{sA}, s{sJ}, 2")
I(f"s_lshl_b32 s{sA}, s{sA}, 3")
I(f"s_add_u32 s{sA}, s{sA}, s{sH}")
I(f"s_cmp_lt_u32 s{sA}, 28")
I(f"s_cselect_b32 s{sFFN}, 1, 0")
I(f"s_cselect_b32 s{sA}, s{sA}, 0")
if STAMPS:
    I(f"s_lshl_b32 s{sT0}, s2, 3")
    I(f"s_add_u32 s{sT0}, s{sT0}, s{sWAVE}")
    I(f"s_lshl_b32 s{sT0}, s{sT0}, 7")
    I(f"s_add_u32 s{sT0}, s{sT0}, {WS_STAMP}")
    I(f"v_mov_b32 v253, s{sT0}")
I(f"s_cmp_lt_u32 s{sWAVE}, 4")
I("s_cbranch_scc1 L_CONS")

vLANE = 1
vG4 = 3
vN = 4
vMISC = 5
vPROG = 6

sL = sX0
I(f"s_sub_u32 s{sL}, s{sWAVE}, 4")
I(f"v_lshrrev_b32 v6, 3, v{vLANE}")
I("v_bfe_u32 v7, v6, 1, 2")
I("v_lshlrev_b32 v7, 1, v7")
I(f"v_and_b32 v11, 7, v{vLANE}")
I("v_xor_b32 v11, v11, v7")
I("v_lshlrev_b32 v11, 4, v11")
I(f"s_lshl_b32 s{sT0}, s{sL}, 3")
I(f"v_add_u32 v6, s{sT0}, v6")
I("v_lshl_add_u32 v7, v6, 13, v11")
I("v_mul_u32_u24 v10, 3584, v6")
I("v_add_u32 v10, v10, v11")
I(f"v_lshrrev_b32 v13, 5, v{vLANE}")
I("v_lshlrev_b32 v8, 9, v13")
I(f"v_and_b32 v9, 31, v{vLANE}")
I("v_lshl_add_u32 v8, v9, 4, v8")
I(f"s_lshl_b32 s{sT0}, s{sL}, 1")
I(f"v_add_u32 v13, s{sT0}, v13")
I("v_lshlrev_b32 v13, 5, v13")
I("v_xor_b32 v9, v8, v13")
I(f"s_lshl_b32 s{sT0}, s{sL}, 4")
I(f"v_xor_b32 v8, s{sT0}, v8")
I(f"v_lshlrev_b32 v11, 4, v{vLANE}")
I(f"s_lshl_b32 s{sT0}, s{sL}, 2")
I(f"s_add_u32 s{sT0}, s{sT0}, {R_F}")
I(f"v_add_u32 v12, s{sT0}, v11")
I(f"v_mov_b32 v{vMISC}, {R_M}")
sLK, sLV, sLW, sLO, sGO, sI3, sROT = sX0+1, sX0+2, sX0+3, sX0+4, sX0+5, sX0+6, sX0+7
I(f"s_lshl_b32 s{sLK}, s{sL}, 10")
I(f"s_add_u32 s{sLV}, s{sLK}, {R_V}")
I(f"s_add_u32 s{sLW}, s{sLK}, {R_W}")
I(f"s_mul_i32 s{sLO}, s{sL}, {4*PITCH}")
I(f"s_mul_i32 s{sGO}, s{sL}, {4*896}")
I(f"s_cmp_ge_u32 s{sL}, 2")
I(f"s_cselect_b32 s{sI3}, 2, 3")
I(f"s_mul_i32 s{sROT}, s2, {args.rotmul}")
I(f"s_add_u32 s{sROT}, s{sROT}, s{sL}")
I(f"s_lshl_b32 s{sROT}, s{sROT}, 10")
I(f"s_mul_i32 s{sT2}, s{sRQ}, {112*8192}")
I(f"s_lshl_b32 s{sT1}, s{sH}, 10")
I(f"s_add_u32 s{sT2}, s{sT2}, s{sT1}")
I(f"s_lshr_b32 s{sT1}, s{sJ}, 2")
I(f"s_lshl_b32 s{sT1}, s{sT1}, 7")
I(f"s_add_u32 s{sT2}, s{sT2}, s{sT1}")
I(f"s_sub_u32 s{sT1}, {448*8192}, s{sT2}")
I(f"s_lshl_b32 s{sT3}, s{sH}, 25")
I(f"s_add_u32 s{sT3}, s{sT3}, 0x1E00000")
I(f"s_lshl_b32 s{sT0}, s{sJ}, 16")
I(f"s_add_u32 s{sT3}, s{sT3}, s{sT0}")
I("s_waitcnt lgkmcnt(0)")
build_srd("f", 22, sT2, f"s{sT1}")
def issue_w(i, srdn, vaddr, rowbytes):
    if i == 3:
        I(f"s_lshl_b32 s{sT0}, s{sI3}, 12")
        I(f"s_add_u32 m0, s{sLW}, s{sT0}")
        I(f"s_mul_i32 s{sT0}, s{sI3}, {32*rowbytes}")
    else:
        I(f"s_add_u32 m0, s{sLW}, {i*4096}")
        I(f"s_mov_b32 s{sT0}, {i*32*rowbytes}")
    I(f"buffer_load_dwordx4 v{vaddr}, {S4(srdn)}, s{sT0} offen nt lds")
for i in range(3):
    issue_w(i, "f", 7, 8192)
build_srd("g", 16, None, 896)
I(f"s_cmp_eq_u32 s{sL}, 3")
I("s_cbranch_scc1 L_LX")
issue_w(3, "f", 7, 8192)
I("s_branch L_LX2")
L("L_LX")
I(f"s_mov_b32 m0, {R_X}")
I("s_nop 0")
I(f"buffer_load_dwordx4 v11, {S4('g')}, 0 offen lds")
L("L_LX2")
build_srd("a", 18, sT3, 65536)
def issue_k(i):
    I(f"v_xor_b32 v13, {(4*(i & 3)) << 4}, v8")
    I(f"s_add_u32 m0, s{sLK}, {i*4096}")
    I(f"s_add_u32 s{sT0}, s{sROT}, {i*4096}")
    I(f"s_and_b32 s{sT0}, s{sT0}, 0xffff")
    I(f"buffer_load_dwordx4 v13, {S4('a')}, s{sT0} offen nt lds")
NPRE = max(0, W - 4)
assert order[0] == "K"
for i in range(NPRE):
    issue_k(i)
build_srd("b", 20, sT3, 65536)
I(f"s_mul_i32 s{sT1}, s{sRQ}, {112*3584}")
I(f"s_lshl_b32 s{sT2}, s{sA}, 7")
I(f"s_add_u32 s{sT1}, s{sT1}, s{sT2}")
I(f"s_sub_u32 s{sT2}, {448*3584}, s{sT1}")
build_srd("c", 28, sT1, f"s{sT2}")
I(f"s_lshl_b32 s{sT1}, s{sH}, 9")
I(f"s_lshl_b32 s{sT2}, s{sJ}, 4")
I(f"s_add_u32 s{sT1}, s{sT1}, s{sT2}")
I(f"s_mul_i32 s{sT1}, s{sT1}, 896")
build_srd("d", 24, sT1, 16*896)
I(f"s_lshl_b32 s{sT1}, s{sA}, 2")
I(f"s_add_u32 s{sT1}, s{sT1}, s{sRQ}")
I(f"s_mul_i32 s{sT1}, s{sT1}, {16*896}")
build_srd("e", 32, sT1, 16*896)
build_srd("h", 42, None, hex(WS_RANGE))
stamp(0)
I("s_barrier")

def loader_stream(ffn, start_p, stop_kind=None):
    pass

def make_seq(ffn):
    seq = [("WQ", i) for i in range(4)]
    for o in order:
        if o == "K": seq += [("K", i) for i in range(16)]
        elif o == "V": seq += [("V", i) for i in range(16)]
        elif o == "Va": seq += [("V", i) for i in range(12)]
        elif o == "Vb": seq += [("V", i) for i in range(12, 16)]
        elif o == "W1" and ffn: seq += [("W1", i) for i in range(4)]
        elif o == "WO": seq += [("WO", i) for i in range(4)]
        elif o == "W2" and ffn: seq += [("W2", i) for i in range(4)]
    return seq

def emit_stream(seq, p0, p1, st, W=W):
    stages = st["stages"]
    def flag(s_):
        I(f"v_mov_b32 v14, {s_}")
        I("ds_write_b32 v12, v14")
        if s_ <= 13:
            stamp(s_)
    for p in range(p0, p1):
        k, i = seq[p]
        if p >= W:
            I(f"s_waitcnt vmcnt({W-1})")
            landed = p - W
            done = None
            while st["si"] < len(stages) and stages[st["si"]][1] <= landed:
                done = stages[st["si"]][0]; st["si"] += 1
            if done is not None:
                flag(done)
        want_mask = k in ("WO", "W2")
        if want_mask and not st["qk_waited"]:
            spin_lds_ge(vMISC, M_QKDONE - R_M, 4, 15)
            st["qk_waited"] = True
        if want_mask != st["masked"]:
            I("s_mov_b32 exec_hi, 0x00ffffff" if want_mask else "s_mov_b32 exec_hi, -1")
            st["masked"] = want_mask
        if k == "K":
            issue_k(i)
        elif k == "W1":
            if i == 0:
                spin_lds_ge(vMISC, M_QTASK - R_M, 4, 15)
            issue_w(i, "c", 10, 3584)
        elif k == "V":
            I(f"s_add_u32 m0, s{sLV}, {i*4096}")
            I(f"s_add_u32 s{sT0}, s{sROT}, {i*4096}")
            I(f"s_and_b32 s{sT0}, s{sT0}, 0xffff")
            I(f"buffer_load_dwordx4 v9, {S4('b')}, s{sT0} offen nt lds")
        elif k == "WO":
            I(f"s_add_u32 m0, s{sLO}, {i*PITCH}")
            I(f"s_add_u32 s{sT0}, s{sGO}, {i*896}")
            I(f"buffer_load_dwordx4 v11, {S4('d')}, s{sT0} offen nt lds")
        elif k == "W2":
            I(f"s_add_u32 m0, s{sLO}, {(16+i)*PITCH}")
            I(f"s_add_u32 s{sT0}, s{sGO}, {i*896}")
            I(f"buffer_load_dwordx4 v11, {S4('e')}, s{sT0} offen nt lds")
    if p1 == len(seq):
        nn = len(seq)
        while st["si"] < len(stages):
            s_, p = stages[st["si"]]
            I(f"s_waitcnt vmcnt({nn-1-p})")
            flag(s_)
            st["si"] += 1
        stamp_flush()
        I("s_endpgm")

def stages_of(seq):
    last = {}
    for p, (k, i) in enumerate(seq):
        key = f"{k}{i//4}" if k in ("K", "V") else k
        last[stage[key]] = p
    return sorted(last.items(), key=lambda x: x[1])

seqF, seqN = make_seq(True), make_seq(False)
common = 0
while common < len(seqN) and seqF[common] == seqN[common]:
    common += 1
WF = args.WF or W
assert WF >= W
if WF != W:
    common = 4 + NPRE
stF = dict(si=0, masked=False, qk_waited=False, stages=stages_of(seqF))
emit_stream(seqF, 4 + NPRE, common, stF)
stN = dict(si=stF["si"], masked=stF["masked"], qk_waited=stF["qk_waited"], stages=stages_of(seqN))
I(f"s_cmp_eq_u32 s{sFFN}, 0")
I("s_cbranch_scc1 L_LOADER_N")
emit_stream(seqF, common, len(seqF), stF, WF)
L("L_LOADER_N")
emit_stream(seqN, common, len(seqN), stN)

L("L_CONS")
vGA, vGB = 128, 129
vB1, vB2 = 130, 131
I(f"v_lshrrev_b32 v{vG4}, 4, v{vLANE}")
I(f"v_and_b32 v{vN}, 15, v{vLANE}")
I(f"v_mov_b32 v{vMISC}, {R_M}")
I(f"v_mov_b32 v{vPROG}, {R_F}")
I(f"s_mov_b32 s{sSPIN}, {args.spin}")
I(f"s_mov_b32 s{sRND}, 0")
I(f"s_mov_b32 s{sWOK}, 0")
I(f"s_mov_b32 s{sHOK}, 0")
I("s_waitcnt lgkmcnt(0)")
I(f"s_add_u32 s94, s42, {WS_E}")
I("s_addc_u32 s95, s43, 0")
I(f"s_load_dwordx2 s[{sN0}:{sN1}], s[94:95], 0")
build_srd("h", 42, None, hex(WS_RANGE))
build_srd("a", 16, None, 896)
build_srd("c", 36, None, 896)
build_srd("d", 30, None, 3584)
build_srd("e", 34, None, 896)
build_srd("f", 38, None, 896)
build_srd("g", 40, None, 256)
if args.dbgstamps:
    I(f"s_mov_b32 s{SRD['b']}, s96")
stamp(0)
I(f"s_cmp_lg_u32 s{sWAVE}, 2")
I("s_cbranch_scc1 L_NOG")
I(f"v_lshlrev_b32 v8, 4, v{vLANE}")
I(f"buffer_load_dwordx4 v[16:19], v8, {S4('a')}, 0 offen")
I(f"buffer_load_dwordx4 v[20:23], v8, {S4('c')}, 0 offen")
L("L_NOG")
I(f"v_and_b32 v14, 1, v{vLANE}")
I(f"v_lshl_add_u32 v14, v{vG4}, 1, v14")
I("v_lshlrev_b32 v14, 2, v14")
I(f"s_lshl_b32 s{sT1}, s{sA}, 7")
I(f"s_lshl_b32 s{sT0}, s{sRQ}, 5")
I(f"s_add_u32 s{sT0}, s{sT0}, s{sT1}")
I(f"buffer_load_dword v{vB1}, v14, {S4('d')}, s{sT0} offen")
I(f"s_lshl_b32 s{sT0}, s{sJ}, 5")
I(f"v_add_u32 v133, s{sT0}, v14")
I(f"buffer_load_dword v{vB2}, v133, {S4('e')}, 0 offen")
I(f"s_cmp_lg_u32 s{sWAVE}, 3")
I("s_cbranch_scc1 L_NOZ")
I("v_mov_b32 v8, 0")
I("v_mov_b32 v9, 0")
I("v_mov_b32 v10, 0")
I("v_mov_b32 v11, 0")
I(f"v_lshlrev_b32 v12, 4, v{vLANE}")
I(f"v_add_u32 v12, {R_F}, v12")
I("ds_write_b128 v12, v[8:11]")
I("s_mov_b32 exec_hi, 0")
I("ds_write_b128 v12, v[8:11] offset:1024")
I("s_mov_b64 exec, -1")
L("L_NOZ")
I("s_waitcnt lgkmcnt(0)")
I(f"s_add_u32 s{sN0}, s{sN0}, 0x7f4a7c15")
I(f"s_andn2_b32 s{sN0}, s{sN0}, 15")
I(f"s_xor_b32 s{sN1}, s{sN1}, 0x9e3779b9")
I(f"s_not_b32 s{sT0}, s{sN0}")
I(f"v_mov_b32 v204, s{sT0}")
I(f"v_mov_b32 v205, s{sT0}")
I(f"v_mov_b32 v206, s{sT0}")
I(f"v_mov_b32 v207, s{sT0}")
I(f"v_lshlrev_b32 v8, 4, v{vLANE}")
I(f"s_lshl_b32 s{sT3}, s{sH}, 5")
I(f"s_add_u32 s{sT3}, s{sT3}, s{sJ}")
I(f"s_lshl_b32 s{sT0}, s{sH}, 14")
I(f"s_lshl_b32 s{sT1}, s{sRQ}, 12")
I(f"s_add_u32 s{sT0}, s{sT0}, s{sT1}")
I(f"s_lshr_b32 s{sT1}, s{sJ}, 2")
I(f"s_lshl_b32 s{sT1}, s{sT1}, 9")
I(f"s_add_u32 s{sT0}, s{sT0}, s{sT1}")
I(f"s_lshl_b32 s{sT2}, s{sWAVE}, 7")
I(f"s_add_u32 s{sT0}, s{sT0}, s{sT2}")
I(f"s_add_u32 s{sT0}, s{sT0}, {WS_Q + FAST}")
I("s_mov_b64 exec, 0xff")
I(f"buffer_store_dwordx4 v[204:207], v8, {S4('h')}, s{sT0} offen")
I(f"s_cmp_eq_u32 s{sFFN}, 0")
I("s_cbranch_scc1 L_C0B")
I(f"s_lshl_b32 s{sT0}, s{sA}, 11")
I(f"s_lshl_b32 s{sT1}, s{sRQ}, 9")
I(f"s_add_u32 s{sT0}, s{sT0}, s{sT1}")
I(f"s_add_u32 s{sT0}, s{sT0}, s{sT2}")
I(f"s_add_u32 s{sT0}, s{sT0}, {WS_H + FAST}")
I(f"buffer_store_dwordx4 v[204:207], v8, {S4('h')}, s{sT0} offen")
L("L_C0B")
I("s_mov_b64 exec, -1")
I(f"s_cmp_eq_u32 s{sWAVE}, 1")
I("s_cbranch_scc1 L_C1")
I(f"s_cmp_eq_u32 s{sWAVE}, 2")
I("s_cbranch_scc1 L_C2")
I(f"s_cmp_eq_u32 s{sWAVE}, 3")
I("s_cbranch_scc1 L_C3")
I("s_mov_b32 exec_hi, 0")
I(f"s_lshl_b32 s{sT0}, s{sT3}, 9")
I(f"s_add_u32 s{sT0}, s{sT0}, {WS_T + FAST}")
I(f"buffer_store_dwordx4 v[204:207], v8, {S4('h')}, s{sT0} offen")
I("s_mov_b64 exec, -1")
I("s_barrier")
I("s_branch L_CQ")

L("L_C1")
I(f"s_lshl_b32 s{sT0}, s{sT3}, 12")
I(f"s_add_u32 s{sT0}, s{sT0}, {WS_O + FAST}")
for r in range(4):
    I(f"buffer_store_dwordx4 v[204:207], v8, {S4('h')}, s{sT0} offen offset:{r*1024}")
I("s_barrier")
I("s_branch L_CQ")

L("L_C2")
I("s_barrier")
I("s_waitcnt vmcnt(3)")
I("v_mov_b32 v9, 0")
for k in range(4):
    I(f"v_lshlrev_b32 v10, 16, v{16+k}")
    I(f"v_lshlrev_b32 v11, 16, v{20+k}")
    I(f"v_and_b32 v12, 0xffff0000, v{16+k}")
    I(f"v_and_b32 v13, 0xffff0000, v{20+k}")
    I("v_mul_f32 v10, v10, v11")
    I("v_mul_f32 v12, v12, v13")
    I("v_cvt_pk_bf16_f32 v10, v10, v12")
    I("v_lshlrev_b32 v11, 16, v10")
    I("v_and_b32 v12, 0xffff0000, v10")
    I("v_add_f32 v9, v9, v11")
    I("v_add_f32 v9, v9, v12")
xreduce(9, 10, "v_add_f32", (1, 2, 4, 8))
I("v_cvt_pk_bf16_f32 v9, v9, v9")
I("v_lshlrev_b32 v9, 16, v9")
I("v_mul_f32 v9, 0xbfb8aa3b, v9")
I("v_exp_f32 v9, v9")
nop(1)
I("v_add_f32 v9, 1.0, v9")
I("v_rcp_f32 v9, v9")
nop(1)
I("v_cvt_pk_bf16_f32 v9, v9, v9")
I("v_lshlrev_b32 v10, 16, v9")
I("v_sub_f32 v11, 1.0, v10")
I("v_cvt_pk_bf16_f32 v11, v11, v11")
I("v_lshlrev_b32 v11, 16, v11")
I("s_mov_b64 exec, 1")
I(f"ds_write_b64 v{vMISC}, v[10:11] offset:{M_G - R_M}")
I("s_mov_b64 exec, -1")
I("s_branch L_CQ")

L("L_C3")
I(f"s_lshl_b32 s{sT0}, s{sT3}, 12")
I(f"s_add_u32 s{sT0}, s{sT0}, {WS_R + FAST}")
for r in range(4):
    I(f"buffer_store_dwordx4 v[204:207], v8, {S4('h')}, s{sT0} offen offset:{r*1024}")
I("s_barrier")

def gemv_tile(acc, A0, B0):
    for k in range(3):
        I(f"ds_read2_b64 v[{A0+4*k}:{A0+4*k+3}], v{vGA} offset0:{k*8} offset1:{k*8+4}")
        I(f"ds_read_b64_tr_b16 v[{B0+4*k}:{B0+4*k+1}], v{vGB} offset:{k*4096}")
        I(f"ds_read_b64_tr_b16 v[{B0+4*k+2}:{B0+4*k+3}], v{vGB} offset:{k*4096+2048}")
    I(f"ds_read_b64 v[{A0+12}:{A0+13}], v{vGA} offset:192")
    I(f"ds_read_b64_tr_b16 v[{B0+12}:{B0+13}], v{vGB} offset:{3*4096}")
    for k in range(3):
        I(f"s_waitcnt lgkmcnt({8-3*k})")
        c = "0" if k == 0 else f"v[{acc}:{acc+3}]"
        I(f"v_mfma_f32_16x16x32_bf16 v[{acc}:{acc+3}], v[{A0+4*k}:{A0+4*k+3}], v[{B0+4*k}:{B0+4*k+3}], {c}")
    I("s_waitcnt lgkmcnt(0)")
    I(f"v_mfma_f32_16x16x16_bf16 v[{acc+4}:{acc+7}], v[{A0+12}:{A0+13}], v[{B0+12}:{B0+13}], 0")

def pairs16(acc, d):
    nop(8)
    I(f"v_add_f32 v{d}, v{acc}, v{acc+4}")
    nop(2)
    I(f"v_mov_b32_dpp v{d+1}, v{d} quad_perm:[1,0,3,2] row_mask:0xf bank_mask:0xf")

L("L_CQ")
if args.lonly:
    I("v_mov_b32 v9, 1")
    I("s_mov_b64 exec, 1")
    I(f"ds_add_u32 v{vMISC}, v9 offset:{M_QTASK - R_M}")
    I(f"ds_add_u32 v{vMISC}, v9 offset:{M_QKDONE - R_M}")
    I("s_branch L_CEND")
I(f"s_mul_i32 s{sT0}, s{sRQ}, 224")
I(f"s_add_u32 s{sT0}, s{sT0}, {R_X}")
I(f"v_lshlrev_b32 v{vGA}, 3, v{vG4}")
I(f"v_add_u32 v{vGA}, s{sT0}, v{vGA}")
I(f"v_bfe_u32 v10, v{vLANE}, 2, 2")
I(f"v_lshl_add_u32 v10, v{vG4}, 2, v10")
I("v_bfe_u32 v11, v10, 1, 2")
I(f"v_xor_b32 v11, s{sWAVE}, v11")
I("v_lshlrev_b32 v11, 5, v11")
I("v_lshl_add_u32 v11, v10, 7, v11")
I(f"v_and_b32 v10, 3, v{vLANE}")
I("v_lshl_add_u32 v11, v10, 3, v11")
I(f"v_add_u32 v{vGB}, {R_W}, v11")
I(f"s_lshl_b32 s{sT3}, s{sH}, 14")
I(f"s_lshl_b32 s{sT1}, s{sRQ}, 12")
I(f"s_add_u32 s{sT3}, s{sT3}, s{sT1}")
I(f"s_lshr_b32 s{sT1}, s{sJ}, 2")
I(f"s_lshl_b32 s{sT1}, s{sT1}, 9")
I(f"s_add_u32 s{sT3}, s{sT3}, s{sT1}")
I(f"s_lshl_b32 s{sT1}, s{sWAVE}, 7")
I(f"s_add_u32 s{sT3}, s{sT3}, s{sT1}")
I(f"s_add_u32 s{sT3}, s{sT3}, {WS_Q}")
I(f"v_lshlrev_b32 v132, 3, v{vLANE}")
spin_prog_all(vPROG, stage["WQ"], 136, sleep=0)
stamp(1)
I(f"s_getreg_b32 s{sWOK}, hwreg(HW_REG_XCC_ID, 0, 4)")
I(f"s_or_b32 s{sWOK}, s{sWOK}, s{sN0}")
I(f"v_mov_b32 v122, s{sWOK}")
I(f"v_mov_b32 v123, s{sN1}")
gemv_tile(112, 16, 32)
I("v_mov_b32 v9, 1")
I("s_mov_b64 exec, 1")
I(f"ds_add_u32 v{vMISC}, v9 offset:{M_QTASK - R_M}")
I("s_mov_b64 exec, -1")
pairs16(112, 120)
I("s_waitcnt vmcnt(0)")
I("s_mov_b64 exec, 0x5555")
fast_store(4, "v[120:123]", 132, sT3, sT1)
I("s_mov_b64 exec, -1")
stamp(2)
def q_slow():
    I("s_mov_b64 exec, 0x5555")
    slow_store(4, "v[120:123]", 132, sT3)
    I("s_mov_b64 exec, -1")
I(f"v_lshlrev_b32 v8, 4, v{vLANE}")
I(f"s_lshl_b32 s{sT1}, s{sWAVE}, 10")
I(f"s_lshl_b32 s{sT2}, s{sH}, 14")
I(f"s_add_u32 s{sT2}, s{sT2}, s{sT1}")
I(f"s_add_u32 s{sT2}, s{sT2}, {WS_Q}")
I(f"v_add_u32 v9, 4096, v8")
I(f"v_add_u32 v10, 8192, v8")
I(f"v_add_u32 v11, 12288, v8")
if args.noqpoll:
    I("s_branch L_QPOLL_DONE")
L("L_QPOLL")
I(f"s_sleep {args.qsleep}")
pick(sT1, sT2, q_slow)
for r in range(4):
    I(f"buffer_load_dwordx4 v[{16+4*r}:{19+4*r}], v{8+r}, {S4('h')}, s{sT1} offen sc1")
I("s_waitcnt vmcnt(0)")
for r in range(4):
    I(f"v_xor_b32 v{32+r}, s{sWOK}, v{18+4*r}")
    I(f"v_and_b32 v{18+4*r}, -16, v{18+4*r}")
tagcheck([16, 20, 24, 28], "L_QPOLL", "L_QPOLL_DONE")
L("L_QPOLL_DONE")
q_slow()
I("v_or3_b32 v32, v32, v33, v34")
I("v_or_b32 v32, v32, v35")
I("v_cmp_ne_u32 vcc, 0, v32")
I(f"s_mov_b32 s{sWOK}, 0")
I("s_cmp_lg_u64 vcc, 0")
I(f"s_cselect_b32 s{sT0}, 1, 0")
I(f"v_mov_b32 v33, s{sT0}")
I("s_mov_b64 exec, 1")
I(f"ds_add_u32 v{vMISC}, v33 offset:{M_REMOTE_OFF}")
I("s_mov_b64 exec, -1")
I(f"v_mov_b32 v122, s{sN0}")
I("v_add_f32 v16, v16, v20")
I("v_add_f32 v17, v17, v21")
I("v_add_f32 v24, v24, v28")
I("v_add_f32 v25, v25, v29")
I("v_add_f32 v16, v16, v24")
I("v_add_f32 v17, v17, v25")
I("v_cvt_pk_bf16_f32 v16, v16, v17")
I(f"s_lshl_b32 s{sT1}, s{sWAVE}, 8")
I(f"s_add_u32 s{sT1}, s{sT1}, {R_Q}")
I(f"v_lshlrev_b32 v9, 2, v{vLANE}")
I(f"v_add_u32 v9, s{sT1}, v9")
I("v_mov_b32 v10, 1")
I("ds_write_b32 v9, v16")
I("s_waitcnt lgkmcnt(0)")
I("s_mov_b64 exec, 1")
I(f"ds_add_u32 v{vMISC}, v10 offset:{M_QCNT - R_M}")
I("s_mov_b64 exec, -1")
stamp(3)
qA = 40
kB = 140
acc0, acc1 = 112, 116
I(f"v_and_b32 v8, 1, v{vLANE}")
I("v_lshlrev_b32 v8, 9, v8")
I(f"v_lshl_add_u32 v8, v{vG4}, 4, v8")
I(f"v_add_u32 v8, {R_Q}, v8")
I(f"v_and_b32 v9, 3, v{vN}")
I(f"v_xor_b32 v9, v{vG4}, v9")
I(f"v_and_b32 v10, 12, v{vN}")
I("v_or_b32 v9, v9, v10")
I("v_lshlrev_b32 v9, 4, v9")
I(f"v_lshl_add_u32 v9, v{vN}, 10, v9")
I(f"s_lshl_b32 s{sT0}, s{sWAVE}, 14")
I(f"v_add_u32 v9, s{sT0}, v9")
for q in range(1, 4):
    I(f"v_xor_b32 v{9+q}, {q*64}, v9")
I(f"s_add_u32 s{sT3}, s{sWAVE}, {stage['K0']}")
spin_prog_all(vPROG, f"s{sT3}", 136)
for t in range(2):
    for i in range(8):
        r = kB + (t*8+i)*4
        I(f"ds_read_b128 v[{r}:{r+3}], v{9+(i&3)} offset:{t*512 + (i>>2)*256}")
spin_lds_ge(vMISC, M_QCNT - R_M, 4, 13, sleep=0)
stamp(4)
I(f"ds_read_b32 v14, v{vMISC} offset:{M_REMOTE_OFF}")
for i in range(8):
    I(f"ds_read_b128 v[{qA+4*i}:{qA+4*i+3}], v8 offset:{i*64}")
for i in range(8):
    I(f"s_waitcnt lgkmcnt({7-i})")
    if i == 1:
        I(f"v_readfirstlane_b32 s{sFOFF}, v14")
        I(f"s_cmp_eq_u32 s{sFOFF}, 0")
        I(f"s_cselect_b32 s{sFOFF}, {FAST}, 0")
    for t in range(2):
        acc = acc0 if t == 0 else acc1
        r = kB + (t*8+i)*4
        c = "0" if i == 0 else f"v[{acc}:{acc+3}]"
        I(f"v_mfma_f32_16x16x32_bf16 v[{acc}:{acc+3}], v[{qA+4*i}:{qA+4*i+3}], v[{r}:{r+3}], {c}")
CEXP = "0x3db8aa3b"
I(f"s_mov_b32 s{sT2}, {CEXP}")
I(f"s_lshl_b32 s{sT1}, s{sWAVE}, 3")
I(f"v_mov_b32 v8, s{sT1}")
I(f"v_add_u32 v8, {M_MAX}, v8")
nop(5)
I(f"v_cvt_pk_bf16_f32 v120, v{acc0}, v{acc1}")
I(f"v_cvt_pk_bf16_f32 v121, v{acc0+1}, v{acc1+1}")
I("v_lshlrev_b32 v16, 16, v120")
I("v_and_b32 v17, 0xffff0000, v120")
I("v_lshlrev_b32 v18, 16, v121")
I("v_and_b32 v19, 0xffff0000, v121")
I("v_max_f32 v20, v16, v17")
I("v_max_f32 v21, v18, v19")
for r in (1, 2, 4, 8):
    nop(1)
    I(f"v_max_f32_dpp v20, v20, v20 row_ror:{r} row_mask:0xf bank_mask:0xf")
    I(f"v_max_f32_dpp v21, v21, v21 row_ror:{r} row_mask:0xf bank_mask:0xf")
I("v_mov_b32 v9, 1")
I("s_mov_b64 exec, 1")
I("ds_write_b64 v8, v[20:21]")
I("s_waitcnt lgkmcnt(0)")
I(f"ds_add_u32 v{vMISC}, v9 offset:{M_QKDONE - R_M}")
I("s_mov_b64 exec, -1")
spin_lds_ge(vMISC, M_QKDONE - R_M, 4, 13, sleep=0)
I(f"ds_read_b128 v[24:27], v{vMISC} offset:{M_MAX - R_M}")
I(f"ds_read_b128 v[28:31], v{vMISC} offset:{M_MAX - R_M + 16}")
I("s_waitcnt lgkmcnt(0)")
I("v_max_f32 v20, v24, v26")
I("v_max_f32 v21, v25, v27")
I("v_max3_f32 v20, v20, v28, v30")
I("v_max3_f32 v21, v21, v29, v31")
I("v_sub_f32 v16, v16, v20")
I("v_sub_f32 v17, v17, v20")
I("v_sub_f32 v18, v18, v21")
I("v_sub_f32 v19, v19, v21")
for k in range(4):
    I(f"v_mul_f32 v{16+k}, s{sT2}, v{16+k}")
for k in range(4):
    I(f"v_exp_f32 v{16+k}, v{16+k}")
nop(1)
I("v_cvt_pk_bf16_f32 v24, v16, v17")
I("v_cvt_pk_bf16_f32 v25, v18, v19")
I("v_add_f32 v22, v16, v17")
I("v_add_f32 v23, v18, v19")
I(f"s_lshl_b32 s{sT1}, s{sWAVE}, 6")
I(f"s_add_u32 s{sT1}, s{sT1}, {R_P}")
I(f"v_lshlrev_b32 v8, 2, v{vN}")
I(f"v_add_u32 v8, s{sT1}, v8")
I("s_mov_b64 exec, 0xffff")
I("ds_write_b32 v8, v24")
I("ds_write_b32 v8, v25 offset:256")
I("s_mov_b64 exec, -1")
for r in (1, 2, 4, 8):
    nop(1)
    I(f"v_add_f32_dpp v22, v22, v22 row_ror:{r} row_mask:0xf bank_mask:0xf")
    I(f"v_add_f32_dpp v23, v23, v23 row_ror:{r} row_mask:0xf bank_mask:0xf")
I("s_mov_b64 exec, 1")
I(f"ds_add_f32 v{vMISC}, v22 offset:{M_LSUM - R_M}")
I(f"ds_add_f32 v{vMISC}, v23 offset:{M_LSUM - R_M + 4}")
I("s_waitcnt lgkmcnt(0)")
I(f"ds_add_u32 v{vMISC}, v9 offset:{M_PCNT - R_M}")
I("s_mov_b64 exec, -1")
I(f"v_and_b32 v10, 1, v{vLANE}")
I("v_lshlrev_b32 v10, 8, v10")
I(f"v_lshl_add_u32 v10, v{vG4}, 3, v10")
I(f"v_add_u32 v10, {R_P}, v10")
I(f"v_bfe_u32 v11, v{vLANE}, 2, 2")
I(f"v_lshl_add_u32 v12, v{vG4}, 2, v11")
I("v_and_b32 v13, 7, v12")
I(f"s_lshl_b32 s{sT1}, s{sWAVE}, 2")
I(f"v_xor_b32 v13, s{sT1}, v13")
I("v_lshlrev_b32 v13, 5, v13")
I("v_lshl_add_u32 v13, v12, 9, v13")
I(f"v_and_b32 v14, 3, v{vLANE}")
I("v_lshl_add_u32 v13, v14, 3, v13")
I(f"v_add_u32 v32, {R_V}, v13")
for tt in range(1, 4):
    I(f"v_xor_b32 v{32+tt}, {tt*32}, v32")
I(f"v_mul_u32_u24 v134, {PITCH}, v12")
I("v_lshl_add_u32 v134, v14, 3, v134")
I(f"s_mul_i32 s{sT0}, s{sWAVE}, {7*32}")
I(f"v_add_u32 v134, s{sT0}, v134")
spin_lds_ge(vMISC, M_PCNT - R_M, 4, 13, sleep=0)
pA = 36
for s in range(4):
    I(f"ds_read2_b64 v[{pA+4*s}:{pA+4*s+3}], v10 offset0:{s*8} offset1:{s*8+4}")
I(f"ds_read_b64 v[220:221], v{vMISC} offset:{M_G - R_M}")
sk = newlabel("NOSTAT")
I(f"s_cmp_lg_u32 s{sWAVE}, 0")
I(f"s_cbranch_scc1 {sk}")
I(f"ds_read_b64 v[22:23], v{vMISC} offset:{M_LSUM - R_M}")
I(f"v_cmp_eq_u32 vcc, 1, v{vG4}")
I(f"s_lshl_b32 s{sT0}, s{sH}, 14")
I(f"s_lshl_b32 s{sT1}, s{sJ}, 4")
I(f"s_add_u32 s{sT0}, s{sT0}, s{sT1}")
I(f"s_add_u32 s{sT0}, s{sT0}, {WS_T}")
I(f"v_lshlrev_b32 v8, 9, v{vLANE}")
I("s_waitcnt lgkmcnt(0)")
I("v_cndmask_b32 v120, v20, v21, vcc")
I("v_cndmask_b32 v121, v22, v23, vcc")
I("s_mov_b32 exec_hi, 0")
pub_store(4, "v[120:123]", 8, sT0, sT1)
I("s_mov_b64 exec, -1")
L(sk)
G1, G2, G3, ODD = f"s[{sX0}:{sX0+1}]", f"s[{sMA}:{sMA+1}]", f"s[{sMB}:{sMB+1}]", f"s[{sX0+2}:{sX0+3}]"
I(f"v_cmp_eq_u32 {G2}, 2, v{vG4}")
I(f"v_cmp_eq_u32 {G3}, 3, v{vG4}")
I(f"v_cmp_eq_u32 {G1}, 1, v{vG4}")
I(f"v_and_b32 v8, 1, v{vLANE}")
I(f"v_cmp_eq_u32 {ODD}, 1, v8")
I(f"v_lshl_add_u32 v135, v8, 4, v{vG4}")
I("v_lshlrev_b32 v135, 12, v135")
I(f"v_lshrrev_b32 v10, 1, v{vN}")
I("v_lshl_add_u32 v135, v10, 4, v135")
I(f"s_lshl_b32 s{sOOFF}, s{sH}, 5")
I(f"s_lshl_b32 s{sT1}, s{sWAVE}, 2")
I(f"s_add_u32 s{sOOFF}, s{sOOFF}, s{sT1}")
I(f"s_lshl_b32 s{sOOFF}, s{sOOFF}, 12")
I(f"s_lshl_b32 s{sT1}, s{sJ}, 7")
I(f"s_add_u32 s{sOOFF}, s{sOOFF}, s{sT1}")
I(f"s_add_u32 s{sOOFF}, s{sOOFF}, {WS_O}")
stamp(5)
W1LATE = stage['W1'] > stage['V3']
def ffn1_block():
    I(f"s_cmp_eq_u32 s{sFFN}, 0")
    I("s_cbranch_scc1 L_NOFFN1")
    I(f"s_lshl_b32 s{sT2}, s{sA}, 11")
    I(f"s_lshl_b32 s{sT1}, s{sRQ}, 9")
    I(f"s_add_u32 s{sT2}, s{sT2}, s{sT1}")
    I(f"s_lshl_b32 s{sT1}, s{sWAVE}, 7")
    I(f"s_add_u32 s{sT2}, s{sT2}, s{sT1}")
    I(f"s_add_u32 s{sT2}, s{sT2}, {WS_H}")
    spin_prog_all(vPROG, stage["W1"], 136)
    gemv_tile(112, 140, 156)
    pairs16(112, 120)
    I("s_mov_b64 exec, 0x5555")
    pub_store(4, "v[120:123]", 132, sT2, sT1)
    I("s_mov_b64 exec, -1")
    L("L_NOFFN1")


if not W1LATE:
    ffn1_block()
sTS, sHS = 98, 99
I(f"s_lshl_b32 s{sTS}, s{sH}, 5")
I(f"s_add_u32 s{sTS}, s{sTS}, s{sJ}")
I(f"s_lshl_b32 s{sOG}, s{sTS}, 12")
I(f"s_lshl_b32 s{sTS}, s{sTS}, 9")
I(f"s_add_u32 s{sTS}, s{sTS}, {WS_T}")
I(f"s_add_u32 s{sTS}, s{sTS}, s{sFOFF}")
I(f"s_add_u32 s{sOG}, s{sOG}, s{sFOFF}")
I(f"v_bfe_u32 v14, v{vLANE}, 1, 3")
I("v_lshlrev_b32 v192, 4, v14")
I(f"v_and_b32 v15, 1, v{vLANE}")
I(f"v_lshl_add_u32 v15, v{vG4}, 1, v15")
I("v_lshlrev_b32 v15, 4, v15")
I("v_lshl_add_u32 v197, v14, 7, v15")
I(f"s_lshl_b32 s{sHS}, s{sA}, 11")
I(f"s_lshl_b32 s{sT1}, s{sRQ}, 7")
I(f"s_add_u32 s{sHS}, s{sHS}, s{sT1}")
I(f"s_add_u32 s{sHS}, s{sHS}, {WS_H}")
I(f"s_add_u32 s{sHS}, s{sHS}, s{sFOFF}")
I("v_and_b32 v14, 3, v14")
I("v_lshl_add_u32 v193, v14, 9, v15")
I(f"v_and_b32 v8, 1, v{vLANE}")
I(f"v_lshl_add_u32 v222, v8, 2, v{vG4}")
I("v_lshlrev_b32 v222, 12, v222")
I(f"v_lshrrev_b32 v10, 1, v{vN}")
I("v_lshl_add_u32 v222, v10, 4, v222")
I(f"s_mul_i32 s{sRP}, s{sWAVE}, 7")
I(f"s_lshl_b32 s{sT1}, s{sH}, 5")
I(f"s_add_u32 s{sRP}, s{sRP}, s{sT1}")
I(f"s_lshl_b32 s{sRP}, s{sRP}, 12")
I(f"s_lshl_b32 s{sT1}, s{sJ}, 7")
I(f"s_add_u32 s{sRP}, s{sRP}, s{sT1}")
I(f"s_add_u32 s{sRP}, s{sRP}, {WS_R}")
I(f"v_mov_b32 v126, s{sN0}")
I(f"v_mov_b32 v127, s{sN1}")
I(f"v_mov_b32 v202, s{sN0}")
I(f"v_mov_b32 v203, s{sN1}")
I(f"s_mov_b32 s{sDW}, 0")
ST = [172, 176, 180, 184]
HR = 188
def ror1(v, op, rors):
    for r in rors:
        nop(2)
        I(f"{op}_dpp v{v}, v{v}, v{v} row_ror:{r} row_mask:0xf bank_mask:0xf")
def ror2(v, w, op, rors):
    for r in rors:
        nop(1)
        I(f"{op}_dpp v{v}, v{v}, v{v} row_ror:{r} row_mask:0xf bank_mask:0xf")
        I(f"{op}_dpp v{w}, v{w}, v{w} row_ror:{r} row_mask:0xf bank_mask:0xf")
def stats_loads(soff):
    for r in range(4):
        I(f"buffer_load_dwordx4 v[{ST[r]}:{ST[r]+3}], v192, {S4('h')}, s{soff} offen offset:{r*128} sc1")
def stats_weights():
    I(f"v_max_f32 v194, v{ST[0]}, v{ST[1]}")
    I(f"v_max3_f32 v194, v194, v{ST[2]}, v{ST[3]}")
    ror1(194, "v_max_f32", (2, 4, 8))
    I(f"s_mov_b32 s{sT2}, {CEXP}")
    for r in ST:
        I(f"v_sub_f32 v{r}, v{r}, v194")
    for r in ST:
        I(f"v_mul_f32 v{r}, s{sT2}, v{r}")
    for r in ST:
        I(f"v_exp_f32 v{r}, v{r}")
    nop(1)
    I(f"v_mul_f32 v196, v{ST[0]}, v{ST[0]+1}")
    for r in ST[1:]:
        I(f"v_fmac_f32 v196, v{r}, v{r+1}")
    ror1(196, "v_add_f32", (2, 4, 8))
    I("v_rcp_f32 v196, v196")
    nop(1)
    for r in ST:
        I(f"v_mul_f32 v{r}, v{r}, v196")
    I(f"s_mov_b32 s{sWOK}, 1")
def pairs_to_A(vsrc, d0, d1):
    nop(2)
    I(f"v_mov_b32_dpp v{d0}, v{vsrc} quad_perm:[0,0,2,2] row_mask:0xf bank_mask:0xf")
    I(f"v_mov_b32_dpp v{d1}, v{vsrc} quad_perm:[1,1,3,3] row_mask:0xf bank_mask:0xf")
def h_compute():
    ror2(HR, HR+1, "v_add_f32", (2, 4))
    I(f"v_cvt_pk_bf16_f32 v{HR}, v{HR}, v{HR+1}")
    I(f"v_lshlrev_b32 v{HR+2}, 16, v{HR}")
    I(f"v_and_b32 v{HR+3}, 0xffff0000, v{HR}")
    I(f"v_lshlrev_b32 v194, 16, v{vB1}")
    I(f"v_and_b32 v195, 0xffff0000, v{vB1}")
    I(f"v_add_f32 v{HR+2}, v{HR+2}, v194")
    I(f"v_add_f32 v{HR+3}, v{HR+3}, v195")
    I(f"v_cvt_pk_bf16_f32 v{HR}, v{HR+2}, v{HR+3}")
    I(f"v_lshlrev_b32 v{HR+2}, 16, v{HR}")
    I(f"v_and_b32 v{HR+3}, 0xffff0000, v{HR}")
    I(f"v_max_f32 v{HR+2}, 0, v{HR+2}")
    I(f"v_max_f32 v{HR+3}, 0, v{HR+3}")
    I(f"v_mul_f32 v{HR+2}, v{HR+2}, v{HR+2}")
    I(f"v_mul_f32 v{HR+3}, v{HR+3}, v{HR+3}")
    I(f"v_cvt_pk_bf16_f32 v{HR}, v{HR+2}, v{HR+3}")
    pairs_to_A(HR, 198, 199)
    I(f"s_mov_b32 s{sHOK}, 1")

vB = 52
accO = 68
for s in range(4):
    spin_prog_all(vPROG, stage[f"V{s}"], 136, sleep=(1 if s < 3 else 0))
    for tt in range(4):
        I(f"ds_read_b64_tr_b16 v[{vB+4*tt}:{vB+4*tt+1}], v{32+tt} offset:{s*16384}")
        I(f"ds_read_b64_tr_b16 v[{vB+4*tt+2}:{vB+4*tt+3}], v{32+tt} offset:{s*16384+8192}")
    for tt in range(4):
        I(f"s_waitcnt lgkmcnt({6-2*tt})")
        c = "0" if s == 0 else f"v[{accO+4*tt}:{accO+4*tt+3}]"
        I(f"v_mfma_f32_16x16x32_bf16 v[{accO+4*tt}:{accO+4*tt+3}], v[{pA+4*s}:{pA+4*s+3}], v[{vB+4*tt}:{vB+4*tt+3}], {c}")
    if s == 1:
        stats_loads(sTS)
        if not W1LATE:
            I(f"buffer_load_dwordx4 v[{HR}:{HR+3}], v193, {S4('h')}, s{sHS} offen sc1")
    if s == 2:
        I("s_waitcnt vmcnt(0)")
        e1 = newlabel("E1")
        tagmask(ST)
        I("s_cmp_eq_u64 vcc, exec")
        I(f"s_cbranch_scc0 {e1}")
        stats_weights()
        L(e1)
        if not W1LATE:
            e2 = newlabel("E2")
            I(f"s_cmp_eq_u32 s{sFFN}, 0")
            I(f"s_cbranch_scc1 {e2}")
            tagmask([HR])
            I("s_cmp_eq_u64 vcc, exec")
            I(f"s_cbranch_scc0 {e2}")
            h_compute()
            L(e2)
stamp(6)
nop(6)
I(f"v_cndmask_b32 v16, v{accO}, v{accO+4}, {G1}")
I(f"v_cndmask_b32 v17, v{accO+1}, v{accO+5}, {G1}")
I(f"v_cndmask_b32 v16, v16, v{accO+8}, {G2}")
I(f"v_cndmask_b32 v17, v17, v{accO+9}, {G2}")
I(f"v_cndmask_b32 v16, v16, v{accO+12}, {G3}")
I(f"v_cndmask_b32 v17, v17, v{accO+13}, {G3}")
nop(1)
I("v_mov_b32_dpp v18, v16 quad_perm:[1,0,3,2] row_mask:0xf bank_mask:0xf")
I("v_mov_b32_dpp v19, v17 quad_perm:[1,0,3,2] row_mask:0xf bank_mask:0xf")
nop(1)
I(f"v_cndmask_b32 v200, v16, v19, {ODD}")
I(f"v_cndmask_b32 v201, v18, v17, {ODD}")
pub_store(4, "v[200:203]", 135, sOOFF, sT1)
stamp(7)
if W1LATE:
    ffn1_block()
I(f"s_cmp_lg_u32 s{sWOK}, 0")
I("s_cbranch_scc1 L_TOK")
L("L_TPOLL")
stats_loads(sTS)
I("s_waitcnt vmcnt(0)")
tagcheck(ST, "L_TPOLL", "L_TPOLL_DONE")
L("L_TPOLL_DONE")
stats_weights()
L("L_TOK")
accA = 68
accB = 96
wB = 140
w2B = 156
I(f"s_cmp_eq_u32 s{sFFN}, 0")
I("s_cbranch_scc1 L_HOK")
I(f"s_cmp_lg_u32 s{sHOK}, 0")
I("s_cbranch_scc1 L_HOK")
L("L_HPOLL")
I(f"buffer_load_dwordx4 v[{HR}:{HR+3}], v193, {S4('h')}, s{sHS} offen sc1")
I("s_waitcnt vmcnt(0)")
tagcheck([HR], "L_HPOLL", "L_HPOLL_DONE")
L("L_HPOLL_DONE")
h_compute()
L("L_HOK")
I(f"s_cmp_eq_u32 s{sFFN}, 0")
I(f"s_cselect_b32 s{sT3}, {stage['WO']}, {max(stage['WO'], stage['W2'])}")
I(f"s_add_u32 s{sT2}, s{sOG}, {WS_O}")
def weight_work():
    nf = newlabel("NF"); dn = newlabel("WD")
    for t in range(7):
        I(f"ds_read_b64_tr_b16 v[{wB+2*t}:{wB+2*t+1}], v134 offset:{t*32}")
    I(f"s_cmp_eq_u32 s{sFFN}, 0")
    I(f"s_cbranch_scc1 {nf}")
    for t in range(7):
        I(f"ds_read_b64_tr_b16 v[{w2B+2*t}:{w2B+2*t+1}], v134 offset:{16*PITCH + t*32}")
    for t in range(7):
        I(f"s_waitcnt lgkmcnt({6-t})")
        I(f"v_mfma_f32_16x16x16_bf16 v[{accB+4*t}:{accB+4*t+3}], v[198:199], v[{w2B+2*t}:{w2B+2*t+1}], 0")
    nop(3)
    for t in range(7):
        if t == 6:
            nop(2)
        I(f"v_mul_f32 v{accB+4*t}, v221, v{accB+4*t}")
    I(f"s_branch {dn}")
    L(nf)
    for t in range(7):
        I(f"v_mov_b32 v{accB+4*t}, 0")
    L(dn)
    I(f"s_mov_b32 s{sDW}, 1")
L("L_OPOLL")
for r in range(4):
    I(f"buffer_load_dwordx4 v[{48+4*r}:{51+4*r}], v197, {S4('h')}, s{sT2} offen offset:{r*1024} sc1")
I(f"s_cmp_lg_u32 s{sDW}, 0")
I("s_cbranch_scc1 L_OCHK")
I(f"ds_read_b128 v[136:139], v{vPROG}")
I("s_waitcnt lgkmcnt(0)")
I("v_min3_u32 v136, v136, v137, v138")
I("v_min_u32 v136, v136, v139")
nop(1)
I(f"v_readfirstlane_b32 s{sT0}, v136")
I(f"s_cmp_ge_u32 s{sT0}, s{sT3}")
I("s_cbranch_scc0 L_OCHK")
weight_work()
I("s_branch L_OPOLL")
L("L_OCHK")
I("s_waitcnt vmcnt(0)")
tagcheck([48, 52, 56, 60], "L_OPOLL", "L_OPOLL_DONE")
L("L_OPOLL_DONE")
stamp(8)
I(f"v_mul_f32 v40, v{ST[0]}, v48")
I(f"v_mul_f32 v41, v{ST[0]}, v49")
for r in range(1, 4):
    I(f"v_fmac_f32 v40, v{ST[r]}, v{48+4*r}")
    I(f"v_fmac_f32 v41, v{ST[r]}, v{49+4*r}")
ror2(40, 41, "v_add_f32", (2, 4, 8))
I("v_cvt_pk_bf16_f32 v40, v40, v41")
pairs_to_A(40, 46, 47)
I(f"s_cmp_lg_u32 s{sDW}, 0")
I("s_cbranch_scc1 L_WDONE")
spin_prog_all(vPROG, f"s{sT3}", 136, sleep=0)
weight_work()
L("L_WDONE")
I("s_waitcnt lgkmcnt(0)")
for t in range(7):
    I(f"v_mfma_f32_16x16x16_bf16 v[{accA+4*t}:{accA+4*t+3}], v[46:47], v[{wB+2*t}:{wB+2*t+1}], 0")
nop(3)
for t in range(7):
    if t == 6:
        nop(1)
    I(f"v_fmac_f32 v{accB+4*t}, v220, v{accA+4*t}")
stamp(9)
I(f"v_cndmask_b32 v16, v{accB}, v{accB+4}, {G1}")
I(f"v_cndmask_b32 v17, v{accB+16}, v{accB+20}, {G1}")
I(f"v_cndmask_b32 v16, v16, v{accB+8}, {G2}")
I(f"v_cndmask_b32 v17, v17, v{accB+24}, {G2}")
I(f"v_cndmask_b32 v16, v16, v{accB+12}, {G3}")
nop(2)
I("v_mov_b32_dpp v18, v16 quad_perm:[1,0,3,2] row_mask:0xf bank_mask:0xf")
I("v_mov_b32_dpp v19, v17 quad_perm:[1,0,3,2] row_mask:0xf bank_mask:0xf")
nop(1)
I(f"v_cndmask_b32 v124, v16, v19, {ODD}")
I(f"v_cndmask_b32 v125, v18, v17, {ODD}")
I("s_mov_b32 exec_hi, 0x5555ffff")
pub_store(4, "v[124:127]", 222, sRP, sT1)
I("s_mov_b64 exec, -1")
stamp(10)
I(f"s_cmp_eq_u32 s{sWAVE}, 0")
I(f"s_cselect_b32 s{sT0}, s{sJ}, 99")
I(f"s_cmp_lt_u32 s{sT0}, 28")
I("s_cbranch_scc0 L_CEND")
I(f"s_add_u32 s{sT3}, s{sOG}, {WS_R}")
I(f"s_lshl_b32 s{sT2}, s{sJ}, 10")
I(f"s_add_u32 s{sT2}, s{sT2}, {WS_P2}")
I(f"s_lshl_b32 s{sT1}, s{sH}, 7")
I(f"s_add_u32 s{sT1}, s{sT1}, s{sT2}")
L("L_RPOLL")
for r in range(4):
    I(f"buffer_load_dwordx4 v[{48+4*r}:{51+4*r}], v197, {S4('h')}, s{sT3} offen offset:{r*1024} sc1")
I("s_waitcnt vmcnt(0)")
tagcheck([48, 52, 56, 60], "L_RPOLL", "L_RPOLL_DONE")
L("L_RPOLL_DONE")
I("v_add_f32 v48, v48, v52")
I("v_add_f32 v49, v49, v53")
I("v_add_f32 v56, v56, v60")
I("v_add_f32 v57, v57, v61")
I("v_add_f32 v48, v48, v56")
I("v_add_f32 v49, v49, v57")
ror2(48, 49, "v_add_f32", (2, 4, 8))
I(f"v_mov_b32 v50, s{sN0}")
I(f"v_mov_b32 v51, s{sN1}")
I("s_mov_b32 exec_lo, 0x00030003")
I("s_mov_b32 exec_hi, 0x00030003")
I(f"buffer_store_dwordx4 v[48:51], v197, {S4('h')}, s{sT1} offen sc1")
I("s_mov_b64 exec, -1")
stamp(11)
I(f"s_and_b32 s{sT0}, s{sJ}, 7")
I(f"s_cmp_eq_u32 s{sT0}, s{sH}")
I("s_cbranch_scc0 L_CEND")
I(f"v_lshlrev_b32 v22, 16, v{vB2}")
I(f"v_and_b32 v23, 0xffff0000, v{vB2}")
L("L_FPOLL")
I(f"buffer_load_dwordx4 v[16:19], v197, {S4('h')}, s{sT2} offen sc1")
I("s_waitcnt vmcnt(0)")
tagcheck([16], "L_FPOLL", "L_FPOLL_DONE")
L("L_FPOLL_DONE")
ror2(16, 17, "v_add_f32", (2, 4, 8))
I("v_fmac_f32 v16, v221, v22")
I("v_fmac_f32 v17, v221, v23")
I("v_cvt_pk_bf16_f32 v16, v16, v17")
I("s_mov_b32 exec_lo, 0x00030003")
I("s_mov_b32 exec_hi, 0x00030003")
I(f"buffer_store_dword v16, v133, {S4('f')}, 0 offen")
I(f"s_cmp_lg_u32 s2, 0")
I("s_cbranch_scc1 L_NOEP")
I(f"s_memrealtime s[96:97]")
I(f"v_mov_b32 v8, {WS_E}")
I("s_waitcnt lgkmcnt(0)")
I(f"v_mov_b32 v12, s96")
I(f"v_mov_b32 v13, s97")
I("s_mov_b64 exec, 1")
I(f"buffer_store_dwordx2 v[12:13], v8, {S4('h')}, 0 offen sc1")
L("L_NOEP")
stamp(12)
L("L_CEND")
stamp_flush(cons=True)
L("L_END")
I("s_endpgm")
L("L_CODE_END")
if not args.nopf:
    A(".set CODE_BYTES_AFTER_PC, L_CODE_END - L_PC")
A('.section .rodata,"a"')
A(".p2align 6")
A(f".amdhsa_kernel {NAME}")
A("  .amdhsa_next_free_vgpr 256")
A("  .amdhsa_next_free_sgpr 102")
A("  .amdhsa_accum_offset 256")
A("  .amdhsa_group_segment_fixed_size 0")
A("  .amdhsa_kernarg_size 112")
A("  .amdhsa_user_sgpr_count 2")
A("  .amdhsa_user_sgpr_kernarg_segment_ptr 1")
A("  .amdhsa_system_sgpr_workgroup_id_x 1")
A(".end_amdhsa_kernel")
txt = "\n".join(out)
import re
if args.nopre:
    txt = re.sub(r"    buffer_store_dwordx4 v\[204:207\], .*\n", "", txt)
if args.preload:
    import re
    txt = re.sub(r"buffer_store_dwordx4 v\[204:207\], (v8, s\[72:75\], s10 offen(?: offset:\d+)?)", r"buffer_load_dwordx4 v[208:211], \1 sc1", txt)
if args.nont:
    txt = txt.replace(" nt lds", " lds")
print(txt)
```

```python
import sys, argparse

ap = argparse.ArgumentParser()
ap.add_argument("--W", type=int, default=7)
ap.add_argument("--stamps", action="store_true")
ap.add_argument("--name", default="gated_mix__sliding_block_cached__dense_activation_squared_relu__decode_kernel")
ap.add_argument("--spin", type=int, default=1 << 22)
ap.add_argument("--qsleep", type=int, default=4)
ap.add_argument("--fsleep", type=int, default=0)
ap.add_argument("--slowmask", type=int, default=31)
ap.add_argument("--order", default="K,W1,V,WO,W2")
ap.add_argument("--rotmul", type=int, default=7)
ap.add_argument("--nont", action="store_true")
ap.add_argument("--nopf", action="store_true")
ap.add_argument("--WF", type=int, default=0)
ap.add_argument("--preload", action="store_true")
ap.add_argument("--noqpoll", action="store_true")
ap.add_argument("--nopre", action="store_true")
ap.add_argument("--lonly", action="store_true")
ap.add_argument("--dbgstamps", action="store_true")
ap.add_argument("--perm", type=int, default=0)
ap.add_argument("--qgate", default="")
ap.add_argument("--WT", type=int, default=0)
ap.add_argument("--WV", type=int, default=0)
ap.add_argument("--NPRE", type=int, default=-1)
args = ap.parse_args()
W = args.W
STAMPS = args.stamps or args.dbgstamps
NAME = args.name

out = []
def A(s=""):
    out.append(s)
def I(s):
    out.append("    " + s)
def L(s):
    out.append(s + ":")
def nop(n):
    if n > 0:
        I(f"s_nop {n-1}")

PITCH = 928
R_A = 0
R_V = 65536
R_W = R_V + 65536
R_X = R_W + 14336
R_Q = R_X + 1024
R_P = R_Q + 1024
R_F = R_P + 512
R_M = R_F + 1024
M_MAX = R_M
M_LSUM = R_M + 32
M_QCNT = R_M + 256
M_NONCEFLAG = R_M + 260
M_QKDONE = R_M + 264
M_PCNT = R_M + 268
M_QTASK = R_M + 276
M_FCNT = R_M + 280
M_FSUM = R_M + 288
M_NONCE = R_M + 304
M_G = R_M + 320
LDS_TOTAL = R_M + 512
assert LDS_TOTAL <= 163840, LDS_TOTAL

WS_Q = 0x000000
WS_H = 0x040000
WS_T = 0x060000
WS_P2 = 0x0A0000
WS_O = 0x100000
WS_R = 0x200000
WS_E = 0x300000
WS_STAMP = 0x400000
FAST = 0x800000
WS_RANGE = 0x1000000

order = args.order.split(",")
stage = {"WQ": 1}
n = 2
for o in order:
    if o in ("K", "V"):
        for q in range(4):
            stage[f"{o}{q}"] = n; n += 1
    elif o in ("Va", "Vb"):
        for q in (range(3) if o == "Va" else range(3, 4)):
            stage[f"V{q}"] = n; n += 1
    else:
        stage[o] = n; n += 1

sWAVE, sH, sJ, sHH, sRQ, sA, sFFN = 3, 4, 5, 6, 7, 8, 9
sT0, sT1, sT2, sT3 = 10, 11, 12, 13
sSPIN = 14
sRND = 15
SRD = {}
def S4(name):
    b = SRD[name]
    return f"s[{b}:{b+3}]"
for i, nm in enumerate(["a", "b", "c", "d", "e", "f", "g", "h"]):
    SRD[nm] = 44 + 4 * i
sN0, sN1 = 76, 77
sMA, sMB = 78, 80
sX0 = 82
sWOK, sHOK = 90, 91
sOOFF, sFOFF = 100, 101
sOG, sRP, sDW, sDF = 92, 93, 94, 95
M_REMOTE_OFF = 272

def build_srd(name, plo, off_sgpr, size):
    b = SRD[name]
    if off_sgpr is None:
        I(f"s_mov_b32 s{b}, s{plo}")
        I(f"s_mov_b32 s{b+1}, s{plo+1}")
    else:
        I(f"s_add_u32 s{b}, s{plo}, s{off_sgpr}")
        I(f"s_addc_u32 s{b+1}, s{plo+1}, 0")
    I(f"s_mov_b32 s{b+2}, {size}")
    I(f"s_mov_b32 s{b+3}, 0x00020000")

def stamp(k):
    if STAMPS:
        I(f"s_memrealtime s[{16+2*k}:{17+2*k}]")

def stamp_flush(n=14, cons=False):
    if not STAMPS:
        return
    if args.dbgstamps:
        if not cons:
            return
        sk = "L_NODBG"
        I(f"s_cmp_lg_u32 s2, 0")
        I(f"s_cbranch_scc1 {sk}")
        I(f"s_cmp_lg_u32 s{sWAVE}, 0")
        I(f"s_cbranch_scc1 {sk}")
        I("s_waitcnt lgkmcnt(0)")
        I("s_mov_b64 exec, 1")
        for k in range(13):
            I(f"s_sub_u32 s{sT0}, s{16+2*k}, s{SRD['b']}")
            I(f"v_mov_b32 v{232+k}, s{sT0}")
        I("v_mov_b32 v248, 0")
        for k in range(0, 12, 4):
            I(f"buffer_store_dwordx4 v[{232+k}:{235+k}], v248, {S4('g')}, 0 offen offset:{4*k}")
        I(f"buffer_store_dword v244, v248, {S4('g')}, 0 offen offset:48")
        L(sk)
        return
    I("s_waitcnt lgkmcnt(0)")
    I("s_mov_b64 exec, 1")
    for k in range(16):
        I(f"v_mov_b32 v{232+k}, s{16+2*min(k,n-1)}")
    for k in range(0, 16, 4):
        I(f"buffer_store_dwordx4 v[{232+k}:{235+k}], v253, {S4('h')}, 0 offen offset:{4*k}")

lbl = [0]
def newlabel(p="L"):
    lbl[0] += 1
    return f"{p}_{lbl[0]}"

def spin_lds_ge(vaddr, off, val, vt, sleep=1):
    l = newlabel("SP"); d = newlabel("SD")
    L(l)
    I(f"ds_read_b32 v{vt}, v{vaddr} offset:{off}")
    I("s_waitcnt lgkmcnt(0)")
    I(f"v_readfirstlane_b32 s{sT0}, v{vt}")
    I(f"s_cmp_ge_u32 s{sT0}, {val}")
    I(f"s_cbranch_scc1 {d}")
    if sleep:
        I(f"s_sleep {sleep}")
    I(f"s_branch {l}")
    L(d)

def spin_prog_all(vaddr, val, vt, sleep=1):
    l = newlabel("SP"); d = newlabel("SD")
    L(l)
    I(f"ds_read_b128 v[{vt}:{vt+3}], v{vaddr}")
    I("s_waitcnt lgkmcnt(0)")
    I(f"v_min3_u32 v{vt}, v{vt}, v{vt+1}, v{vt+2}")
    I(f"v_min_u32 v{vt}, v{vt}, v{vt+3}")
    nop(1)
    I(f"v_readfirstlane_b32 s{sT0}, v{vt}")
    I(f"s_cmp_ge_u32 s{sT0}, {val}")
    I(f"s_cbranch_scc1 {d}")
    if sleep:
        I(f"s_sleep {sleep}")
    I(f"s_branch {l}")
    L(d)

def xreduce(v, t, op, rors, swaps=("v_permlane16_swap_b32", "v_permlane32_swap_b32")):
    for r in rors:
        nop(2)
        I(f"{op}_dpp v{v}, v{v}, v{v} row_ror:{r} row_mask:0xf bank_mask:0xf")
    for sw in swaps:
        I(f"v_mov_b32 v{t}, v{v}")
        nop(2)
        I(f"{sw} v{v}, v{t}")
        nop(1)
        I(f"{op} v{v}, v{v}, v{t}")

def xreduce2(v, w, t, u, op, rors, swaps=("v_permlane16_swap_b32", "v_permlane32_swap_b32")):
    for r in rors:
        nop(1)
        I(f"{op}_dpp v{v}, v{v}, v{v} row_ror:{r} row_mask:0xf bank_mask:0xf")
        I(f"{op}_dpp v{w}, v{w}, v{w} row_ror:{r} row_mask:0xf bank_mask:0xf")
    for sw in swaps:
        I(f"v_mov_b32 v{t}, v{v}")
        I(f"v_mov_b32 v{u}, v{w}")
        nop(1)
        I(f"{sw} v{v}, v{t}")
        I(f"{sw} v{w}, v{u}")
        nop(1)
        I(f"{op} v{v}, v{v}, v{t}")
        I(f"{op} v{w}, v{w}, v{u}")

def pick(sdst, sbase, on_slow=None):
    I(f"s_add_u32 s{sRND}, s{sRND}, 1")
    I(f"s_and_b32 s{sdst}, s{sRND}, {args.slowmask}")
    I(f"s_cmp_eq_u32 s{sdst}, 0")
    if on_slow is not None:
        f = newlabel("PF")
        I(f"s_cbranch_scc0 {f}")
        on_slow()
        I(f"s_cmp_eq_u32 0, 0")
        L(f)
    I(f"s_cselect_b32 s{sdst}, 0, {FAST}")
    I(f"s_add_u32 s{sdst}, s{sdst}, s{sbase}")

def fast_store(nn, data, vaddr, soff, stmp):
    I(f"s_add_u32 s{stmp}, s{soff}, {FAST}")
    I(f"buffer_store_dwordx{nn} {data}, v{vaddr}, {S4('h')}, s{stmp} offen")
def slow_store(nn, data, vaddr, soff):
    I(f"buffer_store_dwordx{nn} {data}, v{vaddr}, {S4('h')}, s{soff} offen sc1")

def pub_store(nn, data, vaddr, soff, stmp):
    f = newlabel("PS"); d = newlabel("PD")
    I(f"s_add_u32 s{stmp}, s{soff}, s{sFOFF}")
    I(f"s_cmp_eq_u32 s{sFOFF}, 0")
    I(f"s_cbranch_scc1 {f}")
    I(f"buffer_store_dwordx{nn} {data}, v{vaddr}, {S4('h')}, s{stmp} offen")
    I(f"s_branch {d}")
    L(f)
    I(f"buffer_store_dwordx{nn} {data}, v{vaddr}, {S4('h')}, s{stmp} offen sc1")
    L(d)

def tagmask(regs):
    I(f"v_cmp_eq_u64 vcc, s[{sN0}:{sN1}], v[{regs[0]+2}:{regs[0]+3}]")
    for r in regs[1:]:
        I(f"v_cmp_eq_u64 s[{sX0+4}:{sX0+5}], s[{sN0}:{sN1}], v[{r+2}:{r+3}]")
        I(f"s_and_b64 vcc, vcc, s[{sX0+4}:{sX0+5}]")

def tagcheck(regs, loop, done):
    tagmask(regs)
    I(f"s_sub_u32 s{sSPIN}, s{sSPIN}, 1")
    I(f"s_cbranch_scc1 {done}")
    I("s_cmp_eq_u64 vcc, exec")
    I(f"s_cbranch_scc0 {loop}")

A(f"; @launch grid=(256,1,1) block=(512,1,1) lds={LDS_TOTAL}")
A('.amdgcn_target "amdgcn-amd-amdhsa--gfx950"')
A(".text")
A(f".globl {NAME}")
A(".p2align 8")
A(f".type {NAME},@function")
L(NAME)
I("s_cmp_ge_u32 s2, 256")
I("s_cbranch_scc1 L_END")
if args.dbgstamps:
    I("s_memrealtime s[96:97]")
if args.perm == 1:
    I("s_lshr_b32 s3, s2, 3")
    I("s_and_b32 s2, s2, 7")
    I("s_lshl_b32 s2, s2, 5")
    I("s_or_b32 s2, s2, s3")
elif args.perm == 2:
    I("s_xor_b32 s3, s2, 1")
    I("s_cmp_lt_u32 s2, 4")
    I("s_cselect_b32 s2, s3, s2")
I("s_load_dwordx16 s[16:31], s[0:1], 0")
I("s_load_dwordx8 s[32:39], s[0:1], 64")
I("s_load_dwordx4 s[40:43], s[0:1], 96")
I("v_lshrrev_b32 v2, 6, v0")
I("v_and_b32 v1, 63, v0")
I(f"s_and_b32 s{sH}, s2, 7")
I(f"v_readfirstlane_b32 s{sWAVE}, v2")
I(f"s_lshr_b32 s{sJ}, s2, 3")
if not args.nopf:
    I("s_getpc_b64 s[92:93]")
    L("L_PC")
    I(f"s_lshl_b32 s{sT0}, s{sJ}, 3")
    I(f"s_add_u32 s{sT0}, s{sT0}, s{sWAVE}")
    I(f"s_mul_i32 s{sT1}, s{sT0}, 0x1556")
    I(f"s_lshr_b32 s{sT1}, s{sT1}, 16")
    I(f"s_mul_i32 s{sT1}, s{sT1}, 12")
    I(f"s_sub_u32 s{sT0}, s{sT0}, s{sT1}")
    I(f"s_lshl_b32 s{sT0}, s{sT0}, 10")
    I(f"v_lshl_add_u32 v254, v1, 4, s{sT0}")
    I(f"v_min_u32 v254, CODE_BYTES_AFTER_PC-16, v254")
    I("global_load_dwordx4 v[248:251], v254, s[92:93]")
I(f"s_lshr_b32 s{sHH}, s{sJ}, 4")
I(f"s_and_b32 s{sRQ}, s{sJ}, 3")
I(f"s_lshr_b32 s{sA}, s{sJ}, 2")
I(f"s_lshl_b32 s{sA}, s{sA}, 3")
I(f"s_add_u32 s{sA}, s{sA}, s{sH}")
I(f"s_cmp_lt_u32 s{sA}, 28")
I(f"s_cselect_b32 s{sFFN}, 1, 0")
I(f"s_cselect_b32 s{sA}, s{sA}, 0")
if STAMPS:
    I(f"s_lshl_b32 s{sT0}, s2, 3")
    I(f"s_add_u32 s{sT0}, s{sT0}, s{sWAVE}")
    I(f"s_lshl_b32 s{sT0}, s{sT0}, 7")
    I(f"s_add_u32 s{sT0}, s{sT0}, {WS_STAMP}")
    I(f"v_mov_b32 v253, s{sT0}")
I(f"s_cmp_lt_u32 s{sWAVE}, 4")
I("s_cbranch_scc1 L_CONS")

vLANE = 1
vG4 = 3
vN = 4
vMISC = 5
vPROG = 6

sL = sX0
I(f"s_sub_u32 s{sL}, s{sWAVE}, 4")
I(f"v_lshrrev_b32 v6, 3, v{vLANE}")
I("v_bfe_u32 v7, v6, 1, 2")
I("v_lshlrev_b32 v7, 1, v7")
I(f"v_and_b32 v11, 7, v{vLANE}")
I("v_xor_b32 v11, v11, v7")
I("v_lshlrev_b32 v11, 4, v11")
I(f"s_lshl_b32 s{sT0}, s{sL}, 3")
I(f"v_add_u32 v6, s{sT0}, v6")
I("v_lshl_add_u32 v7, v6, 13, v11")
I("v_mul_u32_u24 v10, 3584, v6")
I("v_add_u32 v10, v10, v11")
I(f"v_lshrrev_b32 v13, 5, v{vLANE}")
I("v_lshlrev_b32 v8, 9, v13")
I(f"v_and_b32 v9, 31, v{vLANE}")
I("v_lshl_add_u32 v8, v9, 4, v8")
I(f"s_lshl_b32 s{sT0}, s{sL}, 1")
I(f"v_add_u32 v13, s{sT0}, v13")
I("v_lshlrev_b32 v13, 5, v13")
I("v_xor_b32 v9, v8, v13")
I(f"s_lshl_b32 s{sT0}, s{sL}, 4")
I(f"v_xor_b32 v8, s{sT0}, v8")
I(f"v_lshlrev_b32 v11, 4, v{vLANE}")
I(f"s_lshl_b32 s{sT0}, s{sL}, 2")
I(f"s_add_u32 s{sT0}, s{sT0}, {R_F}")
I(f"v_add_u32 v12, s{sT0}, v11")
I(f"v_mov_b32 v{vMISC}, {R_M}")
sLK, sLV, sLW, sLO, sGO, sI3, sROT = sX0+1, sX0+2, sX0+3, sX0+4, sX0+5, sX0+6, sX0+7
I(f"s_lshl_b32 s{sLK}, s{sL}, 10")
I(f"s_add_u32 s{sLV}, s{sLK}, {R_V}")
I(f"s_add_u32 s{sLW}, s{sLK}, {R_W}")
I(f"s_mul_i32 s{sLO}, s{sL}, {4*PITCH}")
I(f"s_mul_i32 s{sGO}, s{sL}, {4*896}")
I(f"s_cmp_ge_u32 s{sL}, 2")
I(f"s_cselect_b32 s{sI3}, 2, 3")
I(f"s_mul_i32 s{sROT}, s2, {args.rotmul}")
I(f"s_add_u32 s{sROT}, s{sROT}, s{sL}")
I(f"s_lshl_b32 s{sROT}, s{sROT}, 10")
I(f"s_mul_i32 s{sT2}, s{sRQ}, {112*8192}")
I(f"s_lshl_b32 s{sT1}, s{sH}, 10")
I(f"s_add_u32 s{sT2}, s{sT2}, s{sT1}")
I(f"s_lshr_b32 s{sT1}, s{sJ}, 2")
I(f"s_lshl_b32 s{sT1}, s{sT1}, 7")
I(f"s_add_u32 s{sT2}, s{sT2}, s{sT1}")
I(f"s_sub_u32 s{sT1}, {448*8192}, s{sT2}")
I(f"s_lshl_b32 s{sT3}, s{sH}, 25")
I(f"s_add_u32 s{sT3}, s{sT3}, 0x1E00000")
I(f"s_lshl_b32 s{sT0}, s{sJ}, 16")
I(f"s_add_u32 s{sT3}, s{sT3}, s{sT0}")
I("s_waitcnt lgkmcnt(0)")
build_srd("f", 22, sT2, f"s{sT1}")
def issue_w(i, srdn, vaddr, rowbytes):
    if i == 3:
        I(f"s_lshl_b32 s{sT0}, s{sI3}, 12")
        I(f"s_add_u32 m0, s{sLW}, s{sT0}")
        I(f"s_mul_i32 s{sT0}, s{sI3}, {32*rowbytes}")
    else:
        I(f"s_add_u32 m0, s{sLW}, {i*4096}")
        I(f"s_mov_b32 s{sT0}, {i*32*rowbytes}")
    I(f"buffer_load_dwordx4 v{vaddr}, {S4(srdn)}, s{sT0} offen nt lds")
for i in range(3):
    issue_w(i, "f", 7, 8192)
build_srd("g", 16, None, 896)
I(f"s_cmp_eq_u32 s{sL}, 3")
I("s_cbranch_scc1 L_LX")
issue_w(3, "f", 7, 8192)
I("s_branch L_LX2")
L("L_LX")
I(f"s_mov_b32 m0, {R_X}")
I("s_nop 0")
I(f"buffer_load_dwordx4 v11, {S4('g')}, 0 offen lds")
L("L_LX2")
build_srd("a", 18, sT3, 65536)
def issue_k(i):
    I(f"v_xor_b32 v13, {(4*(i & 3)) << 4}, v8")
    I(f"s_add_u32 m0, s{sLK}, {i*4096}")
    I(f"s_add_u32 s{sT0}, s{sROT}, {i*4096}")
    I(f"s_and_b32 s{sT0}, s{sT0}, 0xffff")
    I(f"buffer_load_dwordx4 v13, {S4('a')}, s{sT0} offen nt lds")
NPRE = max(0, W - 4) if args.NPRE < 0 else args.NPRE
assert order[0] == "K"
for i in range(NPRE):
    issue_k(i)
build_srd("b", 20, sT3, 65536)
I(f"s_mul_i32 s{sT1}, s{sRQ}, {112*3584}")
I(f"s_lshl_b32 s{sT2}, s{sA}, 7")
I(f"s_add_u32 s{sT1}, s{sT1}, s{sT2}")
I(f"s_sub_u32 s{sT2}, {448*3584}, s{sT1}")
build_srd("c", 28, sT1, f"s{sT2}")
I(f"s_lshl_b32 s{sT1}, s{sH}, 9")
I(f"s_lshl_b32 s{sT2}, s{sJ}, 4")
I(f"s_add_u32 s{sT1}, s{sT1}, s{sT2}")
I(f"s_mul_i32 s{sT1}, s{sT1}, 896")
build_srd("d", 24, sT1, 16*896)
I(f"s_lshl_b32 s{sT1}, s{sA}, 2")
I(f"s_add_u32 s{sT1}, s{sT1}, s{sRQ}")
I(f"s_mul_i32 s{sT1}, s{sT1}, {16*896}")
build_srd("e", 32, sT1, 16*896)
build_srd("h", 42, None, hex(WS_RANGE))
stamp(0)
I("s_barrier")

def loader_stream(ffn, start_p, stop_kind=None):
    pass

def make_seq(ffn):
    seq = [("WQ", i) for i in range(4)]
    for o in order:
        if o == "K": seq += [("K", i) for i in range(16)]
        elif o == "V": seq += [("V", i) for i in range(16)]
        elif o == "Va": seq += [("V", i) for i in range(12)]
        elif o == "Vb": seq += [("V", i) for i in range(12, 16)]
        elif o == "W1" and ffn: seq += [("W1", i) for i in range(4)]
        elif o == "WO": seq += [("WO", i) for i in range(4)]
        elif o == "W2" and ffn: seq += [("W2", i) for i in range(4)]
    return seq

def emit_stream(seq, p0, p1, st, W=W):
    stages = st["stages"]
    def flag(s_):
        I(f"v_mov_b32 v14, {s_}")
        I("ds_write_b32 v12, v14")
        if s_ <= 13:
            stamp(s_)
    for p in range(p0, p1):
        k, i = seq[p]
        Wp = W
        if k in ("WO", "W2") and args.WT:
            Wp = args.WT
        if k == "V" and args.WV:
            Wp = W + args.WV
        if p >= Wp:
            I(f"s_waitcnt vmcnt({Wp-1})")
            landed = p - Wp
            done = None
            while st["si"] < len(stages) and stages[st["si"]][1] <= landed:
                done = stages[st["si"]][0]; st["si"] += 1
            if done is not None:
                flag(done)
        want_mask = k in ("WO", "W2")
        if want_mask and not st["qk_waited"]:
            spin_lds_ge(vMISC, M_QKDONE - R_M, 4, 15)
            st["qk_waited"] = True
        if want_mask != st["masked"]:
            I("s_mov_b32 exec_hi, 0x00ffffff" if want_mask else "s_mov_b32 exec_hi, -1")
            st["masked"] = want_mask
        if k == "K":
            issue_k(i)
        elif k == "W1":
            if i == 0:
                spin_lds_ge(vMISC, M_QTASK - R_M, 4, 15)
            issue_w(i, "c", 10, 3584)
        elif k == "V":
            I(f"s_add_u32 m0, s{sLV}, {i*4096}")
            I(f"s_add_u32 s{sT0}, s{sROT}, {i*4096}")
            I(f"s_and_b32 s{sT0}, s{sT0}, 0xffff")
            I(f"buffer_load_dwordx4 v9, {S4('b')}, s{sT0} offen nt lds")
        elif k == "WO":
            I(f"s_add_u32 m0, s{sLO}, {i*PITCH}")
            I(f"s_add_u32 s{sT0}, s{sGO}, {i*896}")
            I(f"buffer_load_dwordx4 v11, {S4('d')}, s{sT0} offen nt lds")
        elif k == "W2":
            I(f"s_add_u32 m0, s{sLO}, {(16+i)*PITCH}")
            I(f"s_add_u32 s{sT0}, s{sGO}, {i*896}")
            I(f"buffer_load_dwordx4 v11, {S4('e')}, s{sT0} offen nt lds")
    if p1 == len(seq):
        nn = len(seq)
        while st["si"] < len(stages):
            s_, p = stages[st["si"]]
            I(f"s_waitcnt vmcnt({nn-1-p})")
            flag(s_)
            st["si"] += 1
        stamp_flush()
        I("s_endpgm")

def stages_of(seq):
    last = {}
    for p, (k, i) in enumerate(seq):
        key = f"{k}{i//4}" if k in ("K", "V") else k
        last[stage[key]] = p
    return sorted(last.items(), key=lambda x: x[1])

seqF, seqN = make_seq(True), make_seq(False)
common = 0
while common < len(seqN) and seqF[common] == seqN[common]:
    common += 1
WF = args.WF or W
assert WF >= W
if WF != W:
    common = 4 + NPRE
stF = dict(si=0, masked=False, qk_waited=False, stages=stages_of(seqF))
if NPRE > W - 1:
    I(f"s_waitcnt vmcnt({NPRE})")
    I(f"v_mov_b32 v14, {stage['WQ']}")
    I("ds_write_b32 v12, v14")
    stamp(stage['WQ'])
    stF["si"] = 1
emit_stream(seqF, 4 + NPRE, common, stF)
stN = dict(si=stF["si"], masked=stF["masked"], qk_waited=stF["qk_waited"], stages=stages_of(seqN))
I(f"s_cmp_eq_u32 s{sFFN}, 0")
I("s_cbranch_scc1 L_LOADER_N")
emit_stream(seqF, common, len(seqF), stF, WF)
L("L_LOADER_N")
emit_stream(seqN, common, len(seqN), stN)

L("L_CONS")
vGA, vGB = 128, 129
vB1, vB2 = 130, 131
I(f"v_lshrrev_b32 v{vG4}, 4, v{vLANE}")
I(f"v_and_b32 v{vN}, 15, v{vLANE}")
I(f"v_mov_b32 v{vMISC}, {R_M}")
I(f"v_mov_b32 v{vPROG}, {R_F}")
I(f"s_mov_b32 s{sSPIN}, {args.spin}")
I(f"s_mov_b32 s{sRND}, 0")
I(f"s_mov_b32 s{sWOK}, 0")
I(f"s_mov_b32 s{sHOK}, 0")
I("s_waitcnt lgkmcnt(0)")
I(f"s_add_u32 s94, s42, {WS_E}")
I("s_addc_u32 s95, s43, 0")
I(f"s_load_dwordx2 s[{sN0}:{sN1}], s[94:95], 0")
build_srd("h", 42, None, hex(WS_RANGE))
build_srd("a", 16, None, 896)
build_srd("c", 36, None, 896)
build_srd("d", 30, None, 3584)
build_srd("e", 34, None, 896)
build_srd("f", 38, None, 896)
build_srd("g", 40, None, 256)
if args.dbgstamps:
    I(f"s_mov_b32 s{SRD['b']}, s96")
stamp(0)
I(f"s_cmp_lg_u32 s{sWAVE}, 2")
I("s_cbranch_scc1 L_NOG")
I(f"v_lshlrev_b32 v8, 4, v{vLANE}")
I(f"buffer_load_dwordx4 v[16:19], v8, {S4('a')}, 0 offen")
I(f"buffer_load_dwordx4 v[20:23], v8, {S4('c')}, 0 offen")
L("L_NOG")
I(f"v_and_b32 v14, 1, v{vLANE}")
I(f"v_lshl_add_u32 v14, v{vG4}, 1, v14")
I("v_lshlrev_b32 v14, 2, v14")
I(f"s_lshl_b32 s{sT1}, s{sA}, 7")
I(f"s_lshl_b32 s{sT0}, s{sRQ}, 5")
I(f"s_add_u32 s{sT0}, s{sT0}, s{sT1}")
I(f"buffer_load_dword v{vB1}, v14, {S4('d')}, s{sT0} offen")
I(f"s_lshl_b32 s{sT0}, s{sJ}, 5")
I(f"v_add_u32 v133, s{sT0}, v14")
I(f"buffer_load_dword v{vB2}, v133, {S4('e')}, 0 offen")
I(f"s_cmp_lg_u32 s{sWAVE}, 3")
I("s_cbranch_scc1 L_NOZ")
I("v_mov_b32 v8, 0")
I("v_mov_b32 v9, 0")
I("v_mov_b32 v10, 0")
I("v_mov_b32 v11, 0")
I(f"v_lshlrev_b32 v12, 4, v{vLANE}")
I(f"v_add_u32 v12, {R_F}, v12")
I("ds_write_b128 v12, v[8:11]")
I("s_mov_b32 exec_hi, 0")
I("ds_write_b128 v12, v[8:11] offset:1024")
I("s_mov_b64 exec, -1")
L("L_NOZ")
I("s_waitcnt lgkmcnt(0)")
I(f"s_add_u32 s{sN0}, s{sN0}, 0x7f4a7c15")
I(f"s_andn2_b32 s{sN0}, s{sN0}, 15")
I(f"s_xor_b32 s{sN1}, s{sN1}, 0x9e3779b9")
I(f"s_not_b32 s{sT0}, s{sN0}")
I(f"v_mov_b32 v204, s{sT0}")
I(f"v_mov_b32 v205, s{sT0}")
I(f"v_mov_b32 v206, s{sT0}")
I(f"v_mov_b32 v207, s{sT0}")
I(f"v_lshlrev_b32 v8, 4, v{vLANE}")
I(f"s_lshl_b32 s{sT3}, s{sH}, 5")
I(f"s_add_u32 s{sT3}, s{sT3}, s{sJ}")
I(f"s_lshl_b32 s{sT0}, s{sH}, 14")
I(f"s_lshl_b32 s{sT1}, s{sRQ}, 12")
I(f"s_add_u32 s{sT0}, s{sT0}, s{sT1}")
I(f"s_lshr_b32 s{sT1}, s{sJ}, 2")
I(f"s_lshl_b32 s{sT1}, s{sT1}, 9")
I(f"s_add_u32 s{sT0}, s{sT0}, s{sT1}")
I(f"s_lshl_b32 s{sT2}, s{sWAVE}, 7")
I(f"s_add_u32 s{sT0}, s{sT0}, s{sT2}")
I(f"s_add_u32 s{sT0}, s{sT0}, {WS_Q + FAST}")
I("s_mov_b64 exec, 0xff")
I(f"buffer_store_dwordx4 v[204:207], v8, {S4('h')}, s{sT0} offen")
I(f"s_cmp_eq_u32 s{sFFN}, 0")
I("s_cbranch_scc1 L_C0B")
I(f"s_lshl_b32 s{sT0}, s{sA}, 11")
I(f"s_lshl_b32 s{sT1}, s{sRQ}, 9")
I(f"s_add_u32 s{sT0}, s{sT0}, s{sT1}")
I(f"s_add_u32 s{sT0}, s{sT0}, s{sT2}")
I(f"s_add_u32 s{sT0}, s{sT0}, {WS_H + FAST}")
I(f"buffer_store_dwordx4 v[204:207], v8, {S4('h')}, s{sT0} offen")
L("L_C0B")
I("s_mov_b64 exec, -1")
I(f"s_cmp_eq_u32 s{sWAVE}, 1")
I("s_cbranch_scc1 L_C1")
I(f"s_cmp_eq_u32 s{sWAVE}, 2")
I("s_cbranch_scc1 L_C2")
I(f"s_cmp_eq_u32 s{sWAVE}, 3")
I("s_cbranch_scc1 L_C3")
I("s_mov_b32 exec_hi, 0")
I(f"s_lshl_b32 s{sT0}, s{sT3}, 9")
I(f"s_add_u32 s{sT0}, s{sT0}, {WS_T + FAST}")
I(f"buffer_store_dwordx4 v[204:207], v8, {S4('h')}, s{sT0} offen")
I("s_mov_b64 exec, -1")
I("s_barrier")
I("s_branch L_CQ")

L("L_C1")
I(f"s_lshl_b32 s{sT0}, s{sT3}, 12")
I(f"s_add_u32 s{sT0}, s{sT0}, {WS_O + FAST}")
for r in range(4):
    I(f"buffer_store_dwordx4 v[204:207], v8, {S4('h')}, s{sT0} offen offset:{r*1024}")
I("s_barrier")
I("s_branch L_CQ")

L("L_C2")
I("s_barrier")
I("s_waitcnt vmcnt(3)")
I("v_mov_b32 v9, 0")
for k in range(4):
    I(f"v_lshlrev_b32 v10, 16, v{16+k}")
    I(f"v_lshlrev_b32 v11, 16, v{20+k}")
    I(f"v_and_b32 v12, 0xffff0000, v{16+k}")
    I(f"v_and_b32 v13, 0xffff0000, v{20+k}")
    I("v_mul_f32 v10, v10, v11")
    I("v_mul_f32 v12, v12, v13")
    I("v_cvt_pk_bf16_f32 v10, v10, v12")
    I("v_lshlrev_b32 v11, 16, v10")
    I("v_and_b32 v12, 0xffff0000, v10")
    I("v_add_f32 v9, v9, v11")
    I("v_add_f32 v9, v9, v12")
xreduce(9, 10, "v_add_f32", (1, 2, 4, 8))
I("v_cvt_pk_bf16_f32 v9, v9, v9")
I("v_lshlrev_b32 v9, 16, v9")
I("v_mul_f32 v9, 0xbfb8aa3b, v9")
I("v_exp_f32 v9, v9")
nop(1)
I("v_add_f32 v9, 1.0, v9")
I("v_rcp_f32 v9, v9")
nop(1)
I("v_cvt_pk_bf16_f32 v9, v9, v9")
I("v_lshlrev_b32 v10, 16, v9")
I("v_sub_f32 v11, 1.0, v10")
I("v_cvt_pk_bf16_f32 v11, v11, v11")
I("v_lshlrev_b32 v11, 16, v11")
I("s_mov_b64 exec, 1")
I(f"ds_write_b64 v{vMISC}, v[10:11] offset:{M_G - R_M}")
I("s_mov_b64 exec, -1")
I("s_branch L_CQ")

L("L_C3")
I(f"s_lshl_b32 s{sT0}, s{sT3}, 12")
I(f"s_add_u32 s{sT0}, s{sT0}, {WS_R + FAST}")
for r in range(4):
    I(f"buffer_store_dwordx4 v[204:207], v8, {S4('h')}, s{sT0} offen offset:{r*1024}")
I("s_barrier")

def gemv_tile(acc, A0, B0):
    for k in range(3):
        I(f"ds_read2_b64 v[{A0+4*k}:{A0+4*k+3}], v{vGA} offset0:{k*8} offset1:{k*8+4}")
        I(f"ds_read_b64_tr_b16 v[{B0+4*k}:{B0+4*k+1}], v{vGB} offset:{k*4096}")
        I(f"ds_read_b64_tr_b16 v[{B0+4*k+2}:{B0+4*k+3}], v{vGB} offset:{k*4096+2048}")
    I(f"ds_read_b64 v[{A0+12}:{A0+13}], v{vGA} offset:192")
    I(f"ds_read_b64_tr_b16 v[{B0+12}:{B0+13}], v{vGB} offset:{3*4096}")
    for k in range(3):
        I(f"s_waitcnt lgkmcnt({8-3*k})")
        c = "0" if k == 0 else f"v[{acc}:{acc+3}]"
        I(f"v_mfma_f32_16x16x32_bf16 v[{acc}:{acc+3}], v[{A0+4*k}:{A0+4*k+3}], v[{B0+4*k}:{B0+4*k+3}], {c}")
    I("s_waitcnt lgkmcnt(0)")
    I(f"v_mfma_f32_16x16x16_bf16 v[{acc+4}:{acc+7}], v[{A0+12}:{A0+13}], v[{B0+12}:{B0+13}], 0")

def pairs16(acc, d):
    nop(8)
    I(f"v_add_f32 v{d}, v{acc}, v{acc+4}")
    nop(2)
    I(f"v_mov_b32_dpp v{d+1}, v{d} quad_perm:[1,0,3,2] row_mask:0xf bank_mask:0xf")

L("L_CQ")
if args.lonly:
    I("v_mov_b32 v9, 1")
    I("s_mov_b64 exec, 1")
    I(f"ds_add_u32 v{vMISC}, v9 offset:{M_QTASK - R_M}")
    I(f"ds_add_u32 v{vMISC}, v9 offset:{M_QKDONE - R_M}")
    I("s_branch L_CEND")
I(f"s_mul_i32 s{sT0}, s{sRQ}, 224")
I(f"s_add_u32 s{sT0}, s{sT0}, {R_X}")
I(f"v_lshlrev_b32 v{vGA}, 3, v{vG4}")
I(f"v_add_u32 v{vGA}, s{sT0}, v{vGA}")
I(f"v_bfe_u32 v10, v{vLANE}, 2, 2")
I(f"v_lshl_add_u32 v10, v{vG4}, 2, v10")
I("v_bfe_u32 v11, v10, 1, 2")
I(f"v_xor_b32 v11, s{sWAVE}, v11")
I("v_lshlrev_b32 v11, 5, v11")
I("v_lshl_add_u32 v11, v10, 7, v11")
I(f"v_and_b32 v10, 3, v{vLANE}")
I("v_lshl_add_u32 v11, v10, 3, v11")
I(f"v_add_u32 v{vGB}, {R_W}, v11")
I(f"s_lshl_b32 s{sT3}, s{sH}, 14")
I(f"s_lshl_b32 s{sT1}, s{sRQ}, 12")
I(f"s_add_u32 s{sT3}, s{sT3}, s{sT1}")
I(f"s_lshr_b32 s{sT1}, s{sJ}, 2")
I(f"s_lshl_b32 s{sT1}, s{sT1}, 9")
I(f"s_add_u32 s{sT3}, s{sT3}, s{sT1}")
I(f"s_lshl_b32 s{sT1}, s{sWAVE}, 7")
I(f"s_add_u32 s{sT3}, s{sT3}, s{sT1}")
I(f"s_add_u32 s{sT3}, s{sT3}, {WS_Q}")
I(f"v_lshlrev_b32 v132, 3, v{vLANE}")
spin_prog_all(vPROG, stage["WQ"], 136, sleep=0)
stamp(1)
I(f"s_getreg_b32 s{sWOK}, hwreg(HW_REG_XCC_ID, 0, 4)")
I(f"s_or_b32 s{sWOK}, s{sWOK}, s{sN0}")
I(f"v_mov_b32 v122, s{sWOK}")
I(f"v_mov_b32 v123, s{sN1}")
gemv_tile(112, 16, 32)
I("v_mov_b32 v9, 1")
I("s_mov_b64 exec, 1")
I(f"ds_add_u32 v{vMISC}, v9 offset:{M_QTASK - R_M}")
I("s_mov_b64 exec, -1")
pairs16(112, 120)
I("s_waitcnt vmcnt(0)")
I("s_mov_b64 exec, 0x5555")
fast_store(4, "v[120:123]", 132, sT3, sT1)
I("s_mov_b64 exec, -1")
stamp(2)
def q_slow():
    I("s_mov_b64 exec, 0x5555")
    slow_store(4, "v[120:123]", 132, sT3)
    I("s_mov_b64 exec, -1")
I(f"v_lshlrev_b32 v8, 4, v{vLANE}")
I(f"s_lshl_b32 s{sT1}, s{sWAVE}, 10")
I(f"s_lshl_b32 s{sT2}, s{sH}, 14")
I(f"s_add_u32 s{sT2}, s{sT2}, s{sT1}")
I(f"s_add_u32 s{sT2}, s{sT2}, {WS_Q}")
I(f"v_add_u32 v9, 4096, v8")
I(f"v_add_u32 v10, 8192, v8")
I(f"v_add_u32 v11, 12288, v8")
if args.qgate:
    spin_prog_all(vPROG, stage[args.qgate], 136, sleep=2)
if args.noqpoll:
    I("s_branch L_QPOLL_DONE")
L("L_QPOLL")
I(f"s_sleep {args.qsleep}")
pick(sT1, sT2, q_slow)
for r in range(4):
    I(f"buffer_load_dwordx4 v[{16+4*r}:{19+4*r}], v{8+r}, {S4('h')}, s{sT1} offen sc1")
I("s_waitcnt vmcnt(0)")
for r in range(4):
    I(f"v_xor_b32 v{32+r}, s{sWOK}, v{18+4*r}")
    I(f"v_and_b32 v{18+4*r}, -16, v{18+4*r}")
tagcheck([16, 20, 24, 28], "L_QPOLL", "L_QPOLL_DONE")
L("L_QPOLL_DONE")
q_slow()
I("v_or3_b32 v32, v32, v33, v34")
I("v_or_b32 v32, v32, v35")
I("v_cmp_ne_u32 vcc, 0, v32")
I(f"s_mov_b32 s{sWOK}, 0")
I("s_cmp_lg_u64 vcc, 0")
I(f"s_cselect_b32 s{sT0}, 1, 0")
I(f"v_mov_b32 v33, s{sT0}")
I("s_mov_b64 exec, 1")
I(f"ds_add_u32 v{vMISC}, v33 offset:{M_REMOTE_OFF}")
I("s_mov_b64 exec, -1")
I(f"v_mov_b32 v122, s{sN0}")
I("v_add_f32 v16, v16, v20")
I("v_add_f32 v17, v17, v21")
I("v_add_f32 v24, v24, v28")
I("v_add_f32 v25, v25, v29")
I("v_add_f32 v16, v16, v24")
I("v_add_f32 v17, v17, v25")
I("v_cvt_pk_bf16_f32 v16, v16, v17")
I(f"s_lshl_b32 s{sT1}, s{sWAVE}, 8")
I(f"s_add_u32 s{sT1}, s{sT1}, {R_Q}")
I(f"v_lshlrev_b32 v9, 2, v{vLANE}")
I(f"v_add_u32 v9, s{sT1}, v9")
I("v_mov_b32 v10, 1")
I("ds_write_b32 v9, v16")
I("s_waitcnt lgkmcnt(0)")
I("s_mov_b64 exec, 1")
I(f"ds_add_u32 v{vMISC}, v10 offset:{M_QCNT - R_M}")
I("s_mov_b64 exec, -1")
stamp(3)
qA = 40
kB = 140
acc0, acc1 = 112, 116
I(f"v_and_b32 v8, 1, v{vLANE}")
I("v_lshlrev_b32 v8, 9, v8")
I(f"v_lshl_add_u32 v8, v{vG4}, 4, v8")
I(f"v_add_u32 v8, {R_Q}, v8")
I(f"v_and_b32 v9, 3, v{vN}")
I(f"v_xor_b32 v9, v{vG4}, v9")
I(f"v_and_b32 v10, 12, v{vN}")
I("v_or_b32 v9, v9, v10")
I("v_lshlrev_b32 v9, 4, v9")
I(f"v_lshl_add_u32 v9, v{vN}, 10, v9")
I(f"s_lshl_b32 s{sT0}, s{sWAVE}, 14")
I(f"v_add_u32 v9, s{sT0}, v9")
for q in range(1, 4):
    I(f"v_xor_b32 v{9+q}, {q*64}, v9")
I(f"s_add_u32 s{sT3}, s{sWAVE}, {stage['K0']}")
spin_prog_all(vPROG, f"s{sT3}", 136)
for t in range(2):
    for i in range(8):
        r = kB + (t*8+i)*4
        I(f"ds_read_b128 v[{r}:{r+3}], v{9+(i&3)} offset:{t*512 + (i>>2)*256}")
spin_lds_ge(vMISC, M_QCNT - R_M, 4, 13, sleep=0)
stamp(4)
I(f"ds_read_b32 v14, v{vMISC} offset:{M_REMOTE_OFF}")
for i in range(8):
    I(f"ds_read_b128 v[{qA+4*i}:{qA+4*i+3}], v8 offset:{i*64}")
for i in range(8):
    I(f"s_waitcnt lgkmcnt({7-i})")
    if i == 1:
        I(f"v_readfirstlane_b32 s{sFOFF}, v14")
        I(f"s_cmp_eq_u32 s{sFOFF}, 0")
        I(f"s_cselect_b32 s{sFOFF}, {FAST}, 0")
    for t in range(2):
        acc = acc0 if t == 0 else acc1
        r = kB + (t*8+i)*4
        c = "0" if i == 0 else f"v[{acc}:{acc+3}]"
        I(f"v_mfma_f32_16x16x32_bf16 v[{acc}:{acc+3}], v[{qA+4*i}:{qA+4*i+3}], v[{r}:{r+3}], {c}")
CEXP = "0x3db8aa3b"
I(f"s_mov_b32 s{sT2}, {CEXP}")
I(f"s_lshl_b32 s{sT1}, s{sWAVE}, 3")
I(f"v_mov_b32 v8, s{sT1}")
I(f"v_add_u32 v8, {M_MAX}, v8")
nop(5)
I(f"v_cvt_pk_bf16_f32 v120, v{acc0}, v{acc1}")
I(f"v_cvt_pk_bf16_f32 v121, v{acc0+1}, v{acc1+1}")
I("v_lshlrev_b32 v16, 16, v120")
I("v_and_b32 v17, 0xffff0000, v120")
I("v_lshlrev_b32 v18, 16, v121")
I("v_and_b32 v19, 0xffff0000, v121")
I("v_max_f32 v20, v16, v17")
I("v_max_f32 v21, v18, v19")
for r in (1, 2, 4, 8):
    nop(1)
    I(f"v_max_f32_dpp v20, v20, v20 row_ror:{r} row_mask:0xf bank_mask:0xf")
    I(f"v_max_f32_dpp v21, v21, v21 row_ror:{r} row_mask:0xf bank_mask:0xf")
I("v_mov_b32 v9, 1")
I("s_mov_b64 exec, 1")
I("ds_write_b64 v8, v[20:21]")
I("s_waitcnt lgkmcnt(0)")
I(f"ds_add_u32 v{vMISC}, v9 offset:{M_QKDONE - R_M}")
I("s_mov_b64 exec, -1")
spin_lds_ge(vMISC, M_QKDONE - R_M, 4, 13, sleep=0)
I(f"ds_read_b128 v[24:27], v{vMISC} offset:{M_MAX - R_M}")
I(f"ds_read_b128 v[28:31], v{vMISC} offset:{M_MAX - R_M + 16}")
I("s_waitcnt lgkmcnt(0)")
I("v_max_f32 v20, v24, v26")
I("v_max_f32 v21, v25, v27")
I("v_max3_f32 v20, v20, v28, v30")
I("v_max3_f32 v21, v21, v29, v31")
I("v_sub_f32 v16, v16, v20")
I("v_sub_f32 v17, v17, v20")
I("v_sub_f32 v18, v18, v21")
I("v_sub_f32 v19, v19, v21")
for k in range(4):
    I(f"v_mul_f32 v{16+k}, s{sT2}, v{16+k}")
for k in range(4):
    I(f"v_exp_f32 v{16+k}, v{16+k}")
nop(1)
I("v_cvt_pk_bf16_f32 v24, v16, v17")
I("v_cvt_pk_bf16_f32 v25, v18, v19")
I("v_add_f32 v22, v16, v17")
I("v_add_f32 v23, v18, v19")
I(f"s_lshl_b32 s{sT1}, s{sWAVE}, 6")
I(f"s_add_u32 s{sT1}, s{sT1}, {R_P}")
I(f"v_lshlrev_b32 v8, 2, v{vN}")
I(f"v_add_u32 v8, s{sT1}, v8")
I("s_mov_b64 exec, 0xffff")
I("ds_write_b32 v8, v24")
I("ds_write_b32 v8, v25 offset:256")
I("s_mov_b64 exec, -1")
for r in (1, 2, 4, 8):
    nop(1)
    I(f"v_add_f32_dpp v22, v22, v22 row_ror:{r} row_mask:0xf bank_mask:0xf")
    I(f"v_add_f32_dpp v23, v23, v23 row_ror:{r} row_mask:0xf bank_mask:0xf")
I("s_mov_b64 exec, 1")
I(f"ds_add_f32 v{vMISC}, v22 offset:{M_LSUM - R_M}")
I(f"ds_add_f32 v{vMISC}, v23 offset:{M_LSUM - R_M + 4}")
I("s_waitcnt lgkmcnt(0)")
I(f"ds_add_u32 v{vMISC}, v9 offset:{M_PCNT - R_M}")
I("s_mov_b64 exec, -1")
I(f"v_and_b32 v10, 1, v{vLANE}")
I("v_lshlrev_b32 v10, 8, v10")
I(f"v_lshl_add_u32 v10, v{vG4}, 3, v10")
I(f"v_add_u32 v10, {R_P}, v10")
I(f"v_bfe_u32 v11, v{vLANE}, 2, 2")
I(f"v_lshl_add_u32 v12, v{vG4}, 2, v11")
I("v_and_b32 v13, 7, v12")
I(f"s_lshl_b32 s{sT1}, s{sWAVE}, 2")
I(f"v_xor_b32 v13, s{sT1}, v13")
I("v_lshlrev_b32 v13, 5, v13")
I("v_lshl_add_u32 v13, v12, 9, v13")
I(f"v_and_b32 v14, 3, v{vLANE}")
I("v_lshl_add_u32 v13, v14, 3, v13")
I(f"v_add_u32 v32, {R_V}, v13")
for tt in range(1, 4):
    I(f"v_xor_b32 v{32+tt}, {tt*32}, v32")
I(f"v_mul_u32_u24 v134, {PITCH}, v12")
I("v_lshl_add_u32 v134, v14, 3, v134")
I(f"s_mul_i32 s{sT0}, s{sWAVE}, {7*32}")
I(f"v_add_u32 v134, s{sT0}, v134")
spin_lds_ge(vMISC, M_PCNT - R_M, 4, 13, sleep=0)
pA = 36
for s in range(4):
    I(f"ds_read2_b64 v[{pA+4*s}:{pA+4*s+3}], v10 offset0:{s*8} offset1:{s*8+4}")
I(f"ds_read_b64 v[220:221], v{vMISC} offset:{M_G - R_M}")
sk = newlabel("NOSTAT")
I(f"s_cmp_lg_u32 s{sWAVE}, 0")
I(f"s_cbranch_scc1 {sk}")
I(f"ds_read_b64 v[22:23], v{vMISC} offset:{M_LSUM - R_M}")
I(f"v_cmp_eq_u32 vcc, 1, v{vG4}")
I(f"s_lshl_b32 s{sT0}, s{sH}, 14")
I(f"s_lshl_b32 s{sT1}, s{sJ}, 4")
I(f"s_add_u32 s{sT0}, s{sT0}, s{sT1}")
I(f"s_add_u32 s{sT0}, s{sT0}, {WS_T}")
I(f"v_lshlrev_b32 v8, 9, v{vLANE}")
I("s_waitcnt lgkmcnt(0)")
I("v_cndmask_b32 v120, v20, v21, vcc")
I("v_cndmask_b32 v121, v22, v23, vcc")
I("s_mov_b32 exec_hi, 0")
pub_store(4, "v[120:123]", 8, sT0, sT1)
I("s_mov_b64 exec, -1")
L(sk)
G1, G2, G3, ODD = f"s[{sX0}:{sX0+1}]", f"s[{sMA}:{sMA+1}]", f"s[{sMB}:{sMB+1}]", f"s[{sX0+2}:{sX0+3}]"
I(f"v_cmp_eq_u32 {G2}, 2, v{vG4}")
I(f"v_cmp_eq_u32 {G3}, 3, v{vG4}")
I(f"v_cmp_eq_u32 {G1}, 1, v{vG4}")
I(f"v_and_b32 v8, 1, v{vLANE}")
I(f"v_cmp_eq_u32 {ODD}, 1, v8")
I(f"v_lshl_add_u32 v135, v8, 4, v{vG4}")
I("v_lshlrev_b32 v135, 12, v135")
I(f"v_lshrrev_b32 v10, 1, v{vN}")
I("v_lshl_add_u32 v135, v10, 4, v135")
I(f"s_lshl_b32 s{sOOFF}, s{sH}, 5")
I(f"s_lshl_b32 s{sT1}, s{sWAVE}, 2")
I(f"s_add_u32 s{sOOFF}, s{sOOFF}, s{sT1}")
I(f"s_lshl_b32 s{sOOFF}, s{sOOFF}, 12")
I(f"s_lshl_b32 s{sT1}, s{sJ}, 7")
I(f"s_add_u32 s{sOOFF}, s{sOOFF}, s{sT1}")
I(f"s_add_u32 s{sOOFF}, s{sOOFF}, {WS_O}")
stamp(5)
W1LATE = stage['W1'] > stage['V3']
def ffn1_block():
    I(f"s_cmp_eq_u32 s{sFFN}, 0")
    I("s_cbranch_scc1 L_NOFFN1")
    I(f"s_lshl_b32 s{sT2}, s{sA}, 11")
    I(f"s_lshl_b32 s{sT1}, s{sRQ}, 9")
    I(f"s_add_u32 s{sT2}, s{sT2}, s{sT1}")
    I(f"s_lshl_b32 s{sT1}, s{sWAVE}, 7")
    I(f"s_add_u32 s{sT2}, s{sT2}, s{sT1}")
    I(f"s_add_u32 s{sT2}, s{sT2}, {WS_H}")
    spin_prog_all(vPROG, stage["W1"], 136)
    gemv_tile(112, 140, 156)
    pairs16(112, 120)
    I("s_mov_b64 exec, 0x5555")
    pub_store(4, "v[120:123]", 132, sT2, sT1)
    I("s_mov_b64 exec, -1")
    L("L_NOFFN1")


if not W1LATE:
    ffn1_block()
sTS, sHS = 98, 99
I(f"s_lshl_b32 s{sTS}, s{sH}, 5")
I(f"s_add_u32 s{sTS}, s{sTS}, s{sJ}")
I(f"s_lshl_b32 s{sOG}, s{sTS}, 12")
I(f"s_lshl_b32 s{sTS}, s{sTS}, 9")
I(f"s_add_u32 s{sTS}, s{sTS}, {WS_T}")
I(f"s_add_u32 s{sTS}, s{sTS}, s{sFOFF}")
I(f"s_add_u32 s{sOG}, s{sOG}, s{sFOFF}")
I(f"v_bfe_u32 v14, v{vLANE}, 1, 3")
I("v_lshlrev_b32 v192, 4, v14")
I(f"v_and_b32 v15, 1, v{vLANE}")
I(f"v_lshl_add_u32 v15, v{vG4}, 1, v15")
I("v_lshlrev_b32 v15, 4, v15")
I("v_lshl_add_u32 v197, v14, 7, v15")
I(f"s_lshl_b32 s{sHS}, s{sA}, 11")
I(f"s_lshl_b32 s{sT1}, s{sRQ}, 7")
I(f"s_add_u32 s{sHS}, s{sHS}, s{sT1}")
I(f"s_add_u32 s{sHS}, s{sHS}, {WS_H}")
I(f"s_add_u32 s{sHS}, s{sHS}, s{sFOFF}")
I("v_and_b32 v14, 3, v14")
I("v_lshl_add_u32 v193, v14, 9, v15")
I(f"v_and_b32 v8, 1, v{vLANE}")
I(f"v_lshl_add_u32 v222, v8, 2, v{vG4}")
I("v_lshlrev_b32 v222, 12, v222")
I(f"v_lshrrev_b32 v10, 1, v{vN}")
I("v_lshl_add_u32 v222, v10, 4, v222")
I(f"s_mul_i32 s{sRP}, s{sWAVE}, 7")
I(f"s_lshl_b32 s{sT1}, s{sH}, 5")
I(f"s_add_u32 s{sRP}, s{sRP}, s{sT1}")
I(f"s_lshl_b32 s{sRP}, s{sRP}, 12")
I(f"s_lshl_b32 s{sT1}, s{sJ}, 7")
I(f"s_add_u32 s{sRP}, s{sRP}, s{sT1}")
I(f"s_add_u32 s{sRP}, s{sRP}, {WS_R}")
I(f"v_mov_b32 v126, s{sN0}")
I(f"v_mov_b32 v127, s{sN1}")
I(f"v_mov_b32 v202, s{sN0}")
I(f"v_mov_b32 v203, s{sN1}")
I(f"s_mov_b32 s{sDW}, 0")
ST = [172, 176, 180, 184]
HR = 188
def ror1(v, op, rors):
    for r in rors:
        nop(2)
        I(f"{op}_dpp v{v}, v{v}, v{v} row_ror:{r} row_mask:0xf bank_mask:0xf")
def ror2(v, w, op, rors):
    for r in rors:
        nop(1)
        I(f"{op}_dpp v{v}, v{v}, v{v} row_ror:{r} row_mask:0xf bank_mask:0xf")
        I(f"{op}_dpp v{w}, v{w}, v{w} row_ror:{r} row_mask:0xf bank_mask:0xf")
def stats_loads(soff):
    for r in range(4):
        I(f"buffer_load_dwordx4 v[{ST[r]}:{ST[r]+3}], v192, {S4('h')}, s{soff} offen offset:{r*128} sc1")
def stats_weights():
    I(f"v_max_f32 v194, v{ST[0]}, v{ST[1]}")
    I(f"v_max3_f32 v194, v194, v{ST[2]}, v{ST[3]}")
    ror1(194, "v_max_f32", (2, 4, 8))
    I(f"s_mov_b32 s{sT2}, {CEXP}")
    for r in ST:
        I(f"v_sub_f32 v{r}, v{r}, v194")
    for r in ST:
        I(f"v_mul_f32 v{r}, s{sT2}, v{r}")
    for r in ST:
        I(f"v_exp_f32 v{r}, v{r}")
    nop(1)
    I(f"v_mul_f32 v196, v{ST[0]}, v{ST[0]+1}")
    for r in ST[1:]:
        I(f"v_fmac_f32 v196, v{r}, v{r+1}")
    ror1(196, "v_add_f32", (2, 4, 8))
    I("v_rcp_f32 v196, v196")
    nop(1)
    for r in ST:
        I(f"v_mul_f32 v{r}, v{r}, v196")
    I(f"s_mov_b32 s{sWOK}, 1")
def pairs_to_A(vsrc, d0, d1):
    nop(2)
    I(f"v_mov_b32_dpp v{d0}, v{vsrc} quad_perm:[0,0,2,2] row_mask:0xf bank_mask:0xf")
    I(f"v_mov_b32_dpp v{d1}, v{vsrc} quad_perm:[1,1,3,3] row_mask:0xf bank_mask:0xf")
def h_compute():
    ror2(HR, HR+1, "v_add_f32", (2, 4))
    I(f"v_cvt_pk_bf16_f32 v{HR}, v{HR}, v{HR+1}")
    I(f"v_lshlrev_b32 v{HR+2}, 16, v{HR}")
    I(f"v_and_b32 v{HR+3}, 0xffff0000, v{HR}")
    I(f"v_lshlrev_b32 v194, 16, v{vB1}")
    I(f"v_and_b32 v195, 0xffff0000, v{vB1}")
    I(f"v_add_f32 v{HR+2}, v{HR+2}, v194")
    I(f"v_add_f32 v{HR+3}, v{HR+3}, v195")
    I(f"v_cvt_pk_bf16_f32 v{HR}, v{HR+2}, v{HR+3}")
    I(f"v_lshlrev_b32 v{HR+2}, 16, v{HR}")
    I(f"v_and_b32 v{HR+3}, 0xffff0000, v{HR}")
    I(f"v_max_f32 v{HR+2}, 0, v{HR+2}")
    I(f"v_max_f32 v{HR+3}, 0, v{HR+3}")
    I(f"v_mul_f32 v{HR+2}, v{HR+2}, v{HR+2}")
    I(f"v_mul_f32 v{HR+3}, v{HR+3}, v{HR+3}")
    I(f"v_cvt_pk_bf16_f32 v{HR}, v{HR+2}, v{HR+3}")
    pairs_to_A(HR, 198, 199)
    I(f"s_mov_b32 s{sHOK}, 1")

accA = 68
accB = 96
wB = 140
w2B = 156
def wo_reads():
    for t in range(7):
        I(f"ds_read_b64_tr_b16 v[{wB+2*t}:{wB+2*t+1}], v134 offset:{t*32}")
    I(f"s_mov_b32 s{sDW}, 1")
def ffn_work():
    for t in range(7):
        I(f"ds_read_b64_tr_b16 v[{w2B+2*t}:{w2B+2*t+1}], v134 offset:{16*PITCH + t*32}")
    for t in range(7):
        I(f"s_waitcnt lgkmcnt({6-t})")
        I(f"v_mfma_f32_16x16x16_bf16 v[{accB+4*t}:{accB+4*t+3}], v[198:199], v[{w2B+2*t}:{w2B+2*t+1}], 0")
    nop(3)
    for t in range(7):
        if t == 6:
            nop(2)
        I(f"v_mul_f32 v{accB+4*t}, v221, v{accB+4*t}")
    I(f"s_mov_b32 s{sDF}, 1")
I(f"s_xor_b32 s{sDF}, s{sFFN}, 1")
if not W1LATE:
    for t in range(7):
        I(f"v_mov_b32 v{accB+4*t}, 0")
vB = 52
accO = 68
for s in range(4):
    spin_prog_all(vPROG, stage[f"V{s}"], 136, sleep=(1 if s < 3 else 0))
    for tt in range(4):
        I(f"ds_read_b64_tr_b16 v[{vB+4*tt}:{vB+4*tt+1}], v{32+tt} offset:{s*16384}")
        I(f"ds_read_b64_tr_b16 v[{vB+4*tt+2}:{vB+4*tt+3}], v{32+tt} offset:{s*16384+8192}")
    for tt in range(4):
        I(f"s_waitcnt lgkmcnt({6-2*tt})")
        c = "0" if s == 0 else f"v[{accO+4*tt}:{accO+4*tt+3}]"
        I(f"v_mfma_f32_16x16x32_bf16 v[{accO+4*tt}:{accO+4*tt+3}], v[{pA+4*s}:{pA+4*s+3}], v[{vB+4*tt}:{vB+4*tt+3}], {c}")
    if s == 1:
        stats_loads(sTS)
        if not W1LATE:
            I(f"buffer_load_dwordx4 v[{HR}:{HR+3}], v193, {S4('h')}, s{sHS} offen sc1")
    if s == 2:
        I("s_waitcnt vmcnt(0)")
        e1 = newlabel("E1")
        tagmask(ST)
        I("s_cmp_eq_u64 vcc, exec")
        I(f"s_cbranch_scc0 {e1}")
        stats_weights()
        L(e1)
        if not W1LATE:
            e2 = newlabel("E2")
            I(f"s_cmp_eq_u32 s{sFFN}, 0")
            I(f"s_cbranch_scc1 {e2}")
            tagmask([HR])
            I("s_cmp_eq_u64 vcc, exec")
            I(f"s_cbranch_scc0 {e2}")
            h_compute()
            if stage["W2"] < stage["V3"]:
                spin_prog_all(vPROG, stage["W2"], 136, sleep=0)
                ffn_work()
            L(e2)
        if stage["WO"] < stage["V3"]:
            spin_prog_all(vPROG, stage["WO"], 136, sleep=0)
            wo_reads()
stamp(6)
nop(6)
I(f"v_cndmask_b32 v16, v{accO}, v{accO+4}, {G1}")
I(f"v_cndmask_b32 v17, v{accO+1}, v{accO+5}, {G1}")
I(f"v_cndmask_b32 v16, v16, v{accO+8}, {G2}")
I(f"v_cndmask_b32 v17, v17, v{accO+9}, {G2}")
I(f"v_cndmask_b32 v16, v16, v{accO+12}, {G3}")
I(f"v_cndmask_b32 v17, v17, v{accO+13}, {G3}")
nop(1)
I("v_mov_b32_dpp v18, v16 quad_perm:[1,0,3,2] row_mask:0xf bank_mask:0xf")
I("v_mov_b32_dpp v19, v17 quad_perm:[1,0,3,2] row_mask:0xf bank_mask:0xf")
nop(1)
I(f"v_cndmask_b32 v200, v16, v19, {ODD}")
I(f"v_cndmask_b32 v201, v18, v17, {ODD}")
pub_store(4, "v[200:203]", 135, sOOFF, sT1)
stamp(7)
if W1LATE:
    ffn1_block()
I(f"s_cmp_lg_u32 s{sWOK}, 0")
I("s_cbranch_scc1 L_TOK")
L("L_TPOLL")
stats_loads(sTS)
I("s_waitcnt vmcnt(0)")
tagcheck(ST, "L_TPOLL", "L_TPOLL_DONE")
L("L_TPOLL_DONE")
stats_weights()
L("L_TOK")
I(f"s_cmp_lg_u32 s{sDF}, 0")
I("s_cbranch_scc1 L_FDONE0")
I(f"s_cmp_lg_u32 s{sHOK}, 0")
I("s_cbranch_scc1 L_HOK")
L("L_HPOLL")
I(f"buffer_load_dwordx4 v[{HR}:{HR+3}], v193, {S4('h')}, s{sHS} offen sc1")
I("s_waitcnt vmcnt(0)")
tagcheck([HR], "L_HPOLL", "L_HPOLL_DONE")
L("L_HPOLL_DONE")
h_compute()
L("L_HOK")
L("L_FDONE0")
I(f"s_add_u32 s{sT2}, s{sOG}, {WS_O}")
L("L_OPOLL")
for r in range(4):
    I(f"buffer_load_dwordx4 v[{48+4*r}:{51+4*r}], v197, {S4('h')}, s{sT2} offen offset:{r*1024} sc1")
I(f"s_and_b32 s{sT0}, s{sDW}, s{sDF}")
I("s_cbranch_scc1 L_OCHK")
I(f"ds_read_b128 v[136:139], v{vPROG}")
I("s_waitcnt lgkmcnt(0)")
I("v_min3_u32 v136, v136, v137, v138")
I("v_min_u32 v136, v136, v139")
nop(1)
I(f"v_readfirstlane_b32 s{sT3}, v136")
I(f"s_cmp_lg_u32 s{sDW}, 0")
I("s_cbranch_scc1 L_OC2")
I(f"s_cmp_ge_u32 s{sT3}, {stage['WO']}")
I("s_cbranch_scc0 L_OC2")
wo_reads()
L("L_OC2")
I(f"s_cmp_lg_u32 s{sDF}, 0")
I("s_cbranch_scc1 L_OCHK")
I(f"s_cmp_ge_u32 s{sT3}, {stage['W2']}")
I("s_cbranch_scc0 L_OCHK")
ffn_work()
L("L_OCHK")
I("s_waitcnt vmcnt(0)")
tagcheck([48, 52, 56, 60], "L_OPOLL", "L_OPOLL_DONE")
L("L_OPOLL_DONE")
stamp(8)
I(f"v_mul_f32 v40, v{ST[0]}, v48")
I(f"v_mul_f32 v41, v{ST[0]}, v49")
for r in range(1, 4):
    I(f"v_fmac_f32 v40, v{ST[r]}, v{48+4*r}")
    I(f"v_fmac_f32 v41, v{ST[r]}, v{49+4*r}")
ror2(40, 41, "v_add_f32", (2, 4, 8))
I("v_cvt_pk_bf16_f32 v40, v40, v41")
pairs_to_A(40, 46, 47)
I(f"s_cmp_lg_u32 s{sDW}, 0")
I("s_cbranch_scc1 L_WD1")
spin_prog_all(vPROG, stage["WO"], 136, sleep=0)
wo_reads()
L("L_WD1")
I(f"s_cmp_lg_u32 s{sDF}, 0")
I("s_cbranch_scc1 L_WDONE")
spin_prog_all(vPROG, stage["W2"], 136, sleep=0)
ffn_work()
L("L_WDONE")
I("s_waitcnt lgkmcnt(0)")
for t in range(7):
    I(f"v_mfma_f32_16x16x16_bf16 v[{accA+4*t}:{accA+4*t+3}], v[46:47], v[{wB+2*t}:{wB+2*t+1}], 0")
nop(3)
for t in range(7):
    if t == 6:
        nop(1)
    I(f"v_fmac_f32 v{accB+4*t}, v220, v{accA+4*t}")
stamp(9)
I(f"v_cndmask_b32 v16, v{accB}, v{accB+4}, {G1}")
I(f"v_cndmask_b32 v17, v{accB+16}, v{accB+20}, {G1}")
I(f"v_cndmask_b32 v16, v16, v{accB+8}, {G2}")
I(f"v_cndmask_b32 v17, v17, v{accB+24}, {G2}")
I(f"v_cndmask_b32 v16, v16, v{accB+12}, {G3}")
nop(2)
I("v_mov_b32_dpp v18, v16 quad_perm:[1,0,3,2] row_mask:0xf bank_mask:0xf")
I("v_mov_b32_dpp v19, v17 quad_perm:[1,0,3,2] row_mask:0xf bank_mask:0xf")
nop(1)
I(f"v_cndmask_b32 v124, v16, v19, {ODD}")
I(f"v_cndmask_b32 v125, v18, v17, {ODD}")
I("s_mov_b32 exec_hi, 0x5555ffff")
pub_store(4, "v[124:127]", 222, sRP, sT1)
I("s_mov_b64 exec, -1")
stamp(10)
I(f"s_cmp_eq_u32 s{sWAVE}, 0")
I(f"s_cselect_b32 s{sT0}, s{sJ}, 99")
I(f"s_cmp_lt_u32 s{sT0}, 28")
I("s_cbranch_scc0 L_CEND")
I(f"s_add_u32 s{sT3}, s{sOG}, {WS_R}")
I(f"s_lshl_b32 s{sT2}, s{sJ}, 10")
I(f"s_add_u32 s{sT2}, s{sT2}, {WS_P2}")
I(f"s_lshl_b32 s{sT1}, s{sH}, 7")
I(f"s_add_u32 s{sT1}, s{sT1}, s{sT2}")
L("L_RPOLL")
for r in range(4):
    I(f"buffer_load_dwordx4 v[{48+4*r}:{51+4*r}], v197, {S4('h')}, s{sT3} offen offset:{r*1024} sc1")
I("s_waitcnt vmcnt(0)")
tagcheck([48, 52, 56, 60], "L_RPOLL", "L_RPOLL_DONE")
L("L_RPOLL_DONE")
I("v_add_f32 v48, v48, v52")
I("v_add_f32 v49, v49, v53")
I("v_add_f32 v56, v56, v60")
I("v_add_f32 v57, v57, v61")
I("v_add_f32 v48, v48, v56")
I("v_add_f32 v49, v49, v57")
ror2(48, 49, "v_add_f32", (2, 4, 8))
I(f"v_mov_b32 v50, s{sN0}")
I(f"v_mov_b32 v51, s{sN1}")
I("s_mov_b32 exec_lo, 0x00030003")
I("s_mov_b32 exec_hi, 0x00030003")
I(f"buffer_store_dwordx4 v[48:51], v197, {S4('h')}, s{sT1} offen sc1")
I("s_mov_b64 exec, -1")
stamp(11)
I(f"s_and_b32 s{sT0}, s{sJ}, 7")
I(f"s_cmp_eq_u32 s{sT0}, s{sH}")
I("s_cbranch_scc0 L_CEND")
I(f"v_lshlrev_b32 v22, 16, v{vB2}")
I(f"v_and_b32 v23, 0xffff0000, v{vB2}")
L("L_FPOLL")
I(f"buffer_load_dwordx4 v[16:19], v197, {S4('h')}, s{sT2} offen sc1")
I("s_waitcnt vmcnt(0)")
tagcheck([16], "L_FPOLL", "L_FPOLL_DONE")
L("L_FPOLL_DONE")
ror2(16, 17, "v_add_f32", (2, 4, 8))
I("v_fmac_f32 v16, v221, v22")
I("v_fmac_f32 v17, v221, v23")
I("v_cvt_pk_bf16_f32 v16, v16, v17")
I("s_mov_b32 exec_lo, 0x00030003")
I("s_mov_b32 exec_hi, 0x00030003")
I(f"buffer_store_dword v16, v133, {S4('f')}, 0 offen")
I(f"s_cmp_lg_u32 s2, 0")
I("s_cbranch_scc1 L_NOEP")
I(f"s_memrealtime s[96:97]")
I(f"v_mov_b32 v8, {WS_E}")
I("s_waitcnt lgkmcnt(0)")
I(f"v_mov_b32 v12, s96")
I(f"v_mov_b32 v13, s97")
I("s_mov_b64 exec, 1")
I(f"buffer_store_dwordx2 v[12:13], v8, {S4('h')}, 0 offen sc1")
L("L_NOEP")
stamp(12)
L("L_CEND")
stamp_flush(cons=True)
L("L_END")
I("s_endpgm")
L("L_CODE_END")
if not args.nopf:
    A(".set CODE_BYTES_AFTER_PC, L_CODE_END - L_PC")
A('.section .rodata,"a"')
A(".p2align 6")
A(f".amdhsa_kernel {NAME}")
A("  .amdhsa_next_free_vgpr 256")
A("  .amdhsa_next_free_sgpr 102")
A("  .amdhsa_accum_offset 256")
A("  .amdhsa_group_segment_fixed_size 0")
A("  .amdhsa_kernarg_size 112")
A("  .amdhsa_user_sgpr_count 2")
A("  .amdhsa_user_sgpr_kernarg_segment_ptr 1")
A("  .amdhsa_system_sgpr_workgroup_id_x 1")
A(".end_amdhsa_kernel")
txt = "\n".join(out)
import re
if args.nopre:
    txt = re.sub(r"    buffer_store_dwordx4 v\[204:207\], .*\n", "", txt)
if args.preload:
    import re
    txt = re.sub(r"buffer_store_dwordx4 v\[204:207\], (v8, s\[72:75\], s10 offen(?: offset:\d+)?)", r"buffer_load_dwordx4 v[208:211], \1 sc1", txt)
if args.nont:
    txt = txt.replace(" nt lds", " lds")
print(txt)
```

```python
import sys, argparse

ap = argparse.ArgumentParser()
ap.add_argument("--W", type=int, default=7)
ap.add_argument("--stamps", action="store_true")
ap.add_argument("--name", default="gated_mix__sliding_block_cached__dense_activation_squared_relu__decode_kernel")
ap.add_argument("--spin", type=int, default=1 << 22)
ap.add_argument("--qsleep", type=int, default=4)
ap.add_argument("--fsleep", type=int, default=0)
ap.add_argument("--slowmask", type=int, default=31)
ap.add_argument("--order", default="K,W1,V,WO,W2")
ap.add_argument("--rotmul", type=int, default=7)
ap.add_argument("--nont", action="store_true")
ap.add_argument("--nopf", action="store_true")
ap.add_argument("--WF", type=int, default=0)
ap.add_argument("--preload", action="store_true")
ap.add_argument("--noqpoll", action="store_true")
ap.add_argument("--nopre", action="store_true")
ap.add_argument("--lonly", action="store_true")
ap.add_argument("--dbgstamps", action="store_true")
ap.add_argument("--perm", type=int, default=0)
ap.add_argument("--qgate", default="")
ap.add_argument("--WT", type=int, default=0)
ap.add_argument("--WV", type=int, default=0)
ap.add_argument("--NPRE", type=int, default=-1)
ap.add_argument("--lprio", type=int, default=0)
ap.add_argument("--ffnmap", type=int, default=8)
ap.add_argument("--WFV", type=int, default=0)
ap.add_argument("--WFT", type=int, default=0)
ap.add_argument("--fflags", default="sc1")
ap.add_argument("--tlbwarm", action="store_true")
args = ap.parse_args()
W = args.W
STAMPS = args.stamps or args.dbgstamps
NAME = args.name

out = []
def A(s=""):
    out.append(s)
def I(s):
    out.append("    " + s)
def L(s):
    out.append(s + ":")
def nop(n):
    if n > 0:
        I(f"s_nop {n-1}")

PITCH = 928
R_A = 0
R_V = 65536
R_W = R_V + 65536
R_X = R_W + 14336
R_Q = R_X + 1024
R_P = R_Q + 1024
R_F = R_P + 512
R_M = R_F + 1024
M_MAX = R_M
M_LSUM = R_M + 32
M_QCNT = R_M + 256
M_NONCEFLAG = R_M + 260
M_QKDONE = R_M + 264
M_PCNT = R_M + 268
M_QTASK = R_M + 276
M_FCNT = R_M + 280
M_FSUM = R_M + 288
M_NONCE = R_M + 304
M_G = R_M + 320
LDS_TOTAL = R_M + 512
assert LDS_TOTAL <= 163840, LDS_TOTAL

WS_Q = 0x000000
WS_H = 0x040000
WS_T = 0x060000
WS_P2 = 0x0A0000
WS_O = 0x100000
WS_R = 0x200000
WS_E = 0x300000
WS_STAMP = 0x400000
FAST = 0x800000
WS_RANGE = 0x1000000

order = args.order.split(",")
stage = {"WQ": 1}
n = 2
for o in order:
    if o in ("K", "V"):
        for q in range(4):
            stage[f"{o}{q}"] = n; n += 1
    elif o in ("Va", "Vb"):
        for q in (range(3) if o == "Va" else range(3, 4)):
            stage[f"V{q}"] = n; n += 1
    else:
        stage[o] = n; n += 1

sWAVE, sH, sJ, sHH, sRQ, sA, sFFN = 3, 4, 5, 6, 7, 8, 9
sT0, sT1, sT2, sT3 = 10, 11, 12, 13
sSPIN = 14
sRND = 15
SRD = {}
def S4(name):
    b = SRD[name]
    return f"s[{b}:{b+3}]"
for i, nm in enumerate(["a", "b", "c", "d", "e", "f", "g", "h"]):
    SRD[nm] = 44 + 4 * i
sN0, sN1 = 76, 77
sMA, sMB = 78, 80
sX0 = 82
sWOK, sHOK = 90, 91
sOOFF, sFOFF = 100, 101
sOG, sRP, sDW, sDF = 92, 93, 94, 95
M_REMOTE_OFF = 272

def build_srd(name, plo, off_sgpr, size):
    b = SRD[name]
    if off_sgpr is None:
        I(f"s_mov_b32 s{b}, s{plo}")
        I(f"s_mov_b32 s{b+1}, s{plo+1}")
    else:
        I(f"s_add_u32 s{b}, s{plo}, s{off_sgpr}")
        I(f"s_addc_u32 s{b+1}, s{plo+1}, 0")
    I(f"s_mov_b32 s{b+2}, {size}")
    I(f"s_mov_b32 s{b+3}, 0x00020000")

def stamp(k):
    if STAMPS:
        I(f"s_memrealtime s[{16+2*k}:{17+2*k}]")

def stamp_flush(n=14, cons=False):
    if not STAMPS:
        return
    if args.dbgstamps:
        if not cons:
            return
        sk = "L_NODBG"
        I(f"s_cmp_lg_u32 s2, 0")
        I(f"s_cbranch_scc1 {sk}")
        I(f"s_cmp_lg_u32 s{sWAVE}, 0")
        I(f"s_cbranch_scc1 {sk}")
        I("s_waitcnt lgkmcnt(0)")
        I("s_mov_b64 exec, 1")
        for k in range(13):
            I(f"s_sub_u32 s{sT0}, s{16+2*k}, s{SRD['b']}")
            I(f"v_mov_b32 v{232+k}, s{sT0}")
        I("v_mov_b32 v248, 0")
        for k in range(0, 12, 4):
            I(f"buffer_store_dwordx4 v[{232+k}:{235+k}], v248, {S4('g')}, 0 offen offset:{4*k}")
        I(f"buffer_store_dword v244, v248, {S4('g')}, 0 offen offset:48")
        L(sk)
        return
    I("s_waitcnt lgkmcnt(0)")
    I("s_mov_b64 exec, 1")
    for k in range(16):
        I(f"v_mov_b32 v{232+k}, s{16+2*min(k,n-1)}")
    for k in range(0, 16, 4):
        I(f"buffer_store_dwordx4 v[{232+k}:{235+k}], v253, {S4('h')}, 0 offen offset:{4*k}")

lbl = [0]
def newlabel(p="L"):
    lbl[0] += 1
    return f"{p}_{lbl[0]}"

def spin_lds_ge(vaddr, off, val, vt, sleep=1):
    l = newlabel("SP"); d = newlabel("SD")
    L(l)
    I(f"ds_read_b32 v{vt}, v{vaddr} offset:{off}")
    I("s_waitcnt lgkmcnt(0)")
    I(f"v_readfirstlane_b32 s{sT0}, v{vt}")
    I(f"s_cmp_ge_u32 s{sT0}, {val}")
    I(f"s_cbranch_scc1 {d}")
    if sleep:
        I(f"s_sleep {sleep}")
    I(f"s_branch {l}")
    L(d)

def spin_prog_all(vaddr, val, vt, sleep=1):
    l = newlabel("SP"); d = newlabel("SD")
    L(l)
    I(f"ds_read_b128 v[{vt}:{vt+3}], v{vaddr}")
    I("s_waitcnt lgkmcnt(0)")
    I(f"v_min3_u32 v{vt}, v{vt}, v{vt+1}, v{vt+2}")
    I(f"v_min_u32 v{vt}, v{vt}, v{vt+3}")
    nop(1)
    I(f"v_readfirstlane_b32 s{sT0}, v{vt}")
    I(f"s_cmp_ge_u32 s{sT0}, {val}")
    I(f"s_cbranch_scc1 {d}")
    if sleep:
        I(f"s_sleep {sleep}")
    I(f"s_branch {l}")
    L(d)

def xreduce(v, t, op, rors, swaps=("v_permlane16_swap_b32", "v_permlane32_swap_b32")):
    for r in rors:
        nop(2)
        I(f"{op}_dpp v{v}, v{v}, v{v} row_ror:{r} row_mask:0xf bank_mask:0xf")
    for sw in swaps:
        I(f"v_mov_b32 v{t}, v{v}")
        nop(2)
        I(f"{sw} v{v}, v{t}")
        nop(1)
        I(f"{op} v{v}, v{v}, v{t}")

def xreduce2(v, w, t, u, op, rors, swaps=("v_permlane16_swap_b32", "v_permlane32_swap_b32")):
    for r in rors:
        nop(1)
        I(f"{op}_dpp v{v}, v{v}, v{v} row_ror:{r} row_mask:0xf bank_mask:0xf")
        I(f"{op}_dpp v{w}, v{w}, v{w} row_ror:{r} row_mask:0xf bank_mask:0xf")
    for sw in swaps:
        I(f"v_mov_b32 v{t}, v{v}")
        I(f"v_mov_b32 v{u}, v{w}")
        nop(1)
        I(f"{sw} v{v}, v{t}")
        I(f"{sw} v{w}, v{u}")
        nop(1)
        I(f"{op} v{v}, v{v}, v{t}")
        I(f"{op} v{w}, v{w}, v{u}")

def pick(sdst, sbase, on_slow=None):
    I(f"s_add_u32 s{sRND}, s{sRND}, 1")
    I(f"s_and_b32 s{sdst}, s{sRND}, {args.slowmask}")
    I(f"s_cmp_eq_u32 s{sdst}, 0")
    if on_slow is not None:
        f = newlabel("PF")
        I(f"s_cbranch_scc0 {f}")
        on_slow()
        I(f"s_cmp_eq_u32 0, 0")
        L(f)
    I(f"s_cselect_b32 s{sdst}, 0, {FAST}")
    I(f"s_add_u32 s{sdst}, s{sdst}, s{sbase}")

def fast_store(nn, data, vaddr, soff, stmp):
    I(f"s_add_u32 s{stmp}, s{soff}, {FAST}")
    I(f"buffer_store_dwordx{nn} {data}, v{vaddr}, {S4('h')}, s{stmp} offen")
def slow_store(nn, data, vaddr, soff):
    I(f"buffer_store_dwordx{nn} {data}, v{vaddr}, {S4('h')}, s{soff} offen sc1")

def pub_store(nn, data, vaddr, soff, stmp):
    f = newlabel("PS"); d = newlabel("PD")
    I(f"s_add_u32 s{stmp}, s{soff}, s{sFOFF}")
    I(f"s_cmp_eq_u32 s{sFOFF}, 0")
    I(f"s_cbranch_scc1 {f}")
    I(f"buffer_store_dwordx{nn} {data}, v{vaddr}, {S4('h')}, s{stmp} offen")
    I(f"s_branch {d}")
    L(f)
    I(f"buffer_store_dwordx{nn} {data}, v{vaddr}, {S4('h')}, s{stmp} offen sc1")
    L(d)

def tagmask(regs):
    I(f"v_cmp_eq_u64 vcc, s[{sN0}:{sN1}], v[{regs[0]+2}:{regs[0]+3}]")
    for r in regs[1:]:
        I(f"v_cmp_eq_u64 s[{sX0+4}:{sX0+5}], s[{sN0}:{sN1}], v[{r+2}:{r+3}]")
        I(f"s_and_b64 vcc, vcc, s[{sX0+4}:{sX0+5}]")

def tagcheck(regs, loop, done):
    tagmask(regs)
    I(f"s_sub_u32 s{sSPIN}, s{sSPIN}, 1")
    I(f"s_cbranch_scc1 {done}")
    I("s_cmp_eq_u64 vcc, exec")
    I(f"s_cbranch_scc0 {loop}")

A(f"; @launch grid=(256,1,1) block=(512,1,1) lds={LDS_TOTAL}")
A('.amdgcn_target "amdgcn-amd-amdhsa--gfx950"')
A(".text")
A(f".globl {NAME}")
A(".p2align 8")
A(f".type {NAME},@function")
L(NAME)
I("s_cmp_ge_u32 s2, 256")
I("s_cbranch_scc1 L_END")
if args.dbgstamps:
    I("s_memrealtime s[96:97]")
if args.perm == 1:
    I("s_lshr_b32 s3, s2, 3")
    I("s_and_b32 s2, s2, 7")
    I("s_lshl_b32 s2, s2, 5")
    I("s_or_b32 s2, s2, s3")
elif args.perm == 2:
    I("s_xor_b32 s3, s2, 1")
    I("s_cmp_lt_u32 s2, 4")
    I("s_cselect_b32 s2, s3, s2")
I("s_load_dwordx16 s[16:31], s[0:1], 0")
I("s_load_dwordx8 s[32:39], s[0:1], 64")
I("s_load_dwordx4 s[40:43], s[0:1], 96")
I("v_lshrrev_b32 v2, 6, v0")
I("v_and_b32 v1, 63, v0")
I(f"s_and_b32 s{sH}, s2, 7")
I(f"v_readfirstlane_b32 s{sWAVE}, v2")
I(f"s_lshr_b32 s{sJ}, s2, 3")
if not args.nopf:
    I("s_getpc_b64 s[92:93]")
    L("L_PC")
    I(f"s_lshl_b32 s{sT0}, s{sJ}, 3")
    I(f"s_add_u32 s{sT0}, s{sT0}, s{sWAVE}")
    I(f"s_mul_i32 s{sT1}, s{sT0}, 0x1556")
    I(f"s_lshr_b32 s{sT1}, s{sT1}, 16")
    I(f"s_mul_i32 s{sT1}, s{sT1}, 12")
    I(f"s_sub_u32 s{sT0}, s{sT0}, s{sT1}")
    I(f"s_lshl_b32 s{sT0}, s{sT0}, 10")
    I(f"v_lshl_add_u32 v254, v1, 4, s{sT0}")
    I(f"v_min_u32 v254, CODE_BYTES_AFTER_PC-16, v254")
    I("global_load_dwordx4 v[248:251], v254, s[92:93]")
I(f"s_lshr_b32 s{sHH}, s{sJ}, 4")
I(f"s_and_b32 s{sRQ}, s{sJ}, 3")
if args.ffnmap == 8:
    I(f"s_lshr_b32 s{sA}, s{sJ}, 2")
    I(f"s_lshl_b32 s{sA}, s{sA}, 3")
    I(f"s_add_u32 s{sA}, s{sA}, s{sH}")
else:
    I(f"s_andn2_b32 s{sA}, s{sJ}, 3")
    I(f"s_add_u32 s{sA}, s{sA}, s{sH}")
    I(f"s_cmp_lt_u32 s{sH}, 4")
    I(f"s_cselect_b32 s{sA}, s{sA}, 99")
I(f"s_cmp_lt_u32 s{sA}, 28")
I(f"s_cselect_b32 s{sFFN}, 1, 0")
I(f"s_cselect_b32 s{sA}, s{sA}, 0")
if STAMPS:
    I(f"s_lshl_b32 s{sT0}, s2, 3")
    I(f"s_add_u32 s{sT0}, s{sT0}, s{sWAVE}")
    I(f"s_lshl_b32 s{sT0}, s{sT0}, 7")
    I(f"s_add_u32 s{sT0}, s{sT0}, {WS_STAMP}")
    I(f"v_mov_b32 v253, s{sT0}")
I(f"s_cmp_lt_u32 s{sWAVE}, 4")
I("s_cbranch_scc1 L_CONS")

vLANE = 1
vG4 = 3
vN = 4
vMISC = 5
vPROG = 6

sL = sX0
if args.lprio:
    I(f"s_setprio {args.lprio}")
I(f"s_sub_u32 s{sL}, s{sWAVE}, 4")
I(f"v_lshrrev_b32 v6, 3, v{vLANE}")
I("v_bfe_u32 v7, v6, 1, 2")
I("v_lshlrev_b32 v7, 1, v7")
I(f"v_and_b32 v11, 7, v{vLANE}")
I("v_xor_b32 v11, v11, v7")
I("v_lshlrev_b32 v11, 4, v11")
I(f"s_lshl_b32 s{sT0}, s{sL}, 3")
I(f"v_add_u32 v6, s{sT0}, v6")
I("v_lshl_add_u32 v7, v6, 13, v11")
I("v_mul_u32_u24 v10, 3584, v6")
I("v_add_u32 v10, v10, v11")
I(f"v_lshrrev_b32 v13, 5, v{vLANE}")
I("v_lshlrev_b32 v8, 9, v13")
I(f"v_and_b32 v9, 31, v{vLANE}")
I("v_lshl_add_u32 v8, v9, 4, v8")
I(f"s_lshl_b32 s{sT0}, s{sL}, 1")
I(f"v_add_u32 v13, s{sT0}, v13")
I("v_lshlrev_b32 v13, 5, v13")
I("v_xor_b32 v9, v8, v13")
I(f"s_lshl_b32 s{sT0}, s{sL}, 4")
I(f"v_xor_b32 v8, s{sT0}, v8")
I(f"v_lshlrev_b32 v11, 4, v{vLANE}")
I(f"s_lshl_b32 s{sT0}, s{sL}, 2")
I(f"s_add_u32 s{sT0}, s{sT0}, {R_F}")
I(f"v_add_u32 v12, s{sT0}, v11")
I(f"v_mov_b32 v{vMISC}, {R_M}")
sLK, sLV, sLW, sLO, sGO, sI3, sROT = sX0+1, sX0+2, sX0+3, sX0+4, sX0+5, sX0+6, sX0+7
I(f"s_lshl_b32 s{sLK}, s{sL}, 10")
I(f"s_add_u32 s{sLV}, s{sLK}, {R_V}")
I(f"s_add_u32 s{sLW}, s{sLK}, {R_W}")
I(f"s_mul_i32 s{sLO}, s{sL}, {4*PITCH}")
I(f"s_mul_i32 s{sGO}, s{sL}, {4*896}")
I(f"s_cmp_ge_u32 s{sL}, 2")
I(f"s_cselect_b32 s{sI3}, 2, 3")
I(f"s_mul_i32 s{sROT}, s2, {args.rotmul}")
I(f"s_add_u32 s{sROT}, s{sROT}, s{sL}")
I(f"s_lshl_b32 s{sROT}, s{sROT}, 10")
I(f"s_mul_i32 s{sT2}, s{sRQ}, {112*8192}")
I(f"s_lshl_b32 s{sT1}, s{sH}, 10")
I(f"s_add_u32 s{sT2}, s{sT2}, s{sT1}")
I(f"s_lshr_b32 s{sT1}, s{sJ}, 2")
I(f"s_lshl_b32 s{sT1}, s{sT1}, 7")
I(f"s_add_u32 s{sT2}, s{sT2}, s{sT1}")
I(f"s_sub_u32 s{sT1}, {448*8192}, s{sT2}")
I(f"s_lshl_b32 s{sT3}, s{sH}, 25")
I(f"s_add_u32 s{sT3}, s{sT3}, 0x1E00000")
I(f"s_lshl_b32 s{sT0}, s{sJ}, 16")
I(f"s_add_u32 s{sT3}, s{sT3}, s{sT0}")
I("s_waitcnt lgkmcnt(0)")
build_srd("f", 22, sT2, f"s{sT1}")
def issue_w(i, srdn, vaddr, rowbytes):
    if i == 3:
        I(f"s_lshl_b32 s{sT0}, s{sI3}, 12")
        I(f"s_add_u32 m0, s{sLW}, s{sT0}")
        I(f"s_mul_i32 s{sT0}, s{sI3}, {32*rowbytes}")
    else:
        I(f"s_add_u32 m0, s{sLW}, {i*4096}")
        I(f"s_mov_b32 s{sT0}, {i*32*rowbytes}")
    I(f"buffer_load_dwordx4 v{vaddr}, {S4(srdn)}, s{sT0} offen nt lds")
for i in range(3):
    issue_w(i, "f", 7, 8192)
build_srd("g", 16, None, 896)
I(f"s_cmp_eq_u32 s{sL}, 3")
I("s_cbranch_scc1 L_LX")
issue_w(3, "f", 7, 8192)
I("s_branch L_LX2")
L("L_LX")
I(f"s_mov_b32 m0, {R_X}")
I("s_nop 0")
I(f"buffer_load_dwordx4 v11, {S4('g')}, 0 offen lds")
L("L_LX2")
build_srd("a", 18, sT3, 65536)
def issue_k(i):
    I(f"v_xor_b32 v13, {(4*(i & 3)) << 4}, v8")
    I(f"s_add_u32 m0, s{sLK}, {i*4096}")
    I(f"s_add_u32 s{sT0}, s{sROT}, {i*4096}")
    I(f"s_and_b32 s{sT0}, s{sT0}, 0xffff")
    I(f"buffer_load_dwordx4 v13, {S4('a')}, s{sT0} offen nt lds")
NPRE = max(0, W - 4) if args.NPRE < 0 else args.NPRE
assert order[0] == "K"
for i in range(NPRE):
    issue_k(i)
build_srd("b", 20, sT3, 65536)
I(f"s_mul_i32 s{sT1}, s{sRQ}, {112*3584}")
I(f"s_lshl_b32 s{sT2}, s{sA}, 7")
I(f"s_add_u32 s{sT1}, s{sT1}, s{sT2}")
I(f"s_sub_u32 s{sT2}, {448*3584}, s{sT1}")
build_srd("c", 28, sT1, f"s{sT2}")
I(f"s_lshl_b32 s{sT1}, s{sH}, 9")
I(f"s_lshl_b32 s{sT2}, s{sJ}, 4")
I(f"s_add_u32 s{sT1}, s{sT1}, s{sT2}")
I(f"s_mul_i32 s{sT1}, s{sT1}, 896")
build_srd("d", 24, sT1, 16*896)
I(f"s_lshl_b32 s{sT1}, s{sA}, 2")
I(f"s_add_u32 s{sT1}, s{sT1}, s{sRQ}")
I(f"s_mul_i32 s{sT1}, s{sT1}, {16*896}")
build_srd("e", 32, sT1, 16*896)
build_srd("h", 42, None, hex(WS_RANGE))
if args.tlbwarm:
    I("v_mov_b32 v20, 0")
    I("s_mov_b64 exec, 1")
    I(f"s_cmp_lg_u32 s{sL}, 0")
    I("s_cbranch_scc1 L_NOTLB")
    for nm in ("b", "c", "d", "e"):
        I(f"buffer_load_dword v21, v20, {S4(nm)}, 0 offen nt")
    L("L_NOTLB")
    I("s_mov_b64 exec, -1")
stamp(0)
I("s_barrier")

def loader_stream(ffn, start_p, stop_kind=None):
    pass

def make_seq(ffn):
    seq = [("WQ", i) for i in range(4)]
    for o in order:
        if o == "K": seq += [("K", i) for i in range(16)]
        elif o == "V": seq += [("V", i) for i in range(16)]
        elif o == "Va": seq += [("V", i) for i in range(12)]
        elif o == "Vb": seq += [("V", i) for i in range(12, 16)]
        elif o == "W1" and ffn: seq += [("W1", i) for i in range(4)]
        elif o == "WO": seq += [("WO", i) for i in range(4)]
        elif o == "W2" and ffn: seq += [("W2", i) for i in range(4)]
    return seq

def emit_stream(seq, p0, p1, st, W=W):
    stages = st["stages"]
    def flag(s_):
        I(f"v_mov_b32 v14, {s_}")
        I("ds_write_b32 v12, v14")
        if s_ <= 13:
            stamp(s_)
    for p in range(p0, p1):
        k, i = seq[p]
        Wp = W
        if k in ("WO", "W2") and args.WT:
            Wp = args.WT
        if k == "V" and args.WV:
            Wp = W + args.WV
        if st.get("ffn"):
            if k == "V" and args.WFV: Wp = args.WFV
            if k in ("WO", "W2") and args.WFT: Wp = args.WFT
        if p >= Wp:
            I(f"s_waitcnt vmcnt({Wp-1})")
            landed = p - Wp
            done = None
            while st["si"] < len(stages) and stages[st["si"]][1] <= landed:
                done = stages[st["si"]][0]; st["si"] += 1
            if done is not None:
                flag(done)
        want_mask = k in ("WO", "W2")
        if want_mask and not st["qk_waited"]:
            spin_lds_ge(vMISC, M_QKDONE - R_M, 4, 15)
            st["qk_waited"] = True
        if want_mask != st["masked"]:
            I("s_mov_b32 exec_hi, 0x00ffffff" if want_mask else "s_mov_b32 exec_hi, -1")
            st["masked"] = want_mask
        if k == "K":
            issue_k(i)
        elif k == "W1":
            if i == 0:
                spin_lds_ge(vMISC, M_QTASK - R_M, 4, 15)
            issue_w(i, "c", 10, 3584)
        elif k == "V":
            I(f"s_add_u32 m0, s{sLV}, {i*4096}")
            I(f"s_add_u32 s{sT0}, s{sROT}, {i*4096}")
            I(f"s_and_b32 s{sT0}, s{sT0}, 0xffff")
            I(f"buffer_load_dwordx4 v9, {S4('b')}, s{sT0} offen nt lds")
        elif k == "WO":
            I(f"s_add_u32 m0, s{sLO}, {i*PITCH}")
            I(f"s_add_u32 s{sT0}, s{sGO}, {i*896}")
            I(f"buffer_load_dwordx4 v11, {S4('d')}, s{sT0} offen nt lds")
        elif k == "W2":
            I(f"s_add_u32 m0, s{sLO}, {(16+i)*PITCH}")
            I(f"s_add_u32 s{sT0}, s{sGO}, {i*896}")
            I(f"buffer_load_dwordx4 v11, {S4('e')}, s{sT0} offen nt lds")
    if p1 == len(seq):
        nn = len(seq)
        while st["si"] < len(stages):
            s_, p = stages[st["si"]]
            I(f"s_waitcnt vmcnt({nn-1-p})")
            flag(s_)
            st["si"] += 1
        stamp_flush()
        I("s_endpgm")

def stages_of(seq):
    last = {}
    for p, (k, i) in enumerate(seq):
        key = f"{k}{i//4}" if k in ("K", "V") else k
        last[stage[key]] = p
    return sorted(last.items(), key=lambda x: x[1])

seqF, seqN = make_seq(True), make_seq(False)
common = 0
while common < len(seqN) and seqF[common] == seqN[common]:
    common += 1
WF = args.WF or W
assert WF >= W
if WF != W:
    common = 4 + NPRE
stF = dict(si=0, masked=False, qk_waited=False, stages=stages_of(seqF))
if NPRE > W - 1:
    I(f"s_waitcnt vmcnt({NPRE})")
    I(f"v_mov_b32 v14, {stage['WQ']}")
    I("ds_write_b32 v12, v14")
    stamp(stage['WQ'])
    stF["si"] = 1
emit_stream(seqF, 4 + NPRE, common, stF)
stN = dict(si=stF["si"], masked=stF["masked"], qk_waited=stF["qk_waited"], stages=stages_of(seqN))
I(f"s_cmp_eq_u32 s{sFFN}, 0")
I("s_cbranch_scc1 L_LOADER_N")
stF["ffn"] = True
emit_stream(seqF, common, len(seqF), stF, WF)
L("L_LOADER_N")
emit_stream(seqN, common, len(seqN), stN)

L("L_CONS")
vGA, vGB = 128, 129
vB1, vB2 = 130, 131
I(f"v_lshrrev_b32 v{vG4}, 4, v{vLANE}")
I(f"v_and_b32 v{vN}, 15, v{vLANE}")
I(f"v_mov_b32 v{vMISC}, {R_M}")
I(f"v_mov_b32 v{vPROG}, {R_F}")
I(f"s_mov_b32 s{sSPIN}, {args.spin}")
I(f"s_mov_b32 s{sRND}, 0")
I(f"s_mov_b32 s{sWOK}, 0")
I(f"s_mov_b32 s{sHOK}, 0")
I("s_waitcnt lgkmcnt(0)")
I(f"s_add_u32 s94, s42, {WS_E}")
I("s_addc_u32 s95, s43, 0")
I(f"s_load_dwordx2 s[{sN0}:{sN1}], s[94:95], 0")
build_srd("h", 42, None, hex(WS_RANGE))
build_srd("a", 16, None, 896)
build_srd("c", 36, None, 896)
build_srd("d", 30, None, 3584)
build_srd("e", 34, None, 896)
build_srd("f", 38, None, 896)
build_srd("g", 40, None, 256)
if args.dbgstamps:
    I(f"s_mov_b32 s{SRD['b']}, s96")
stamp(0)
I(f"s_cmp_lg_u32 s{sWAVE}, 2")
I("s_cbranch_scc1 L_NOG")
I(f"v_lshlrev_b32 v8, 4, v{vLANE}")
I(f"buffer_load_dwordx4 v[16:19], v8, {S4('a')}, 0 offen")
I(f"buffer_load_dwordx4 v[20:23], v8, {S4('c')}, 0 offen")
L("L_NOG")
I(f"v_and_b32 v14, 1, v{vLANE}")
I(f"v_lshl_add_u32 v14, v{vG4}, 1, v14")
I("v_lshlrev_b32 v14, 2, v14")
I(f"s_lshl_b32 s{sT1}, s{sA}, 7")
I(f"s_lshl_b32 s{sT0}, s{sRQ}, 5")
I(f"s_add_u32 s{sT0}, s{sT0}, s{sT1}")
I(f"buffer_load_dword v{vB1}, v14, {S4('d')}, s{sT0} offen")
I(f"s_lshl_b32 s{sT0}, s{sJ}, 5")
I(f"v_add_u32 v133, s{sT0}, v14")
I(f"buffer_load_dword v{vB2}, v133, {S4('e')}, 0 offen")
I(f"s_cmp_lg_u32 s{sWAVE}, 3")
I("s_cbranch_scc1 L_NOZ")
I("v_mov_b32 v8, 0")
I("v_mov_b32 v9, 0")
I("v_mov_b32 v10, 0")
I("v_mov_b32 v11, 0")
I(f"v_lshlrev_b32 v12, 4, v{vLANE}")
I(f"v_add_u32 v12, {R_F}, v12")
I("ds_write_b128 v12, v[8:11]")
I("s_mov_b32 exec_hi, 0")
I("ds_write_b128 v12, v[8:11] offset:1024")
I("s_mov_b64 exec, -1")
L("L_NOZ")
I("s_waitcnt lgkmcnt(0)")
I(f"s_add_u32 s{sN0}, s{sN0}, 0x7f4a7c15")
I(f"s_andn2_b32 s{sN0}, s{sN0}, 15")
I(f"s_xor_b32 s{sN1}, s{sN1}, 0x9e3779b9")
I(f"s_not_b32 s{sT0}, s{sN0}")
I(f"v_mov_b32 v204, s{sT0}")
I(f"v_mov_b32 v205, s{sT0}")
I(f"v_mov_b32 v206, s{sT0}")
I(f"v_mov_b32 v207, s{sT0}")
I(f"v_lshlrev_b32 v8, 4, v{vLANE}")
I(f"s_lshl_b32 s{sT3}, s{sH}, 5")
I(f"s_add_u32 s{sT3}, s{sT3}, s{sJ}")
I(f"s_lshl_b32 s{sT0}, s{sH}, 14")
I(f"s_lshl_b32 s{sT1}, s{sRQ}, 12")
I(f"s_add_u32 s{sT0}, s{sT0}, s{sT1}")
I(f"s_lshr_b32 s{sT1}, s{sJ}, 2")
I(f"s_lshl_b32 s{sT1}, s{sT1}, 9")
I(f"s_add_u32 s{sT0}, s{sT0}, s{sT1}")
I(f"s_lshl_b32 s{sT2}, s{sWAVE}, 7")
I(f"s_add_u32 s{sT0}, s{sT0}, s{sT2}")
I(f"s_add_u32 s{sT0}, s{sT0}, {WS_Q + FAST}")
I("s_mov_b64 exec, 0xff")
I(f"buffer_store_dwordx4 v[204:207], v8, {S4('h')}, s{sT0} offen")
I(f"s_cmp_eq_u32 s{sFFN}, 0")
I("s_cbranch_scc1 L_C0B")
I(f"s_lshl_b32 s{sT0}, s{sA}, 11")
I(f"s_lshl_b32 s{sT1}, s{sRQ}, 9")
I(f"s_add_u32 s{sT0}, s{sT0}, s{sT1}")
I(f"s_add_u32 s{sT0}, s{sT0}, s{sT2}")
I(f"s_add_u32 s{sT0}, s{sT0}, {WS_H + FAST}")
I(f"buffer_store_dwordx4 v[204:207], v8, {S4('h')}, s{sT0} offen")
L("L_C0B")
I("s_mov_b64 exec, -1")
I(f"s_cmp_eq_u32 s{sWAVE}, 1")
I("s_cbranch_scc1 L_C1")
I(f"s_cmp_eq_u32 s{sWAVE}, 2")
I("s_cbranch_scc1 L_C2")
I(f"s_cmp_eq_u32 s{sWAVE}, 3")
I("s_cbranch_scc1 L_C3")
I("s_mov_b32 exec_hi, 0")
I(f"s_lshl_b32 s{sT0}, s{sT3}, 9")
I(f"s_add_u32 s{sT0}, s{sT0}, {WS_T + FAST}")
I(f"buffer_store_dwordx4 v[204:207], v8, {S4('h')}, s{sT0} offen")
I("s_mov_b64 exec, -1")
I("s_barrier")
I("s_branch L_CQ")

L("L_C1")
I(f"s_lshl_b32 s{sT0}, s{sT3}, 12")
I(f"s_add_u32 s{sT0}, s{sT0}, {WS_O + FAST}")
for r in range(4):
    I(f"buffer_store_dwordx4 v[204:207], v8, {S4('h')}, s{sT0} offen offset:{r*1024}")
I("s_barrier")
I("s_branch L_CQ")

L("L_C2")
I("s_barrier")
I("s_waitcnt vmcnt(3)")
I("v_mov_b32 v9, 0")
for k in range(4):
    I(f"v_lshlrev_b32 v10, 16, v{16+k}")
    I(f"v_lshlrev_b32 v11, 16, v{20+k}")
    I(f"v_and_b32 v12, 0xffff0000, v{16+k}")
    I(f"v_and_b32 v13, 0xffff0000, v{20+k}")
    I("v_mul_f32 v10, v10, v11")
    I("v_mul_f32 v12, v12, v13")
    I("v_cvt_pk_bf16_f32 v10, v10, v12")
    I("v_lshlrev_b32 v11, 16, v10")
    I("v_and_b32 v12, 0xffff0000, v10")
    I("v_add_f32 v9, v9, v11")
    I("v_add_f32 v9, v9, v12")
xreduce(9, 10, "v_add_f32", (1, 2, 4, 8))
I("v_cvt_pk_bf16_f32 v9, v9, v9")
I("v_lshlrev_b32 v9, 16, v9")
I("v_mul_f32 v9, 0xbfb8aa3b, v9")
I("v_exp_f32 v9, v9")
nop(1)
I("v_add_f32 v9, 1.0, v9")
I("v_rcp_f32 v9, v9")
nop(1)
I("v_cvt_pk_bf16_f32 v9, v9, v9")
I("v_lshlrev_b32 v10, 16, v9")
I("v_sub_f32 v11, 1.0, v10")
I("v_cvt_pk_bf16_f32 v11, v11, v11")
I("v_lshlrev_b32 v11, 16, v11")
I("s_mov_b64 exec, 1")
I(f"ds_write_b64 v{vMISC}, v[10:11] offset:{M_G - R_M}")
I("s_mov_b64 exec, -1")
I("s_branch L_CQ")

L("L_C3")
I(f"s_lshl_b32 s{sT0}, s{sT3}, 12")
I(f"s_add_u32 s{sT0}, s{sT0}, {WS_R + FAST}")
for r in range(4):
    I(f"buffer_store_dwordx4 v[204:207], v8, {S4('h')}, s{sT0} offen offset:{r*1024}")
I("s_barrier")

def gemv_tile(acc, A0, B0):
    for k in range(3):
        I(f"ds_read2_b64 v[{A0+4*k}:{A0+4*k+3}], v{vGA} offset0:{k*8} offset1:{k*8+4}")
        I(f"ds_read_b64_tr_b16 v[{B0+4*k}:{B0+4*k+1}], v{vGB} offset:{k*4096}")
        I(f"ds_read_b64_tr_b16 v[{B0+4*k+2}:{B0+4*k+3}], v{vGB} offset:{k*4096+2048}")
    I(f"ds_read_b64 v[{A0+12}:{A0+13}], v{vGA} offset:192")
    I(f"ds_read_b64_tr_b16 v[{B0+12}:{B0+13}], v{vGB} offset:{3*4096}")
    for k in range(3):
        I(f"s_waitcnt lgkmcnt({8-3*k})")
        c = "0" if k == 0 else f"v[{acc}:{acc+3}]"
        I(f"v_mfma_f32_16x16x32_bf16 v[{acc}:{acc+3}], v[{A0+4*k}:{A0+4*k+3}], v[{B0+4*k}:{B0+4*k+3}], {c}")
    I("s_waitcnt lgkmcnt(0)")
    I(f"v_mfma_f32_16x16x16_bf16 v[{acc+4}:{acc+7}], v[{A0+12}:{A0+13}], v[{B0+12}:{B0+13}], 0")

def pairs16(acc, d):
    nop(8)
    I(f"v_add_f32 v{d}, v{acc}, v{acc+4}")
    nop(2)
    I(f"v_mov_b32_dpp v{d+1}, v{d} quad_perm:[1,0,3,2] row_mask:0xf bank_mask:0xf")

L("L_CQ")
if args.lonly:
    I("v_mov_b32 v9, 1")
    I("s_mov_b64 exec, 1")
    I(f"ds_add_u32 v{vMISC}, v9 offset:{M_QTASK - R_M}")
    I(f"ds_add_u32 v{vMISC}, v9 offset:{M_QKDONE - R_M}")
    I("s_branch L_CEND")
I(f"s_mul_i32 s{sT0}, s{sRQ}, 224")
I(f"s_add_u32 s{sT0}, s{sT0}, {R_X}")
I(f"v_lshlrev_b32 v{vGA}, 3, v{vG4}")
I(f"v_add_u32 v{vGA}, s{sT0}, v{vGA}")
I(f"v_bfe_u32 v10, v{vLANE}, 2, 2")
I(f"v_lshl_add_u32 v10, v{vG4}, 2, v10")
I("v_bfe_u32 v11, v10, 1, 2")
I(f"v_xor_b32 v11, s{sWAVE}, v11")
I("v_lshlrev_b32 v11, 5, v11")
I("v_lshl_add_u32 v11, v10, 7, v11")
I(f"v_and_b32 v10, 3, v{vLANE}")
I("v_lshl_add_u32 v11, v10, 3, v11")
I(f"v_add_u32 v{vGB}, {R_W}, v11")
I(f"s_lshl_b32 s{sT3}, s{sH}, 14")
I(f"s_lshl_b32 s{sT1}, s{sRQ}, 12")
I(f"s_add_u32 s{sT3}, s{sT3}, s{sT1}")
I(f"s_lshr_b32 s{sT1}, s{sJ}, 2")
I(f"s_lshl_b32 s{sT1}, s{sT1}, 9")
I(f"s_add_u32 s{sT3}, s{sT3}, s{sT1}")
I(f"s_lshl_b32 s{sT1}, s{sWAVE}, 7")
I(f"s_add_u32 s{sT3}, s{sT3}, s{sT1}")
I(f"s_add_u32 s{sT3}, s{sT3}, {WS_Q}")
I(f"v_lshlrev_b32 v132, 3, v{vLANE}")
spin_prog_all(vPROG, stage["WQ"], 136, sleep=0)
stamp(1)
I(f"s_getreg_b32 s{sWOK}, hwreg(HW_REG_XCC_ID, 0, 4)")
I(f"s_or_b32 s{sWOK}, s{sWOK}, s{sN0}")
I(f"v_mov_b32 v122, s{sWOK}")
I(f"v_mov_b32 v123, s{sN1}")
gemv_tile(112, 16, 32)
I("v_mov_b32 v9, 1")
I("s_mov_b64 exec, 1")
I(f"ds_add_u32 v{vMISC}, v9 offset:{M_QTASK - R_M}")
I("s_mov_b64 exec, -1")
pairs16(112, 120)
I("s_waitcnt vmcnt(0)")
I("s_mov_b64 exec, 0x5555")
fast_store(4, "v[120:123]", 132, sT3, sT1)
I("s_mov_b64 exec, -1")
stamp(2)
def q_slow():
    I("s_mov_b64 exec, 0x5555")
    slow_store(4, "v[120:123]", 132, sT3)
    I("s_mov_b64 exec, -1")
I(f"v_lshlrev_b32 v8, 4, v{vLANE}")
I(f"s_lshl_b32 s{sT1}, s{sWAVE}, 10")
I(f"s_lshl_b32 s{sT2}, s{sH}, 14")
I(f"s_add_u32 s{sT2}, s{sT2}, s{sT1}")
I(f"s_add_u32 s{sT2}, s{sT2}, {WS_Q}")
I(f"v_add_u32 v9, 4096, v8")
I(f"v_add_u32 v10, 8192, v8")
I(f"v_add_u32 v11, 12288, v8")
if args.qgate:
    spin_prog_all(vPROG, stage[args.qgate], 136, sleep=2)
if args.noqpoll:
    I("s_branch L_QPOLL_DONE")
L("L_QPOLL")
I(f"s_sleep {args.qsleep}")
pick(sT1, sT2, q_slow)
for r in range(4):
    I(f"buffer_load_dwordx4 v[{16+4*r}:{19+4*r}], v{8+r}, {S4('h')}, s{sT1} offen sc1")
I("s_waitcnt vmcnt(0)")
for r in range(4):
    I(f"v_xor_b32 v{32+r}, s{sWOK}, v{18+4*r}")
    I(f"v_and_b32 v{18+4*r}, -16, v{18+4*r}")
tagcheck([16, 20, 24, 28], "L_QPOLL", "L_QPOLL_DONE")
L("L_QPOLL_DONE")
q_slow()
I("v_or3_b32 v32, v32, v33, v34")
I("v_or_b32 v32, v32, v35")
I("v_cmp_ne_u32 vcc, 0, v32")
I(f"s_mov_b32 s{sWOK}, 0")
I("s_cmp_lg_u64 vcc, 0")
I(f"s_cselect_b32 s{sT0}, 1, 0")
I(f"v_mov_b32 v33, s{sT0}")
I("s_mov_b64 exec, 1")
I(f"ds_add_u32 v{vMISC}, v33 offset:{M_REMOTE_OFF}")
I("s_mov_b64 exec, -1")
I(f"v_mov_b32 v122, s{sN0}")
I("v_add_f32 v16, v16, v20")
I("v_add_f32 v17, v17, v21")
I("v_add_f32 v24, v24, v28")
I("v_add_f32 v25, v25, v29")
I("v_add_f32 v16, v16, v24")
I("v_add_f32 v17, v17, v25")
I("v_cvt_pk_bf16_f32 v16, v16, v17")
I(f"s_lshl_b32 s{sT1}, s{sWAVE}, 8")
I(f"s_add_u32 s{sT1}, s{sT1}, {R_Q}")
I(f"v_lshlrev_b32 v9, 2, v{vLANE}")
I(f"v_add_u32 v9, s{sT1}, v9")
I("v_mov_b32 v10, 1")
I("ds_write_b32 v9, v16")
I("s_waitcnt lgkmcnt(0)")
I("s_mov_b64 exec, 1")
I(f"ds_add_u32 v{vMISC}, v10 offset:{M_QCNT - R_M}")
I("s_mov_b64 exec, -1")
stamp(3)
qA = 40
kB = 140
acc0, acc1 = 112, 116
I(f"v_and_b32 v8, 1, v{vLANE}")
I("v_lshlrev_b32 v8, 9, v8")
I(f"v_lshl_add_u32 v8, v{vG4}, 4, v8")
I(f"v_add_u32 v8, {R_Q}, v8")
I(f"v_and_b32 v9, 3, v{vN}")
I(f"v_xor_b32 v9, v{vG4}, v9")
I(f"v_and_b32 v10, 12, v{vN}")
I("v_or_b32 v9, v9, v10")
I("v_lshlrev_b32 v9, 4, v9")
I(f"v_lshl_add_u32 v9, v{vN}, 10, v9")
I(f"s_lshl_b32 s{sT0}, s{sWAVE}, 14")
I(f"v_add_u32 v9, s{sT0}, v9")
for q in range(1, 4):
    I(f"v_xor_b32 v{9+q}, {q*64}, v9")
I(f"s_add_u32 s{sT3}, s{sWAVE}, {stage['K0']}")
spin_prog_all(vPROG, f"s{sT3}", 136)
for t in range(2):
    for i in range(8):
        r = kB + (t*8+i)*4
        I(f"ds_read_b128 v[{r}:{r+3}], v{9+(i&3)} offset:{t*512 + (i>>2)*256}")
spin_lds_ge(vMISC, M_QCNT - R_M, 4, 13, sleep=0)
stamp(4)
I(f"ds_read_b32 v14, v{vMISC} offset:{M_REMOTE_OFF}")
for i in range(8):
    I(f"ds_read_b128 v[{qA+4*i}:{qA+4*i+3}], v8 offset:{i*64}")
for i in range(8):
    I(f"s_waitcnt lgkmcnt({7-i})")
    if i == 1:
        I(f"v_readfirstlane_b32 s{sFOFF}, v14")
        I(f"s_cmp_eq_u32 s{sFOFF}, 0")
        I(f"s_cselect_b32 s{sFOFF}, {FAST}, 0")
    for t in range(2):
        acc = acc0 if t == 0 else acc1
        r = kB + (t*8+i)*4
        c = "0" if i == 0 else f"v[{acc}:{acc+3}]"
        I(f"v_mfma_f32_16x16x32_bf16 v[{acc}:{acc+3}], v[{qA+4*i}:{qA+4*i+3}], v[{r}:{r+3}], {c}")
CEXP = "0x3db8aa3b"
I(f"s_mov_b32 s{sT2}, {CEXP}")
I(f"s_lshl_b32 s{sT1}, s{sWAVE}, 3")
I(f"v_mov_b32 v8, s{sT1}")
I(f"v_add_u32 v8, {M_MAX}, v8")
nop(5)
I(f"v_cvt_pk_bf16_f32 v120, v{acc0}, v{acc1}")
I(f"v_cvt_pk_bf16_f32 v121, v{acc0+1}, v{acc1+1}")
I("v_lshlrev_b32 v16, 16, v120")
I("v_and_b32 v17, 0xffff0000, v120")
I("v_lshlrev_b32 v18, 16, v121")
I("v_and_b32 v19, 0xffff0000, v121")
I("v_max_f32 v20, v16, v17")
I("v_max_f32 v21, v18, v19")
for r in (1, 2, 4, 8):
    nop(1)
    I(f"v_max_f32_dpp v20, v20, v20 row_ror:{r} row_mask:0xf bank_mask:0xf")
    I(f"v_max_f32_dpp v21, v21, v21 row_ror:{r} row_mask:0xf bank_mask:0xf")
I("v_mov_b32 v9, 1")
I("s_mov_b64 exec, 1")
I("ds_write_b64 v8, v[20:21]")
I("s_waitcnt lgkmcnt(0)")
I(f"ds_add_u32 v{vMISC}, v9 offset:{M_QKDONE - R_M}")
I("s_mov_b64 exec, -1")
spin_lds_ge(vMISC, M_QKDONE - R_M, 4, 13, sleep=0)
I(f"ds_read_b128 v[24:27], v{vMISC} offset:{M_MAX - R_M}")
I(f"ds_read_b128 v[28:31], v{vMISC} offset:{M_MAX - R_M + 16}")
I("s_waitcnt lgkmcnt(0)")
I("v_max_f32 v20, v24, v26")
I("v_max_f32 v21, v25, v27")
I("v_max3_f32 v20, v20, v28, v30")
I("v_max3_f32 v21, v21, v29, v31")
I("v_sub_f32 v16, v16, v20")
I("v_sub_f32 v17, v17, v20")
I("v_sub_f32 v18, v18, v21")
I("v_sub_f32 v19, v19, v21")
for k in range(4):
    I(f"v_mul_f32 v{16+k}, s{sT2}, v{16+k}")
for k in range(4):
    I(f"v_exp_f32 v{16+k}, v{16+k}")
nop(1)
I("v_cvt_pk_bf16_f32 v24, v16, v17")
I("v_cvt_pk_bf16_f32 v25, v18, v19")
I("v_add_f32 v22, v16, v17")
I("v_add_f32 v23, v18, v19")
I(f"s_lshl_b32 s{sT1}, s{sWAVE}, 6")
I(f"s_add_u32 s{sT1}, s{sT1}, {R_P}")
I(f"v_lshlrev_b32 v8, 2, v{vN}")
I(f"v_add_u32 v8, s{sT1}, v8")
I("s_mov_b64 exec, 0xffff")
I("ds_write_b32 v8, v24")
I("ds_write_b32 v8, v25 offset:256")
I("s_mov_b64 exec, -1")
for r in (1, 2, 4, 8):
    nop(1)
    I(f"v_add_f32_dpp v22, v22, v22 row_ror:{r} row_mask:0xf bank_mask:0xf")
    I(f"v_add_f32_dpp v23, v23, v23 row_ror:{r} row_mask:0xf bank_mask:0xf")
I("s_mov_b64 exec, 1")
I(f"ds_add_f32 v{vMISC}, v22 offset:{M_LSUM - R_M}")
I(f"ds_add_f32 v{vMISC}, v23 offset:{M_LSUM - R_M + 4}")
I("s_waitcnt lgkmcnt(0)")
I(f"ds_add_u32 v{vMISC}, v9 offset:{M_PCNT - R_M}")
I("s_mov_b64 exec, -1")
I(f"v_and_b32 v10, 1, v{vLANE}")
I("v_lshlrev_b32 v10, 8, v10")
I(f"v_lshl_add_u32 v10, v{vG4}, 3, v10")
I(f"v_add_u32 v10, {R_P}, v10")
I(f"v_bfe_u32 v11, v{vLANE}, 2, 2")
I(f"v_lshl_add_u32 v12, v{vG4}, 2, v11")
I("v_and_b32 v13, 7, v12")
I(f"s_lshl_b32 s{sT1}, s{sWAVE}, 2")
I(f"v_xor_b32 v13, s{sT1}, v13")
I("v_lshlrev_b32 v13, 5, v13")
I("v_lshl_add_u32 v13, v12, 9, v13")
I(f"v_and_b32 v14, 3, v{vLANE}")
I("v_lshl_add_u32 v13, v14, 3, v13")
I(f"v_add_u32 v32, {R_V}, v13")
for tt in range(1, 4):
    I(f"v_xor_b32 v{32+tt}, {tt*32}, v32")
I(f"v_mul_u32_u24 v134, {PITCH}, v12")
I("v_lshl_add_u32 v134, v14, 3, v134")
I(f"s_mul_i32 s{sT0}, s{sWAVE}, {7*32}")
I(f"v_add_u32 v134, s{sT0}, v134")
spin_lds_ge(vMISC, M_PCNT - R_M, 4, 13, sleep=0)
pA = 36
for s in range(4):
    I(f"ds_read2_b64 v[{pA+4*s}:{pA+4*s+3}], v10 offset0:{s*8} offset1:{s*8+4}")
I(f"ds_read_b64 v[220:221], v{vMISC} offset:{M_G - R_M}")
sk = newlabel("NOSTAT")
I(f"s_cmp_lg_u32 s{sWAVE}, 0")
I(f"s_cbranch_scc1 {sk}")
I(f"ds_read_b64 v[22:23], v{vMISC} offset:{M_LSUM - R_M}")
I(f"v_cmp_eq_u32 vcc, 1, v{vG4}")
I(f"s_lshl_b32 s{sT0}, s{sH}, 14")
I(f"s_lshl_b32 s{sT1}, s{sJ}, 4")
I(f"s_add_u32 s{sT0}, s{sT0}, s{sT1}")
I(f"s_add_u32 s{sT0}, s{sT0}, {WS_T}")
I(f"v_lshlrev_b32 v8, 9, v{vLANE}")
I("s_waitcnt lgkmcnt(0)")
I("v_cndmask_b32 v120, v20, v21, vcc")
I("v_cndmask_b32 v121, v22, v23, vcc")
I("s_mov_b32 exec_hi, 0")
pub_store(4, "v[120:123]", 8, sT0, sT1)
I("s_mov_b64 exec, -1")
L(sk)
G1, G2, G3, ODD = f"s[{sX0}:{sX0+1}]", f"s[{sMA}:{sMA+1}]", f"s[{sMB}:{sMB+1}]", f"s[{sX0+2}:{sX0+3}]"
I(f"v_cmp_eq_u32 {G2}, 2, v{vG4}")
I(f"v_cmp_eq_u32 {G3}, 3, v{vG4}")
I(f"v_cmp_eq_u32 {G1}, 1, v{vG4}")
I(f"v_and_b32 v8, 1, v{vLANE}")
I(f"v_cmp_eq_u32 {ODD}, 1, v8")
I(f"v_lshl_add_u32 v135, v8, 4, v{vG4}")
I("v_lshlrev_b32 v135, 12, v135")
I(f"v_lshrrev_b32 v10, 1, v{vN}")
I("v_lshl_add_u32 v135, v10, 4, v135")
I(f"s_lshl_b32 s{sOOFF}, s{sH}, 5")
I(f"s_lshl_b32 s{sT1}, s{sWAVE}, 2")
I(f"s_add_u32 s{sOOFF}, s{sOOFF}, s{sT1}")
I(f"s_lshl_b32 s{sOOFF}, s{sOOFF}, 12")
I(f"s_lshl_b32 s{sT1}, s{sJ}, 7")
I(f"s_add_u32 s{sOOFF}, s{sOOFF}, s{sT1}")
I(f"s_add_u32 s{sOOFF}, s{sOOFF}, {WS_O}")
stamp(5)
W1LATE = stage['W1'] > stage['V3']
assert not W1LATE
def ffn1_block():
    I(f"s_cmp_eq_u32 s{sFFN}, 0")
    I("s_cbranch_scc1 L_NOFFN1")
    I(f"s_lshl_b32 s{sT2}, s{sA}, 11")
    I(f"s_lshl_b32 s{sT1}, s{sRQ}, 9")
    I(f"s_add_u32 s{sT2}, s{sT2}, s{sT1}")
    I(f"s_lshl_b32 s{sT1}, s{sWAVE}, 7")
    I(f"s_add_u32 s{sT2}, s{sT2}, s{sT1}")
    I(f"s_add_u32 s{sT2}, s{sT2}, {WS_H}")
    spin_prog_all(vPROG, stage["W1"], 136)
    gemv_tile(112, 140, 156)
    pairs16(112, 120)
    I("s_mov_b64 exec, 0x5555")
    pub_store(4, "v[120:123]", 132, sT2, sT1)
    I("s_mov_b64 exec, -1")
    L("L_NOFFN1")


if not W1LATE:
    ffn1_block()
sTS, sHS = 98, 99
I(f"s_lshl_b32 s{sTS}, s{sH}, 5")
I(f"s_add_u32 s{sTS}, s{sTS}, s{sJ}")
I(f"s_lshl_b32 s{sOG}, s{sTS}, 12")
I(f"s_lshl_b32 s{sTS}, s{sTS}, 9")
I(f"s_add_u32 s{sTS}, s{sTS}, {WS_T}")
I(f"s_add_u32 s{sTS}, s{sTS}, s{sFOFF}")
I(f"s_add_u32 s{sOG}, s{sOG}, s{sFOFF}")
I(f"v_bfe_u32 v14, v{vLANE}, 1, 3")
I("v_lshlrev_b32 v192, 4, v14")
I(f"v_and_b32 v15, 1, v{vLANE}")
I(f"v_lshl_add_u32 v15, v{vG4}, 1, v15")
I("v_lshlrev_b32 v15, 4, v15")
I("v_lshl_add_u32 v197, v14, 7, v15")
I(f"s_lshl_b32 s{sHS}, s{sA}, 11")
I(f"s_lshl_b32 s{sT1}, s{sRQ}, 7")
I(f"s_add_u32 s{sHS}, s{sHS}, s{sT1}")
I(f"s_add_u32 s{sHS}, s{sHS}, {WS_H}")
I(f"s_add_u32 s{sHS}, s{sHS}, s{sFOFF}")
I("v_and_b32 v14, 3, v14")
I("v_lshl_add_u32 v193, v14, 9, v15")
I(f"v_and_b32 v8, 1, v{vLANE}")
I(f"v_lshl_add_u32 v222, v8, 2, v{vG4}")
I("v_lshlrev_b32 v222, 12, v222")
I(f"v_lshrrev_b32 v10, 1, v{vN}")
I("v_lshl_add_u32 v222, v10, 4, v222")
I(f"s_mul_i32 s{sRP}, s{sWAVE}, 7")
I(f"s_lshl_b32 s{sT1}, s{sH}, 5")
I(f"s_add_u32 s{sRP}, s{sRP}, s{sT1}")
I(f"s_lshl_b32 s{sRP}, s{sRP}, 12")
I(f"s_lshl_b32 s{sT1}, s{sJ}, 7")
I(f"s_add_u32 s{sRP}, s{sRP}, s{sT1}")
I(f"s_add_u32 s{sRP}, s{sRP}, {WS_R}")
I(f"v_mov_b32 v126, s{sN0}")
I(f"v_mov_b32 v127, s{sN1}")
I(f"v_mov_b32 v202, s{sN0}")
I(f"v_mov_b32 v203, s{sN1}")
I(f"s_mov_b32 s{sDW}, 0")
ST = [172, 176, 180, 184]
HR = 188
def ror1(v, op, rors):
    for r in rors:
        nop(2)
        I(f"{op}_dpp v{v}, v{v}, v{v} row_ror:{r} row_mask:0xf bank_mask:0xf")
def ror2(v, w, op, rors):
    for r in rors:
        nop(1)
        I(f"{op}_dpp v{v}, v{v}, v{v} row_ror:{r} row_mask:0xf bank_mask:0xf")
        I(f"{op}_dpp v{w}, v{w}, v{w} row_ror:{r} row_mask:0xf bank_mask:0xf")
def stats_loads(soff):
    for r in range(4):
        I(f"buffer_load_dwordx4 v[{ST[r]}:{ST[r]+3}], v192, {S4('h')}, s{soff} offen offset:{r*128} sc1")
def stats_weights():
    I(f"v_max_f32 v194, v{ST[0]}, v{ST[1]}")
    I(f"v_max3_f32 v194, v194, v{ST[2]}, v{ST[3]}")
    ror1(194, "v_max_f32", (2, 4, 8))
    I(f"s_mov_b32 s{sT2}, {CEXP}")
    for r in ST:
        I(f"v_sub_f32 v{r}, v{r}, v194")
    for r in ST:
        I(f"v_mul_f32 v{r}, s{sT2}, v{r}")
    for r in ST:
        I(f"v_exp_f32 v{r}, v{r}")
    nop(1)
    I(f"v_mul_f32 v196, v{ST[0]}, v{ST[0]+1}")
    for r in ST[1:]:
        I(f"v_fmac_f32 v196, v{r}, v{r+1}")
    ror1(196, "v_add_f32", (2, 4, 8))
    I("v_rcp_f32 v196, v196")
    nop(1)
    for r in ST:
        I(f"v_mul_f32 v{r}, v{r}, v196")
    I(f"s_mov_b32 s{sWOK}, 1")
def pairs_to_A(vsrc, d0, d1):
    nop(2)
    I(f"v_mov_b32_dpp v{d0}, v{vsrc} quad_perm:[0,0,2,2] row_mask:0xf bank_mask:0xf")
    I(f"v_mov_b32_dpp v{d1}, v{vsrc} quad_perm:[1,1,3,3] row_mask:0xf bank_mask:0xf")
def h_compute():
    ror2(HR, HR+1, "v_add_f32", (2, 4))
    I(f"v_cvt_pk_bf16_f32 v{HR}, v{HR}, v{HR+1}")
    I(f"v_lshlrev_b32 v{HR+2}, 16, v{HR}")
    I(f"v_and_b32 v{HR+3}, 0xffff0000, v{HR}")
    I(f"v_lshlrev_b32 v194, 16, v{vB1}")
    I(f"v_and_b32 v195, 0xffff0000, v{vB1}")
    I(f"v_add_f32 v{HR+2}, v{HR+2}, v194")
    I(f"v_add_f32 v{HR+3}, v{HR+3}, v195")
    I(f"v_cvt_pk_bf16_f32 v{HR}, v{HR+2}, v{HR+3}")
    I(f"v_lshlrev_b32 v{HR+2}, 16, v{HR}")
    I(f"v_and_b32 v{HR+3}, 0xffff0000, v{HR}")
    I(f"v_max_f32 v{HR+2}, 0, v{HR+2}")
    I(f"v_max_f32 v{HR+3}, 0, v{HR+3}")
    I(f"v_mul_f32 v{HR+2}, v{HR+2}, v{HR+2}")
    I(f"v_mul_f32 v{HR+3}, v{HR+3}, v{HR+3}")
    I(f"v_cvt_pk_bf16_f32 v{HR}, v{HR+2}, v{HR+3}")
    pairs_to_A(HR, 198, 199)
    I(f"s_mov_b32 s{sHOK}, 1")

accA = 68
accB = 96
wB = 140
w2B = 156
def wo_reads():
    for t in range(7):
        I(f"ds_read_b64_tr_b16 v[{wB+2*t}:{wB+2*t+1}], v134 offset:{t*32}")
    I(f"s_mov_b32 s{sDW}, 1")
def ffn_work():
    for t in range(7):
        I(f"ds_read_b64_tr_b16 v[{w2B+2*t}:{w2B+2*t+1}], v134 offset:{16*PITCH + t*32}")
    for t in range(7):
        I(f"s_waitcnt lgkmcnt({6-t})")
        I(f"v_mfma_f32_16x16x16_bf16 v[{accB+4*t}:{accB+4*t+3}], v[198:199], v[{w2B+2*t}:{w2B+2*t+1}], 0")
    nop(3)
    for t in range(7):
        if t == 6:
            nop(2)
        I(f"v_mul_f32 v{accB+4*t}, v221, v{accB+4*t}")
    I(f"s_mov_b32 s{sDF}, 1")
I(f"s_xor_b32 s{sDF}, s{sFFN}, 1")
if not W1LATE:
    for t in range(7):
        I(f"v_mov_b32 v{accB+4*t}, 0")
vB = 52
accO = 68
for s in range(4):
    spin_prog_all(vPROG, stage[f"V{s}"], 136, sleep=(1 if s < 3 else 0))
    for tt in range(4):
        I(f"ds_read_b64_tr_b16 v[{vB+4*tt}:{vB+4*tt+1}], v{32+tt} offset:{s*16384}")
        I(f"ds_read_b64_tr_b16 v[{vB+4*tt+2}:{vB+4*tt+3}], v{32+tt} offset:{s*16384+8192}")
    for tt in range(4):
        I(f"s_waitcnt lgkmcnt({6-2*tt})")
        c = "0" if s == 0 else f"v[{accO+4*tt}:{accO+4*tt+3}]"
        I(f"v_mfma_f32_16x16x32_bf16 v[{accO+4*tt}:{accO+4*tt+3}], v[{pA+4*s}:{pA+4*s+3}], v[{vB+4*tt}:{vB+4*tt+3}], {c}")
    if s == 1:
        stats_loads(sTS)
        if not W1LATE:
            I(f"buffer_load_dwordx4 v[{HR}:{HR+3}], v193, {S4('h')}, s{sHS} offen sc1")
    if s == 2:
        I("s_waitcnt vmcnt(0)")
        e1 = newlabel("E1")
        tagmask(ST)
        I("s_cmp_eq_u64 vcc, exec")
        I(f"s_cbranch_scc0 {e1}")
        stats_weights()
        L(e1)
        if not W1LATE:
            e2 = newlabel("E2")
            I(f"s_cmp_eq_u32 s{sFFN}, 0")
            I(f"s_cbranch_scc1 {e2}")
            tagmask([HR])
            I("s_cmp_eq_u64 vcc, exec")
            I(f"s_cbranch_scc0 {e2}")
            h_compute()
            if stage["W2"] < stage["V3"]:
                spin_prog_all(vPROG, stage["W2"], 136, sleep=0)
                ffn_work()
            L(e2)
        if stage["WO"] < stage["V3"]:
            spin_prog_all(vPROG, stage["WO"], 136, sleep=0)
            wo_reads()
stamp(6)
nop(6)
I(f"v_cndmask_b32 v16, v{accO}, v{accO+4}, {G1}")
I(f"v_cndmask_b32 v17, v{accO+1}, v{accO+5}, {G1}")
I(f"v_cndmask_b32 v16, v16, v{accO+8}, {G2}")
I(f"v_cndmask_b32 v17, v17, v{accO+9}, {G2}")
I(f"v_cndmask_b32 v16, v16, v{accO+12}, {G3}")
I(f"v_cndmask_b32 v17, v17, v{accO+13}, {G3}")
nop(1)
I("v_mov_b32_dpp v18, v16 quad_perm:[1,0,3,2] row_mask:0xf bank_mask:0xf")
I("v_mov_b32_dpp v19, v17 quad_perm:[1,0,3,2] row_mask:0xf bank_mask:0xf")
nop(1)
I(f"v_cndmask_b32 v200, v16, v19, {ODD}")
I(f"v_cndmask_b32 v201, v18, v17, {ODD}")
pub_store(4, "v[200:203]", 135, sOOFF, sT1)
stamp(7)
if W1LATE:
    ffn1_block()
I(f"s_cmp_lg_u32 s{sWOK}, 0")
I("s_cbranch_scc1 L_TOK")
L("L_TPOLL")
stats_loads(sTS)
I("s_waitcnt vmcnt(0)")
tagcheck(ST, "L_TPOLL", "L_TPOLL_DONE")
L("L_TPOLL_DONE")
stats_weights()
L("L_TOK")
I(f"s_cmp_lg_u32 s{sDF}, 0")
I("s_cbranch_scc1 L_FDONE0")
I(f"s_cmp_lg_u32 s{sHOK}, 0")
I("s_cbranch_scc1 L_HOK")
L("L_HPOLL")
I(f"buffer_load_dwordx4 v[{HR}:{HR+3}], v193, {S4('h')}, s{sHS} offen sc1")
I("s_waitcnt vmcnt(0)")
tagcheck([HR], "L_HPOLL", "L_HPOLL_DONE")
L("L_HPOLL_DONE")
h_compute()
L("L_HOK")
L("L_FDONE0")
I(f"s_add_u32 s{sT2}, s{sOG}, {WS_O}")
L("L_OPOLL")
for r in range(4):
    I(f"buffer_load_dwordx4 v[{48+4*r}:{51+4*r}], v197, {S4('h')}, s{sT2} offen offset:{r*1024} sc1")
I(f"s_and_b32 s{sT0}, s{sDW}, s{sDF}")
I("s_cbranch_scc1 L_OCHK")
I(f"ds_read_b128 v[136:139], v{vPROG}")
I("s_waitcnt lgkmcnt(0)")
I("v_min3_u32 v136, v136, v137, v138")
I("v_min_u32 v136, v136, v139")
nop(1)
I(f"v_readfirstlane_b32 s{sT3}, v136")
I(f"s_cmp_lg_u32 s{sDW}, 0")
I("s_cbranch_scc1 L_OC2")
I(f"s_cmp_ge_u32 s{sT3}, {stage['WO']}")
I("s_cbranch_scc0 L_OC2")
wo_reads()
L("L_OC2")
I(f"s_cmp_lg_u32 s{sDF}, 0")
I("s_cbranch_scc1 L_OCHK")
I(f"s_cmp_ge_u32 s{sT3}, {stage['W2']}")
I("s_cbranch_scc0 L_OCHK")
ffn_work()
L("L_OCHK")
I("s_waitcnt vmcnt(0)")
tagcheck([48, 52, 56, 60], "L_OPOLL", "L_OPOLL_DONE")
L("L_OPOLL_DONE")
stamp(8)
I(f"v_mul_f32 v40, v{ST[0]}, v48")
I(f"v_mul_f32 v41, v{ST[0]}, v49")
for r in range(1, 4):
    I(f"v_fmac_f32 v40, v{ST[r]}, v{48+4*r}")
    I(f"v_fmac_f32 v41, v{ST[r]}, v{49+4*r}")
ror2(40, 41, "v_add_f32", (2, 4, 8))
I("v_cvt_pk_bf16_f32 v40, v40, v41")
pairs_to_A(40, 46, 47)
I(f"s_cmp_lg_u32 s{sDW}, 0")
I("s_cbranch_scc1 L_WD1")
spin_prog_all(vPROG, stage["WO"], 136, sleep=0)
wo_reads()
L("L_WD1")
I(f"s_cmp_lg_u32 s{sDF}, 0")
I("s_cbranch_scc1 L_WDONE")
spin_prog_all(vPROG, stage["W2"], 136, sleep=0)
ffn_work()
L("L_WDONE")
I("s_waitcnt lgkmcnt(0)")
for t in range(7):
    I(f"v_mfma_f32_16x16x16_bf16 v[{accA+4*t}:{accA+4*t+3}], v[46:47], v[{wB+2*t}:{wB+2*t+1}], 0")
nop(3)
for t in range(7):
    if t == 6:
        nop(1)
    I(f"v_fmac_f32 v{accB+4*t}, v220, v{accA+4*t}")
stamp(9)
I(f"v_cndmask_b32 v16, v{accB}, v{accB+4}, {G1}")
I(f"v_cndmask_b32 v17, v{accB+16}, v{accB+20}, {G1}")
I(f"v_cndmask_b32 v16, v16, v{accB+8}, {G2}")
I(f"v_cndmask_b32 v17, v17, v{accB+24}, {G2}")
I(f"v_cndmask_b32 v16, v16, v{accB+12}, {G3}")
nop(2)
I("v_mov_b32_dpp v18, v16 quad_perm:[1,0,3,2] row_mask:0xf bank_mask:0xf")
I("v_mov_b32_dpp v19, v17 quad_perm:[1,0,3,2] row_mask:0xf bank_mask:0xf")
nop(1)
I(f"v_cndmask_b32 v124, v16, v19, {ODD}")
I(f"v_cndmask_b32 v125, v18, v17, {ODD}")
I("s_mov_b32 exec_hi, 0x5555ffff")
pub_store(4, "v[124:127]", 222, sRP, sT1)
I("s_mov_b64 exec, -1")
stamp(10)
I(f"s_cmp_eq_u32 s{sWAVE}, 0")
I(f"s_cselect_b32 s{sT0}, s{sJ}, 99")
I(f"s_cmp_lt_u32 s{sT0}, 28")
I("s_cbranch_scc0 L_CEND")
I(f"s_add_u32 s{sT3}, s{sOG}, {WS_R}")
I(f"s_lshl_b32 s{sT2}, s{sJ}, 10")
I(f"s_add_u32 s{sT2}, s{sT2}, {WS_P2}")
I(f"s_lshl_b32 s{sT1}, s{sH}, 7")
I(f"s_add_u32 s{sT1}, s{sT1}, s{sT2}")
L("L_RPOLL")
for r in range(4):
    I(f"buffer_load_dwordx4 v[{48+4*r}:{51+4*r}], v197, {S4('h')}, s{sT3} offen offset:{r*1024} sc1")
I("s_waitcnt vmcnt(0)")
tagcheck([48, 52, 56, 60], "L_RPOLL", "L_RPOLL_DONE")
L("L_RPOLL_DONE")
I("v_add_f32 v48, v48, v52")
I("v_add_f32 v49, v49, v53")
I("v_add_f32 v56, v56, v60")
I("v_add_f32 v57, v57, v61")
I("v_add_f32 v48, v48, v56")
I("v_add_f32 v49, v49, v57")
ror2(48, 49, "v_add_f32", (2, 4, 8))
I(f"v_mov_b32 v50, s{sN0}")
I(f"v_mov_b32 v51, s{sN1}")
I("s_mov_b32 exec_lo, 0x00030003")
I("s_mov_b32 exec_hi, 0x00030003")
I(f"buffer_store_dwordx4 v[48:51], v197, {S4('h')}, s{sT1} offen sc1")
I("s_mov_b64 exec, -1")
stamp(11)
I(f"s_and_b32 s{sT0}, s{sJ}, 7")
I(f"s_cmp_eq_u32 s{sT0}, s{sH}")
I("s_cbranch_scc0 L_CEND")
I(f"v_lshlrev_b32 v22, 16, v{vB2}")
I(f"v_and_b32 v23, 0xffff0000, v{vB2}")
L("L_FPOLL")
if args.fsleep:
    I(f"s_sleep {args.fsleep}")
I(f"buffer_load_dwordx4 v[16:19], v197, {S4('h')}, s{sT2} offen {args.fflags.replace('_',' ')}")
I("s_waitcnt vmcnt(0)")
tagcheck([16], "L_FPOLL", "L_FPOLL_DONE")
L("L_FPOLL_DONE")
ror2(16, 17, "v_add_f32", (2, 4, 8))
I("v_fmac_f32 v16, v221, v22")
I("v_fmac_f32 v17, v221, v23")
I("v_cvt_pk_bf16_f32 v16, v16, v17")
I("s_mov_b32 exec_lo, 0x00030003")
I("s_mov_b32 exec_hi, 0x00030003")
I(f"buffer_store_dword v16, v133, {S4('f')}, 0 offen")
I(f"s_cmp_lg_u32 s2, 0")
I("s_cbranch_scc1 L_NOEP")
I(f"v_mov_b32 v8, {WS_E}")
I(f"v_mov_b32 v12, s{sN0}")
I(f"v_mov_b32 v13, s{sN1}")
I("s_mov_b64 exec, 1")
I(f"buffer_store_dwordx2 v[12:13], v8, {S4('h')}, 0 offen sc1")
L("L_NOEP")
stamp(12)
L("L_CEND")
stamp_flush(cons=True)
L("L_END")
I("s_endpgm")
L("L_CODE_END")
if not args.nopf:
    A(".set CODE_BYTES_AFTER_PC, L_CODE_END - L_PC")
A('.section .rodata,"a"')
A(".p2align 6")
A(f".amdhsa_kernel {NAME}")
A("  .amdhsa_next_free_vgpr 256")
A("  .amdhsa_next_free_sgpr 102")
A("  .amdhsa_accum_offset 256")
A("  .amdhsa_group_segment_fixed_size 0")
A("  .amdhsa_kernarg_size 112")
A("  .amdhsa_user_sgpr_count 2")
A("  .amdhsa_user_sgpr_kernarg_segment_ptr 1")
A("  .amdhsa_system_sgpr_workgroup_id_x 1")
A(".end_amdhsa_kernel")
txt = "\n".join(out)
import re
if args.nopre:
    txt = re.sub(r"    buffer_store_dwordx4 v\[204:207\], .*\n", "", txt)
if args.preload:
    import re
    txt = re.sub(r"buffer_store_dwordx4 v\[204:207\], (v8, s\[72:75\], s10 offen(?: offset:\d+)?)", r"buffer_load_dwordx4 v[208:211], \1 sc1", txt)
if args.nont:
    txt = txt.replace(" nt lds", " lds")
print(txt)
```

```python
import sys, argparse

ap = argparse.ArgumentParser()
ap.add_argument("--W", type=int, default=7)
ap.add_argument("--stamps", action="store_true")
ap.add_argument("--name", default="gated_mix__sliding_block_cached__dense_activation_squared_relu__decode_kernel")
ap.add_argument("--spin", type=int, default=1 << 22)
ap.add_argument("--qsleep", type=int, default=4)
ap.add_argument("--fsleep", type=int, default=0)
ap.add_argument("--slowmask", type=int, default=31)
ap.add_argument("--order", default="K,W1,V,WO,W2")
ap.add_argument("--rotmul", type=int, default=7)
ap.add_argument("--nont", action="store_true")
ap.add_argument("--nopf", action="store_true")
ap.add_argument("--WF", type=int, default=0)
ap.add_argument("--preload", action="store_true")
ap.add_argument("--noqpoll", action="store_true")
ap.add_argument("--nopre", action="store_true")
ap.add_argument("--lonly", action="store_true")
ap.add_argument("--dbgstamps", action="store_true")
ap.add_argument("--perm", type=int, default=0)
ap.add_argument("--qgate", default="")
ap.add_argument("--WT", type=int, default=0)
ap.add_argument("--WV", type=int, default=0)
ap.add_argument("--NPRE", type=int, default=-1)
ap.add_argument("--lprio", type=int, default=0)
ap.add_argument("--probe", type=int, default=0)
ap.add_argument("--ffnmap", type=int, default=8)
ap.add_argument("--WFV", type=int, default=0)
ap.add_argument("--WFT", type=int, default=0)
ap.add_argument("--fflags", default="sc1")
ap.add_argument("--tlbwarm", action="store_true")
args = ap.parse_args()
W = args.W
STAMPS = args.stamps or args.dbgstamps
NAME = args.name

out = []
def A(s=""):
    out.append(s)
def I(s):
    out.append("    " + s)
def L(s):
    out.append(s + ":")
def nop(n):
    if n > 0:
        I(f"s_nop {n-1}")

PITCH = 928
R_A = 0
R_V = 65536
R_W = R_V + 65536
R_X = R_W + 14336
R_Q = R_X + 1024
R_P = R_Q + 1024
R_F = R_P + 512
R_M = R_F + 1024
M_MAX = R_M
M_LSUM = R_M + 32
M_QCNT = R_M + 256
M_NONCEFLAG = R_M + 260
M_QKDONE = R_M + 264
M_PCNT = R_M + 268
M_QTASK = R_M + 276
M_FCNT = R_M + 280
M_FSUM = R_M + 288
M_NONCE = R_M + 304
M_G = R_M + 320
LDS_TOTAL = R_M + 512
assert LDS_TOTAL <= 163840, LDS_TOTAL

WS_Q = 0x000000
WS_H = 0x040000
WS_T = 0x060000
WS_P2 = 0x0A0000
WS_O = 0x100000
WS_R = 0x200000
WS_E = 0x300000
WS_STAMP = 0x400000
FAST = 0x800000
WS_RANGE = 0x1000000

order = args.order.split(",")
stage = {"WQ": 1}
n = 2
for o in order:
    if o in ("K", "V"):
        for q in range(4):
            stage[f"{o}{q}"] = n; n += 1
    elif o in ("Va", "Vb"):
        for q in (range(3) if o == "Va" else range(3, 4)):
            stage[f"V{q}"] = n; n += 1
    else:
        stage[o] = n; n += 1

sWAVE, sH, sJ, sHH, sRQ, sA, sFFN = 3, 4, 5, 6, 7, 8, 9
sT0, sT1, sT2, sT3 = 10, 11, 12, 13
sSPIN = 14
sRND = 15
SRD = {}
def S4(name):
    b = SRD[name]
    return f"s[{b}:{b+3}]"
for i, nm in enumerate(["a", "b", "c", "d", "e", "f", "g", "h"]):
    SRD[nm] = 44 + 4 * i
sN0, sN1 = 76, 77
sMA, sMB = 78, 80
sX0 = 82
sWOK, sHOK = 90, 91
sOOFF, sFOFF = 100, 101
sOG, sRP, sDW, sDF = 92, 93, 94, 95
M_REMOTE_OFF = 272

def build_srd(name, plo, off_sgpr, size):
    b = SRD[name]
    if off_sgpr is None:
        I(f"s_mov_b32 s{b}, s{plo}")
        I(f"s_mov_b32 s{b+1}, s{plo+1}")
    else:
        I(f"s_add_u32 s{b}, s{plo}, s{off_sgpr}")
        I(f"s_addc_u32 s{b+1}, s{plo+1}, 0")
    I(f"s_mov_b32 s{b+2}, {size}")
    I(f"s_mov_b32 s{b+3}, 0x00020000")

def stamp(k):
    if STAMPS:
        I(f"s_memrealtime s[{16+2*k}:{17+2*k}]")

def stamp_flush(n=14, cons=False):
    if not STAMPS:
        return
    if args.dbgstamps:
        if not cons:
            return
        sk = "L_NODBG"
        I(f"s_cmp_lg_u32 s2, 0")
        I(f"s_cbranch_scc1 {sk}")
        I(f"s_cmp_lg_u32 s{sWAVE}, 0")
        I(f"s_cbranch_scc1 {sk}")
        I("s_waitcnt lgkmcnt(0)")
        I("s_mov_b64 exec, 1")
        for k in range(13):
            I(f"s_sub_u32 s{sT0}, s{16+2*k}, s{SRD['b']}")
            I(f"v_mov_b32 v{232+k}, s{sT0}")
        I("v_mov_b32 v248, 0")
        for k in range(0, 12, 4):
            I(f"buffer_store_dwordx4 v[{232+k}:{235+k}], v248, {S4('g')}, 0 offen offset:{4*k}")
        I(f"buffer_store_dword v244, v248, {S4('g')}, 0 offen offset:48")
        L(sk)
        return
    I("s_waitcnt lgkmcnt(0)")
    I("s_mov_b64 exec, 1")
    for k in range(16):
        I(f"v_mov_b32 v{232+k}, s{16+2*min(k,n-1)}")
    for k in range(0, 16, 4):
        I(f"buffer_store_dwordx4 v[{232+k}:{235+k}], v253, {S4('h')}, 0 offen offset:{4*k}")

lbl = [0]
def newlabel(p="L"):
    lbl[0] += 1
    return f"{p}_{lbl[0]}"

def spin_lds_ge(vaddr, off, val, vt, sleep=1):
    l = newlabel("SP"); d = newlabel("SD")
    L(l)
    I(f"ds_read_b32 v{vt}, v{vaddr} offset:{off}")
    I("s_waitcnt lgkmcnt(0)")
    I(f"v_readfirstlane_b32 s{sT0}, v{vt}")
    I(f"s_cmp_ge_u32 s{sT0}, {val}")
    I(f"s_cbranch_scc1 {d}")
    if sleep:
        I(f"s_sleep {sleep}")
    I(f"s_branch {l}")
    L(d)

def spin_prog_all(vaddr, val, vt, sleep=1):
    l = newlabel("SP"); d = newlabel("SD")
    L(l)
    I(f"ds_read_b128 v[{vt}:{vt+3}], v{vaddr}")
    I("s_waitcnt lgkmcnt(0)")
    I(f"v_min3_u32 v{vt}, v{vt}, v{vt+1}, v{vt+2}")
    I(f"v_min_u32 v{vt}, v{vt}, v{vt+3}")
    nop(1)
    I(f"v_readfirstlane_b32 s{sT0}, v{vt}")
    I(f"s_cmp_ge_u32 s{sT0}, {val}")
    I(f"s_cbranch_scc1 {d}")
    if sleep:
        I(f"s_sleep {sleep}")
    I(f"s_branch {l}")
    L(d)

def xreduce(v, t, op, rors, swaps=("v_permlane16_swap_b32", "v_permlane32_swap_b32")):
    for r in rors:
        nop(2)
        I(f"{op}_dpp v{v}, v{v}, v{v} row_ror:{r} row_mask:0xf bank_mask:0xf")
    for sw in swaps:
        I(f"v_mov_b32 v{t}, v{v}")
        nop(2)
        I(f"{sw} v{v}, v{t}")
        nop(1)
        I(f"{op} v{v}, v{v}, v{t}")

def xreduce2(v, w, t, u, op, rors, swaps=("v_permlane16_swap_b32", "v_permlane32_swap_b32")):
    for r in rors:
        nop(1)
        I(f"{op}_dpp v{v}, v{v}, v{v} row_ror:{r} row_mask:0xf bank_mask:0xf")
        I(f"{op}_dpp v{w}, v{w}, v{w} row_ror:{r} row_mask:0xf bank_mask:0xf")
    for sw in swaps:
        I(f"v_mov_b32 v{t}, v{v}")
        I(f"v_mov_b32 v{u}, v{w}")
        nop(1)
        I(f"{sw} v{v}, v{t}")
        I(f"{sw} v{w}, v{u}")
        nop(1)
        I(f"{op} v{v}, v{v}, v{t}")
        I(f"{op} v{w}, v{w}, v{u}")

def pick(sdst, sbase, on_slow=None):
    I(f"s_add_u32 s{sRND}, s{sRND}, 1")
    I(f"s_and_b32 s{sdst}, s{sRND}, {args.slowmask}")
    I(f"s_cmp_eq_u32 s{sdst}, 0")
    if on_slow is not None:
        f = newlabel("PF")
        I(f"s_cbranch_scc0 {f}")
        on_slow()
        I(f"s_cmp_eq_u32 0, 0")
        L(f)
    I(f"s_cselect_b32 s{sdst}, 0, {FAST}")
    I(f"s_add_u32 s{sdst}, s{sdst}, s{sbase}")

def fast_store(nn, data, vaddr, soff, stmp):
    I(f"s_add_u32 s{stmp}, s{soff}, {FAST}")
    I(f"buffer_store_dwordx{nn} {data}, v{vaddr}, {S4('h')}, s{stmp} offen")
def slow_store(nn, data, vaddr, soff):
    I(f"buffer_store_dwordx{nn} {data}, v{vaddr}, {S4('h')}, s{soff} offen sc1")

def pub_store(nn, data, vaddr, soff, stmp):
    f = newlabel("PS"); d = newlabel("PD")
    I(f"s_add_u32 s{stmp}, s{soff}, s{sFOFF}")
    I(f"s_cmp_eq_u32 s{sFOFF}, 0")
    I(f"s_cbranch_scc1 {f}")
    I(f"buffer_store_dwordx{nn} {data}, v{vaddr}, {S4('h')}, s{stmp} offen")
    I(f"s_branch {d}")
    L(f)
    I(f"buffer_store_dwordx{nn} {data}, v{vaddr}, {S4('h')}, s{stmp} offen sc1")
    L(d)

def tagmask(regs):
    I(f"v_cmp_eq_u64 vcc, s[{sN0}:{sN1}], v[{regs[0]+2}:{regs[0]+3}]")
    for r in regs[1:]:
        I(f"v_cmp_eq_u64 s[{sX0+4}:{sX0+5}], s[{sN0}:{sN1}], v[{r+2}:{r+3}]")
        I(f"s_and_b64 vcc, vcc, s[{sX0+4}:{sX0+5}]")

def tagcheck(regs, loop, done):
    tagmask(regs)
    I(f"s_sub_u32 s{sSPIN}, s{sSPIN}, 1")
    I(f"s_cbranch_scc1 {done}")
    I("s_cmp_eq_u64 vcc, exec")
    I(f"s_cbranch_scc0 {loop}")

A(f"; @launch grid=(256,1,1) block=(512,1,1) lds={LDS_TOTAL}")
A('.amdgcn_target "amdgcn-amd-amdhsa--gfx950"')
A(".text")
A(f".globl {NAME}")
A(".p2align 8")
A(f".type {NAME},@function")
L(NAME)
I("s_cmp_ge_u32 s2, 256")
I("s_cbranch_scc1 L_END")
if args.dbgstamps or args.probe:
    I("s_memrealtime s[96:97]")
if args.perm == 1:
    I("s_lshr_b32 s3, s2, 3")
    I("s_and_b32 s2, s2, 7")
    I("s_lshl_b32 s2, s2, 5")
    I("s_or_b32 s2, s2, s3")
elif args.perm == 2:
    I("s_xor_b32 s3, s2, 1")
    I("s_cmp_lt_u32 s2, 4")
    I("s_cselect_b32 s2, s3, s2")
I("s_load_dwordx16 s[16:31], s[0:1], 0")
I("s_load_dwordx8 s[32:39], s[0:1], 64")
I("s_load_dwordx4 s[40:43], s[0:1], 96")
I("v_lshrrev_b32 v2, 6, v0")
I("v_and_b32 v1, 63, v0")
I(f"s_and_b32 s{sH}, s2, 7")
I(f"v_readfirstlane_b32 s{sWAVE}, v2")
I(f"s_lshr_b32 s{sJ}, s2, 3")
if not args.nopf:
    I("s_getpc_b64 s[92:93]")
    L("L_PC")
    I(f"s_lshl_b32 s{sT0}, s{sJ}, 3")
    I(f"s_add_u32 s{sT0}, s{sT0}, s{sWAVE}")
    I(f"s_mul_i32 s{sT1}, s{sT0}, 0x1556")
    I(f"s_lshr_b32 s{sT1}, s{sT1}, 16")
    I(f"s_mul_i32 s{sT1}, s{sT1}, 12")
    I(f"s_sub_u32 s{sT0}, s{sT0}, s{sT1}")
    I(f"s_lshl_b32 s{sT0}, s{sT0}, 10")
    I(f"v_lshl_add_u32 v254, v1, 4, s{sT0}")
    I(f"v_min_u32 v254, CODE_BYTES_AFTER_PC-16, v254")
    I("global_load_dwordx4 v[248:251], v254, s[92:93]")
I(f"s_lshr_b32 s{sHH}, s{sJ}, 4")
I(f"s_and_b32 s{sRQ}, s{sJ}, 3")
if args.ffnmap == 8:
    I(f"s_lshr_b32 s{sA}, s{sJ}, 2")
    I(f"s_lshl_b32 s{sA}, s{sA}, 3")
    I(f"s_add_u32 s{sA}, s{sA}, s{sH}")
else:
    I(f"s_andn2_b32 s{sA}, s{sJ}, 3")
    I(f"s_add_u32 s{sA}, s{sA}, s{sH}")
    I(f"s_cmp_lt_u32 s{sH}, 4")
    I(f"s_cselect_b32 s{sA}, s{sA}, 99")
I(f"s_cmp_lt_u32 s{sA}, 28")
I(f"s_cselect_b32 s{sFFN}, 1, 0")
I(f"s_cselect_b32 s{sA}, s{sA}, 0")
if STAMPS:
    I(f"s_lshl_b32 s{sT0}, s2, 3")
    I(f"s_add_u32 s{sT0}, s{sT0}, s{sWAVE}")
    I(f"s_lshl_b32 s{sT0}, s{sT0}, 7")
    I(f"s_add_u32 s{sT0}, s{sT0}, {WS_STAMP}")
    I(f"v_mov_b32 v253, s{sT0}")
I(f"s_cmp_lt_u32 s{sWAVE}, 4")
I("s_cbranch_scc1 L_CONS")

vLANE = 1
vG4 = 3
vN = 4
vMISC = 5
vPROG = 6

sL = sX0
if args.lprio:
    I(f"s_setprio {args.lprio}")
I(f"s_sub_u32 s{sL}, s{sWAVE}, 4")
I(f"v_lshrrev_b32 v6, 3, v{vLANE}")
I("v_bfe_u32 v7, v6, 1, 2")
I("v_lshlrev_b32 v7, 1, v7")
I(f"v_and_b32 v11, 7, v{vLANE}")
I("v_xor_b32 v11, v11, v7")
I("v_lshlrev_b32 v11, 4, v11")
I(f"s_lshl_b32 s{sT0}, s{sL}, 3")
I(f"v_add_u32 v6, s{sT0}, v6")
I("v_lshl_add_u32 v7, v6, 13, v11")
I("v_mul_u32_u24 v10, 3584, v6")
I("v_add_u32 v10, v10, v11")
I(f"v_lshrrev_b32 v13, 5, v{vLANE}")
I("v_lshlrev_b32 v8, 9, v13")
I(f"v_and_b32 v9, 31, v{vLANE}")
I("v_lshl_add_u32 v8, v9, 4, v8")
I(f"s_lshl_b32 s{sT0}, s{sL}, 1")
I(f"v_add_u32 v13, s{sT0}, v13")
I("v_lshlrev_b32 v13, 5, v13")
I("v_xor_b32 v9, v8, v13")
I(f"s_lshl_b32 s{sT0}, s{sL}, 4")
I(f"v_xor_b32 v8, s{sT0}, v8")
I(f"v_lshlrev_b32 v11, 4, v{vLANE}")
I(f"s_lshl_b32 s{sT0}, s{sL}, 2")
I(f"s_add_u32 s{sT0}, s{sT0}, {R_F}")
I(f"v_add_u32 v12, s{sT0}, v11")
I(f"v_mov_b32 v{vMISC}, {R_M}")
sLK, sLV, sLW, sLO, sGO, sI3, sROT = sX0+1, sX0+2, sX0+3, sX0+4, sX0+5, sX0+6, sX0+7
I(f"s_lshl_b32 s{sLK}, s{sL}, 10")
I(f"s_add_u32 s{sLV}, s{sLK}, {R_V}")
I(f"s_add_u32 s{sLW}, s{sLK}, {R_W}")
I(f"s_mul_i32 s{sLO}, s{sL}, {4*PITCH}")
I(f"s_mul_i32 s{sGO}, s{sL}, {4*896}")
I(f"s_cmp_ge_u32 s{sL}, 2")
I(f"s_cselect_b32 s{sI3}, 2, 3")
I(f"s_mul_i32 s{sROT}, s2, {args.rotmul}")
I(f"s_add_u32 s{sROT}, s{sROT}, s{sL}")
I(f"s_lshl_b32 s{sROT}, s{sROT}, 10")
I(f"s_mul_i32 s{sT2}, s{sRQ}, {112*8192}")
I(f"s_lshl_b32 s{sT1}, s{sH}, 10")
I(f"s_add_u32 s{sT2}, s{sT2}, s{sT1}")
I(f"s_lshr_b32 s{sT1}, s{sJ}, 2")
I(f"s_lshl_b32 s{sT1}, s{sT1}, 7")
I(f"s_add_u32 s{sT2}, s{sT2}, s{sT1}")
I(f"s_sub_u32 s{sT1}, {448*8192}, s{sT2}")
I(f"s_lshl_b32 s{sT3}, s{sH}, 25")
I(f"s_add_u32 s{sT3}, s{sT3}, 0x1E00000")
I(f"s_lshl_b32 s{sT0}, s{sJ}, 16")
I(f"s_add_u32 s{sT3}, s{sT3}, s{sT0}")
I("s_waitcnt lgkmcnt(0)")
build_srd("f", 22, sT2, f"s{sT1}")
def issue_w(i, srdn, vaddr, rowbytes):
    if i == 3:
        I(f"s_lshl_b32 s{sT0}, s{sI3}, 12")
        I(f"s_add_u32 m0, s{sLW}, s{sT0}")
        I(f"s_mul_i32 s{sT0}, s{sI3}, {32*rowbytes}")
    else:
        I(f"s_add_u32 m0, s{sLW}, {i*4096}")
        I(f"s_mov_b32 s{sT0}, {i*32*rowbytes}")
    I(f"buffer_load_dwordx4 v{vaddr}, {S4(srdn)}, s{sT0} offen nt lds")
for i in range(3):
    issue_w(i, "f", 7, 8192)
build_srd("g", 16, None, 896)
I(f"s_cmp_eq_u32 s{sL}, 3")
I("s_cbranch_scc1 L_LX")
issue_w(3, "f", 7, 8192)
I("s_branch L_LX2")
L("L_LX")
I(f"s_mov_b32 m0, {R_X}")
I("s_nop 0")
I(f"buffer_load_dwordx4 v11, {S4('g')}, 0 offen lds")
L("L_LX2")
build_srd("a", 18, sT3, 65536)
def issue_k(i):
    I(f"v_xor_b32 v13, {(4*(i & 3)) << 4}, v8")
    I(f"s_add_u32 m0, s{sLK}, {i*4096}")
    I(f"s_add_u32 s{sT0}, s{sROT}, {i*4096}")
    I(f"s_and_b32 s{sT0}, s{sT0}, 0xffff")
    I(f"buffer_load_dwordx4 v13, {S4('a')}, s{sT0} offen nt lds")
NPRE = max(0, W - 4) if args.NPRE < 0 else args.NPRE
assert order[0] == "K"
for i in range(NPRE):
    issue_k(i)
build_srd("b", 20, sT3, 65536)
I(f"s_mul_i32 s{sT1}, s{sRQ}, {112*3584}")
I(f"s_lshl_b32 s{sT2}, s{sA}, 7")
I(f"s_add_u32 s{sT1}, s{sT1}, s{sT2}")
I(f"s_sub_u32 s{sT2}, {448*3584}, s{sT1}")
build_srd("c", 28, sT1, f"s{sT2}")
I(f"s_lshl_b32 s{sT1}, s{sH}, 9")
I(f"s_lshl_b32 s{sT2}, s{sJ}, 4")
I(f"s_add_u32 s{sT1}, s{sT1}, s{sT2}")
I(f"s_mul_i32 s{sT1}, s{sT1}, 896")
build_srd("d", 24, sT1, 16*896)
I(f"s_lshl_b32 s{sT1}, s{sA}, 2")
I(f"s_add_u32 s{sT1}, s{sT1}, s{sRQ}")
I(f"s_mul_i32 s{sT1}, s{sT1}, {16*896}")
build_srd("e", 32, sT1, 16*896)
build_srd("h", 42, None, hex(WS_RANGE))
if args.tlbwarm:
    I("v_mov_b32 v20, 0")
    I("s_mov_b64 exec, 1")
    I(f"s_cmp_lg_u32 s{sL}, 0")
    I("s_cbranch_scc1 L_NOTLB")
    for nm in ("b", "c", "d", "e"):
        I(f"buffer_load_dword v21, v20, {S4(nm)}, 0 offen nt")
    L("L_NOTLB")
    I("s_mov_b64 exec, -1")
stamp(0)
I("s_barrier")

def loader_stream(ffn, start_p, stop_kind=None):
    pass

def make_seq(ffn):
    seq = [("WQ", i) for i in range(4)]
    for o in order:
        if o == "K": seq += [("K", i) for i in range(16)]
        elif o == "V": seq += [("V", i) for i in range(16)]
        elif o == "Va": seq += [("V", i) for i in range(12)]
        elif o == "Vb": seq += [("V", i) for i in range(12, 16)]
        elif o == "W1" and ffn: seq += [("W1", i) for i in range(4)]
        elif o == "WO": seq += [("WO", i) for i in range(4)]
        elif o == "W2" and ffn: seq += [("W2", i) for i in range(4)]
    return seq

def emit_stream(seq, p0, p1, st, W=W):
    stages = st["stages"]
    def flag(s_):
        I(f"v_mov_b32 v14, {s_}")
        I("ds_write_b32 v12, v14")
        if s_ <= 13:
            stamp(s_)
    for p in range(p0, p1):
        k, i = seq[p]
        Wp = W
        if k in ("WO", "W2") and args.WT:
            Wp = args.WT
        if k == "V" and args.WV:
            Wp = W + args.WV
        if st.get("ffn"):
            if k == "V" and args.WFV: Wp = args.WFV
            if k in ("WO", "W2") and args.WFT: Wp = args.WFT
        if p >= Wp:
            I(f"s_waitcnt vmcnt({Wp-1})")
            landed = p - Wp
            done = None
            while st["si"] < len(stages) and stages[st["si"]][1] <= landed:
                done = stages[st["si"]][0]; st["si"] += 1
            if done is not None:
                flag(done)
        want_mask = k in ("WO", "W2")
        if want_mask and not st["qk_waited"]:
            spin_lds_ge(vMISC, M_QKDONE - R_M, 4, 15)
            st["qk_waited"] = True
        if want_mask != st["masked"]:
            I("s_mov_b32 exec_hi, 0x00ffffff" if want_mask else "s_mov_b32 exec_hi, -1")
            st["masked"] = want_mask
        if k == "K":
            issue_k(i)
        elif k == "W1":
            if i == 0:
                spin_lds_ge(vMISC, M_QTASK - R_M, 4, 15)
            issue_w(i, "c", 10, 3584)
        elif k == "V":
            I(f"s_add_u32 m0, s{sLV}, {i*4096}")
            I(f"s_add_u32 s{sT0}, s{sROT}, {i*4096}")
            I(f"s_and_b32 s{sT0}, s{sT0}, 0xffff")
            I(f"buffer_load_dwordx4 v9, {S4('b')}, s{sT0} offen nt lds")
        elif k == "WO":
            I(f"s_add_u32 m0, s{sLO}, {i*PITCH}")
            I(f"s_add_u32 s{sT0}, s{sGO}, {i*896}")
            I(f"buffer_load_dwordx4 v11, {S4('d')}, s{sT0} offen nt lds")
        elif k == "W2":
            I(f"s_add_u32 m0, s{sLO}, {(16+i)*PITCH}")
            I(f"s_add_u32 s{sT0}, s{sGO}, {i*896}")
            I(f"buffer_load_dwordx4 v11, {S4('e')}, s{sT0} offen nt lds")
    if p1 == len(seq):
        nn = len(seq)
        while st["si"] < len(stages):
            s_, p = stages[st["si"]]
            I(f"s_waitcnt vmcnt({nn-1-p})")
            flag(s_)
            st["si"] += 1
        stamp_flush()
        I("s_endpgm")

def stages_of(seq):
    last = {}
    for p, (k, i) in enumerate(seq):
        key = f"{k}{i//4}" if k in ("K", "V") else k
        last[stage[key]] = p
    return sorted(last.items(), key=lambda x: x[1])

seqF, seqN = make_seq(True), make_seq(False)
common = 0
while common < len(seqN) and seqF[common] == seqN[common]:
    common += 1
WF = args.WF or W
assert WF >= W
if WF != W:
    common = 4 + NPRE
stF = dict(si=0, masked=False, qk_waited=False, stages=stages_of(seqF))
if NPRE > W - 1:
    I(f"s_waitcnt vmcnt({NPRE})")
    I(f"v_mov_b32 v14, {stage['WQ']}")
    I("ds_write_b32 v12, v14")
    stamp(stage['WQ'])
    stF["si"] = 1
emit_stream(seqF, 4 + NPRE, common, stF)
stN = dict(si=stF["si"], masked=stF["masked"], qk_waited=stF["qk_waited"], stages=stages_of(seqN))
I(f"s_cmp_eq_u32 s{sFFN}, 0")
I("s_cbranch_scc1 L_LOADER_N")
stF["ffn"] = True
emit_stream(seqF, common, len(seqF), stF, WF)
L("L_LOADER_N")
emit_stream(seqN, common, len(seqN), stN)

L("L_CONS")
vGA, vGB = 128, 129
vB1, vB2 = 130, 131
I(f"v_lshrrev_b32 v{vG4}, 4, v{vLANE}")
I(f"v_and_b32 v{vN}, 15, v{vLANE}")
I(f"v_mov_b32 v{vMISC}, {R_M}")
I(f"v_mov_b32 v{vPROG}, {R_F}")
I(f"s_mov_b32 s{sSPIN}, {args.spin}")
I(f"s_mov_b32 s{sRND}, 0")
I(f"s_mov_b32 s{sWOK}, 0")
I(f"s_mov_b32 s{sHOK}, 0")
I("s_waitcnt lgkmcnt(0)")
I(f"s_add_u32 s94, s42, {WS_E}")
I("s_addc_u32 s95, s43, 0")
I(f"s_load_dwordx2 s[{sN0}:{sN1}], s[94:95], 0")
build_srd("h", 42, None, hex(WS_RANGE))
build_srd("a", 16, None, 896)
build_srd("c", 36, None, 896)
build_srd("d", 30, None, 3584)
build_srd("e", 34, None, 896)
build_srd("f", 38, None, 896)
build_srd("g", 40, None, 256)
if args.dbgstamps:
    I(f"s_mov_b32 s{SRD['b']}, s96")
stamp(0)
I(f"s_cmp_lg_u32 s{sWAVE}, 2")
I("s_cbranch_scc1 L_NOG")
I(f"v_lshlrev_b32 v8, 4, v{vLANE}")
I(f"buffer_load_dwordx4 v[16:19], v8, {S4('a')}, 0 offen")
I(f"buffer_load_dwordx4 v[20:23], v8, {S4('c')}, 0 offen")
L("L_NOG")
I(f"v_and_b32 v14, 1, v{vLANE}")
I(f"v_lshl_add_u32 v14, v{vG4}, 1, v14")
I("v_lshlrev_b32 v14, 2, v14")
I(f"s_lshl_b32 s{sT1}, s{sA}, 7")
I(f"s_lshl_b32 s{sT0}, s{sRQ}, 5")
I(f"s_add_u32 s{sT0}, s{sT0}, s{sT1}")
I(f"buffer_load_dword v{vB1}, v14, {S4('d')}, s{sT0} offen")
I(f"s_lshl_b32 s{sT0}, s{sJ}, 5")
I(f"v_add_u32 v133, s{sT0}, v14")
I(f"buffer_load_dword v{vB2}, v133, {S4('e')}, 0 offen")
I(f"s_cmp_lg_u32 s{sWAVE}, 3")
I("s_cbranch_scc1 L_NOZ")
I("v_mov_b32 v8, 0")
I("v_mov_b32 v9, 0")
I("v_mov_b32 v10, 0")
I("v_mov_b32 v11, 0")
I(f"v_lshlrev_b32 v12, 4, v{vLANE}")
I(f"v_add_u32 v12, {R_F}, v12")
I("ds_write_b128 v12, v[8:11]")
I("s_mov_b32 exec_hi, 0")
I("ds_write_b128 v12, v[8:11] offset:1024")
I("s_mov_b64 exec, -1")
L("L_NOZ")
I("s_waitcnt lgkmcnt(0)")
I(f"s_add_u32 s{sN0}, s{sN0}, 0x7f4a7c15")
I(f"s_andn2_b32 s{sN0}, s{sN0}, 15")
I(f"s_xor_b32 s{sN1}, s{sN1}, 0x9e3779b9")
I(f"s_not_b32 s{sT0}, s{sN0}")
I(f"v_mov_b32 v204, s{sT0}")
I(f"v_mov_b32 v205, s{sT0}")
I(f"v_mov_b32 v206, s{sT0}")
I(f"v_mov_b32 v207, s{sT0}")
I(f"v_lshlrev_b32 v8, 4, v{vLANE}")
I(f"s_lshl_b32 s{sT3}, s{sH}, 5")
I(f"s_add_u32 s{sT3}, s{sT3}, s{sJ}")
I(f"s_lshl_b32 s{sT0}, s{sH}, 14")
I(f"s_lshl_b32 s{sT1}, s{sRQ}, 12")
I(f"s_add_u32 s{sT0}, s{sT0}, s{sT1}")
I(f"s_lshr_b32 s{sT1}, s{sJ}, 2")
I(f"s_lshl_b32 s{sT1}, s{sT1}, 9")
I(f"s_add_u32 s{sT0}, s{sT0}, s{sT1}")
I(f"s_lshl_b32 s{sT2}, s{sWAVE}, 7")
I(f"s_add_u32 s{sT0}, s{sT0}, s{sT2}")
I(f"s_add_u32 s{sT0}, s{sT0}, {WS_Q + FAST}")
I("s_mov_b64 exec, 0xff")
I(f"buffer_store_dwordx4 v[204:207], v8, {S4('h')}, s{sT0} offen")
I(f"s_cmp_eq_u32 s{sFFN}, 0")
I("s_cbranch_scc1 L_C0B")
I(f"s_lshl_b32 s{sT0}, s{sA}, 11")
I(f"s_lshl_b32 s{sT1}, s{sRQ}, 9")
I(f"s_add_u32 s{sT0}, s{sT0}, s{sT1}")
I(f"s_add_u32 s{sT0}, s{sT0}, s{sT2}")
I(f"s_add_u32 s{sT0}, s{sT0}, {WS_H + FAST}")
I(f"buffer_store_dwordx4 v[204:207], v8, {S4('h')}, s{sT0} offen")
L("L_C0B")
I("s_mov_b64 exec, -1")
I(f"s_cmp_eq_u32 s{sWAVE}, 1")
I("s_cbranch_scc1 L_C1")
I(f"s_cmp_eq_u32 s{sWAVE}, 2")
I("s_cbranch_scc1 L_C2")
I(f"s_cmp_eq_u32 s{sWAVE}, 3")
I("s_cbranch_scc1 L_C3")
I("s_mov_b32 exec_hi, 0")
I(f"s_lshl_b32 s{sT0}, s{sT3}, 9")
I(f"s_add_u32 s{sT0}, s{sT0}, {WS_T + FAST}")
I(f"buffer_store_dwordx4 v[204:207], v8, {S4('h')}, s{sT0} offen")
I("s_mov_b64 exec, -1")
I("s_barrier")
I("s_branch L_CQ")

L("L_C1")
I(f"s_lshl_b32 s{sT0}, s{sT3}, 12")
I(f"s_add_u32 s{sT0}, s{sT0}, {WS_O + FAST}")
for r in range(4):
    I(f"buffer_store_dwordx4 v[204:207], v8, {S4('h')}, s{sT0} offen offset:{r*1024}")
I("s_barrier")
I("s_branch L_CQ")

L("L_C2")
I("s_barrier")
I("s_waitcnt vmcnt(3)")
I("v_mov_b32 v9, 0")
for k in range(4):
    I(f"v_lshlrev_b32 v10, 16, v{16+k}")
    I(f"v_lshlrev_b32 v11, 16, v{20+k}")
    I(f"v_and_b32 v12, 0xffff0000, v{16+k}")
    I(f"v_and_b32 v13, 0xffff0000, v{20+k}")
    I("v_mul_f32 v10, v10, v11")
    I("v_mul_f32 v12, v12, v13")
    I("v_cvt_pk_bf16_f32 v10, v10, v12")
    I("v_lshlrev_b32 v11, 16, v10")
    I("v_and_b32 v12, 0xffff0000, v10")
    I("v_add_f32 v9, v9, v11")
    I("v_add_f32 v9, v9, v12")
xreduce(9, 10, "v_add_f32", (1, 2, 4, 8))
I("v_cvt_pk_bf16_f32 v9, v9, v9")
I("v_lshlrev_b32 v9, 16, v9")
I("v_mul_f32 v9, 0xbfb8aa3b, v9")
I("v_exp_f32 v9, v9")
nop(1)
I("v_add_f32 v9, 1.0, v9")
I("v_rcp_f32 v9, v9")
nop(1)
I("v_cvt_pk_bf16_f32 v9, v9, v9")
I("v_lshlrev_b32 v10, 16, v9")
I("v_sub_f32 v11, 1.0, v10")
I("v_cvt_pk_bf16_f32 v11, v11, v11")
I("v_lshlrev_b32 v11, 16, v11")
I("s_mov_b64 exec, 1")
I(f"ds_write_b64 v{vMISC}, v[10:11] offset:{M_G - R_M}")
I("s_mov_b64 exec, -1")
I("s_branch L_CQ")

L("L_C3")
I(f"s_lshl_b32 s{sT0}, s{sT3}, 12")
I(f"s_add_u32 s{sT0}, s{sT0}, {WS_R + FAST}")
for r in range(4):
    I(f"buffer_store_dwordx4 v[204:207], v8, {S4('h')}, s{sT0} offen offset:{r*1024}")
I("s_barrier")

def gemv_tile(acc, A0, B0):
    for k in range(3):
        I(f"ds_read2_b64 v[{A0+4*k}:{A0+4*k+3}], v{vGA} offset0:{k*8} offset1:{k*8+4}")
        I(f"ds_read_b64_tr_b16 v[{B0+4*k}:{B0+4*k+1}], v{vGB} offset:{k*4096}")
        I(f"ds_read_b64_tr_b16 v[{B0+4*k+2}:{B0+4*k+3}], v{vGB} offset:{k*4096+2048}")
    I(f"ds_read_b64 v[{A0+12}:{A0+13}], v{vGA} offset:192")
    I(f"ds_read_b64_tr_b16 v[{B0+12}:{B0+13}], v{vGB} offset:{3*4096}")
    for k in range(3):
        I(f"s_waitcnt lgkmcnt({8-3*k})")
        c = "0" if k == 0 else f"v[{acc}:{acc+3}]"
        I(f"v_mfma_f32_16x16x32_bf16 v[{acc}:{acc+3}], v[{A0+4*k}:{A0+4*k+3}], v[{B0+4*k}:{B0+4*k+3}], {c}")
    I("s_waitcnt lgkmcnt(0)")
    I(f"v_mfma_f32_16x16x16_bf16 v[{acc+4}:{acc+7}], v[{A0+12}:{A0+13}], v[{B0+12}:{B0+13}], 0")

def pairs16(acc, d):
    nop(8)
    I(f"v_add_f32 v{d}, v{acc}, v{acc+4}")
    nop(2)
    I(f"v_mov_b32_dpp v{d+1}, v{d} quad_perm:[1,0,3,2] row_mask:0xf bank_mask:0xf")

L("L_CQ")
if args.lonly:
    I("v_mov_b32 v9, 1")
    I("s_mov_b64 exec, 1")
    I(f"ds_add_u32 v{vMISC}, v9 offset:{M_QTASK - R_M}")
    I(f"ds_add_u32 v{vMISC}, v9 offset:{M_QKDONE - R_M}")
    I("s_branch L_CEND")
I(f"s_mul_i32 s{sT0}, s{sRQ}, 224")
I(f"s_add_u32 s{sT0}, s{sT0}, {R_X}")
I(f"v_lshlrev_b32 v{vGA}, 3, v{vG4}")
I(f"v_add_u32 v{vGA}, s{sT0}, v{vGA}")
I(f"v_bfe_u32 v10, v{vLANE}, 2, 2")
I(f"v_lshl_add_u32 v10, v{vG4}, 2, v10")
I("v_bfe_u32 v11, v10, 1, 2")
I(f"v_xor_b32 v11, s{sWAVE}, v11")
I("v_lshlrev_b32 v11, 5, v11")
I("v_lshl_add_u32 v11, v10, 7, v11")
I(f"v_and_b32 v10, 3, v{vLANE}")
I("v_lshl_add_u32 v11, v10, 3, v11")
I(f"v_add_u32 v{vGB}, {R_W}, v11")
I(f"s_lshl_b32 s{sT3}, s{sH}, 14")
I(f"s_lshl_b32 s{sT1}, s{sRQ}, 12")
I(f"s_add_u32 s{sT3}, s{sT3}, s{sT1}")
I(f"s_lshr_b32 s{sT1}, s{sJ}, 2")
I(f"s_lshl_b32 s{sT1}, s{sT1}, 9")
I(f"s_add_u32 s{sT3}, s{sT3}, s{sT1}")
I(f"s_lshl_b32 s{sT1}, s{sWAVE}, 7")
I(f"s_add_u32 s{sT3}, s{sT3}, s{sT1}")
I(f"s_add_u32 s{sT3}, s{sT3}, {WS_Q}")
I(f"v_lshlrev_b32 v132, 3, v{vLANE}")
spin_prog_all(vPROG, stage["WQ"], 136, sleep=0)
stamp(1)
I(f"s_getreg_b32 s{sWOK}, hwreg(HW_REG_XCC_ID, 0, 4)")
I(f"s_or_b32 s{sWOK}, s{sWOK}, s{sN0}")
I(f"v_mov_b32 v122, s{sWOK}")
I(f"v_mov_b32 v123, s{sN1}")
gemv_tile(112, 16, 32)
I("v_mov_b32 v9, 1")
I("s_mov_b64 exec, 1")
I(f"ds_add_u32 v{vMISC}, v9 offset:{M_QTASK - R_M}")
I("s_mov_b64 exec, -1")
pairs16(112, 120)
I("s_waitcnt vmcnt(0)")
I("s_mov_b64 exec, 0x5555")
fast_store(4, "v[120:123]", 132, sT3, sT1)
I("s_mov_b64 exec, -1")
stamp(2)
def q_slow():
    I("s_mov_b64 exec, 0x5555")
    slow_store(4, "v[120:123]", 132, sT3)
    I("s_mov_b64 exec, -1")
I(f"v_lshlrev_b32 v8, 4, v{vLANE}")
I(f"s_lshl_b32 s{sT1}, s{sWAVE}, 10")
I(f"s_lshl_b32 s{sT2}, s{sH}, 14")
I(f"s_add_u32 s{sT2}, s{sT2}, s{sT1}")
I(f"s_add_u32 s{sT2}, s{sT2}, {WS_Q}")
I(f"v_add_u32 v9, 4096, v8")
I(f"v_add_u32 v10, 8192, v8")
I(f"v_add_u32 v11, 12288, v8")
if args.qgate:
    spin_prog_all(vPROG, stage[args.qgate], 136, sleep=2)
if args.noqpoll:
    I("s_branch L_QPOLL_DONE")
L("L_QPOLL")
I(f"s_sleep {args.qsleep}")
pick(sT1, sT2, q_slow)
for r in range(4):
    I(f"buffer_load_dwordx4 v[{16+4*r}:{19+4*r}], v{8+r}, {S4('h')}, s{sT1} offen sc1")
I("s_waitcnt vmcnt(0)")
for r in range(4):
    I(f"v_xor_b32 v{32+r}, s{sWOK}, v{18+4*r}")
    I(f"v_and_b32 v{18+4*r}, -16, v{18+4*r}")
tagcheck([16, 20, 24, 28], "L_QPOLL", "L_QPOLL_DONE")
L("L_QPOLL_DONE")
q_slow()
I("v_or3_b32 v32, v32, v33, v34")
I("v_or_b32 v32, v32, v35")
I("v_cmp_ne_u32 vcc, 0, v32")
I(f"s_mov_b32 s{sWOK}, 0")
I("s_cmp_lg_u64 vcc, 0")
I(f"s_cselect_b32 s{sT0}, 1, 0")
I(f"v_mov_b32 v33, s{sT0}")
I("s_mov_b64 exec, 1")
I(f"ds_add_u32 v{vMISC}, v33 offset:{M_REMOTE_OFF}")
I("s_mov_b64 exec, -1")
I(f"v_mov_b32 v122, s{sN0}")
I("v_add_f32 v16, v16, v20")
I("v_add_f32 v17, v17, v21")
I("v_add_f32 v24, v24, v28")
I("v_add_f32 v25, v25, v29")
I("v_add_f32 v16, v16, v24")
I("v_add_f32 v17, v17, v25")
I("v_cvt_pk_bf16_f32 v16, v16, v17")
I(f"s_lshl_b32 s{sT1}, s{sWAVE}, 8")
I(f"s_add_u32 s{sT1}, s{sT1}, {R_Q}")
I(f"v_lshlrev_b32 v9, 2, v{vLANE}")
I(f"v_add_u32 v9, s{sT1}, v9")
I("v_mov_b32 v10, 1")
I("ds_write_b32 v9, v16")
I("s_waitcnt lgkmcnt(0)")
I("s_mov_b64 exec, 1")
I(f"ds_add_u32 v{vMISC}, v10 offset:{M_QCNT - R_M}")
I("s_mov_b64 exec, -1")
stamp(3)
qA = 40
kB = 140
acc0, acc1 = 112, 116
I(f"v_and_b32 v8, 1, v{vLANE}")
I("v_lshlrev_b32 v8, 9, v8")
I(f"v_lshl_add_u32 v8, v{vG4}, 4, v8")
I(f"v_add_u32 v8, {R_Q}, v8")
I(f"v_and_b32 v9, 3, v{vN}")
I(f"v_xor_b32 v9, v{vG4}, v9")
I(f"v_and_b32 v10, 12, v{vN}")
I("v_or_b32 v9, v9, v10")
I("v_lshlrev_b32 v9, 4, v9")
I(f"v_lshl_add_u32 v9, v{vN}, 10, v9")
I(f"s_lshl_b32 s{sT0}, s{sWAVE}, 14")
I(f"v_add_u32 v9, s{sT0}, v9")
for q in range(1, 4):
    I(f"v_xor_b32 v{9+q}, {q*64}, v9")
I(f"s_add_u32 s{sT3}, s{sWAVE}, {stage['K0']}")
spin_prog_all(vPROG, f"s{sT3}", 136)
for t in range(2):
    for i in range(8):
        r = kB + (t*8+i)*4
        I(f"ds_read_b128 v[{r}:{r+3}], v{9+(i&3)} offset:{t*512 + (i>>2)*256}")
spin_lds_ge(vMISC, M_QCNT - R_M, 4, 13, sleep=0)
stamp(4)
I(f"ds_read_b32 v14, v{vMISC} offset:{M_REMOTE_OFF}")
for i in range(8):
    I(f"ds_read_b128 v[{qA+4*i}:{qA+4*i+3}], v8 offset:{i*64}")
for i in range(8):
    I(f"s_waitcnt lgkmcnt({7-i})")
    if i == 1:
        I(f"v_readfirstlane_b32 s{sFOFF}, v14")
        I(f"s_cmp_eq_u32 s{sFOFF}, 0")
        I(f"s_cselect_b32 s{sFOFF}, {FAST}, 0")
    for t in range(2):
        acc = acc0 if t == 0 else acc1
        r = kB + (t*8+i)*4
        c = "0" if i == 0 else f"v[{acc}:{acc+3}]"
        I(f"v_mfma_f32_16x16x32_bf16 v[{acc}:{acc+3}], v[{qA+4*i}:{qA+4*i+3}], v[{r}:{r+3}], {c}")
CEXP = "0x3db8aa3b"
I(f"s_mov_b32 s{sT2}, {CEXP}")
I(f"s_lshl_b32 s{sT1}, s{sWAVE}, 3")
I(f"v_mov_b32 v8, s{sT1}")
I(f"v_add_u32 v8, {M_MAX}, v8")
nop(5)
I(f"v_cvt_pk_bf16_f32 v120, v{acc0}, v{acc1}")
I(f"v_cvt_pk_bf16_f32 v121, v{acc0+1}, v{acc1+1}")
I("v_lshlrev_b32 v16, 16, v120")
I("v_and_b32 v17, 0xffff0000, v120")
I("v_lshlrev_b32 v18, 16, v121")
I("v_and_b32 v19, 0xffff0000, v121")
I("v_max_f32 v20, v16, v17")
I("v_max_f32 v21, v18, v19")
for r in (1, 2, 4, 8):
    nop(1)
    I(f"v_max_f32_dpp v20, v20, v20 row_ror:{r} row_mask:0xf bank_mask:0xf")
    I(f"v_max_f32_dpp v21, v21, v21 row_ror:{r} row_mask:0xf bank_mask:0xf")
I("v_mov_b32 v9, 1")
I("s_mov_b64 exec, 1")
I("ds_write_b64 v8, v[20:21]")
I("s_waitcnt lgkmcnt(0)")
I(f"ds_add_u32 v{vMISC}, v9 offset:{M_QKDONE - R_M}")
I("s_mov_b64 exec, -1")
spin_lds_ge(vMISC, M_QKDONE - R_M, 4, 13, sleep=0)
I(f"ds_read_b128 v[24:27], v{vMISC} offset:{M_MAX - R_M}")
I(f"ds_read_b128 v[28:31], v{vMISC} offset:{M_MAX - R_M + 16}")
I("s_waitcnt lgkmcnt(0)")
I("v_max_f32 v20, v24, v26")
I("v_max_f32 v21, v25, v27")
I("v_max3_f32 v20, v20, v28, v30")
I("v_max3_f32 v21, v21, v29, v31")
I("v_sub_f32 v16, v16, v20")
I("v_sub_f32 v17, v17, v20")
I("v_sub_f32 v18, v18, v21")
I("v_sub_f32 v19, v19, v21")
for k in range(4):
    I(f"v_mul_f32 v{16+k}, s{sT2}, v{16+k}")
for k in range(4):
    I(f"v_exp_f32 v{16+k}, v{16+k}")
nop(1)
I("v_cvt_pk_bf16_f32 v24, v16, v17")
I("v_cvt_pk_bf16_f32 v25, v18, v19")
I("v_add_f32 v22, v16, v17")
I("v_add_f32 v23, v18, v19")
I(f"s_lshl_b32 s{sT1}, s{sWAVE}, 6")
I(f"s_add_u32 s{sT1}, s{sT1}, {R_P}")
I(f"v_lshlrev_b32 v8, 2, v{vN}")
I(f"v_add_u32 v8, s{sT1}, v8")
I("s_mov_b64 exec, 0xffff")
I("ds_write_b32 v8, v24")
I("ds_write_b32 v8, v25 offset:256")
I("s_mov_b64 exec, -1")
for r in (1, 2, 4, 8):
    nop(1)
    I(f"v_add_f32_dpp v22, v22, v22 row_ror:{r} row_mask:0xf bank_mask:0xf")
    I(f"v_add_f32_dpp v23, v23, v23 row_ror:{r} row_mask:0xf bank_mask:0xf")
I("s_mov_b64 exec, 1")
I(f"ds_add_f32 v{vMISC}, v22 offset:{M_LSUM - R_M}")
I(f"ds_add_f32 v{vMISC}, v23 offset:{M_LSUM - R_M + 4}")
I("s_waitcnt lgkmcnt(0)")
I(f"ds_add_u32 v{vMISC}, v9 offset:{M_PCNT - R_M}")
I("s_mov_b64 exec, -1")
I(f"v_and_b32 v10, 1, v{vLANE}")
I("v_lshlrev_b32 v10, 8, v10")
I(f"v_lshl_add_u32 v10, v{vG4}, 3, v10")
I(f"v_add_u32 v10, {R_P}, v10")
I(f"v_bfe_u32 v11, v{vLANE}, 2, 2")
I(f"v_lshl_add_u32 v12, v{vG4}, 2, v11")
I("v_and_b32 v13, 7, v12")
I(f"s_lshl_b32 s{sT1}, s{sWAVE}, 2")
I(f"v_xor_b32 v13, s{sT1}, v13")
I("v_lshlrev_b32 v13, 5, v13")
I("v_lshl_add_u32 v13, v12, 9, v13")
I(f"v_and_b32 v14, 3, v{vLANE}")
I("v_lshl_add_u32 v13, v14, 3, v13")
I(f"v_add_u32 v32, {R_V}, v13")
for tt in range(1, 4):
    I(f"v_xor_b32 v{32+tt}, {tt*32}, v32")
I(f"v_mul_u32_u24 v134, {PITCH}, v12")
I("v_lshl_add_u32 v134, v14, 3, v134")
I(f"s_mul_i32 s{sT0}, s{sWAVE}, {7*32}")
I(f"v_add_u32 v134, s{sT0}, v134")
spin_lds_ge(vMISC, M_PCNT - R_M, 4, 13, sleep=0)
pA = 36
for s in range(4):
    I(f"ds_read2_b64 v[{pA+4*s}:{pA+4*s+3}], v10 offset0:{s*8} offset1:{s*8+4}")
I(f"ds_read_b64 v[220:221], v{vMISC} offset:{M_G - R_M}")
sk = newlabel("NOSTAT")
I(f"s_cmp_lg_u32 s{sWAVE}, 0")
I(f"s_cbranch_scc1 {sk}")
I(f"ds_read_b64 v[22:23], v{vMISC} offset:{M_LSUM - R_M}")
I(f"v_cmp_eq_u32 vcc, 1, v{vG4}")
I(f"s_lshl_b32 s{sT0}, s{sH}, 14")
I(f"s_lshl_b32 s{sT1}, s{sJ}, 4")
I(f"s_add_u32 s{sT0}, s{sT0}, s{sT1}")
I(f"s_add_u32 s{sT0}, s{sT0}, {WS_T}")
I(f"v_lshlrev_b32 v8, 9, v{vLANE}")
I("s_waitcnt lgkmcnt(0)")
I("v_cndmask_b32 v120, v20, v21, vcc")
I("v_cndmask_b32 v121, v22, v23, vcc")
I("s_mov_b32 exec_hi, 0")
pub_store(4, "v[120:123]", 8, sT0, sT1)
I("s_mov_b64 exec, -1")
L(sk)
G1, G2, G3, ODD = f"s[{sX0}:{sX0+1}]", f"s[{sMA}:{sMA+1}]", f"s[{sMB}:{sMB+1}]", f"s[{sX0+2}:{sX0+3}]"
I(f"v_cmp_eq_u32 {G2}, 2, v{vG4}")
I(f"v_cmp_eq_u32 {G3}, 3, v{vG4}")
I(f"v_cmp_eq_u32 {G1}, 1, v{vG4}")
I(f"v_and_b32 v8, 1, v{vLANE}")
I(f"v_cmp_eq_u32 {ODD}, 1, v8")
I(f"v_lshl_add_u32 v135, v8, 4, v{vG4}")
I("v_lshlrev_b32 v135, 12, v135")
I(f"v_lshrrev_b32 v10, 1, v{vN}")
I("v_lshl_add_u32 v135, v10, 4, v135")
I(f"s_lshl_b32 s{sOOFF}, s{sH}, 5")
I(f"s_lshl_b32 s{sT1}, s{sWAVE}, 2")
I(f"s_add_u32 s{sOOFF}, s{sOOFF}, s{sT1}")
I(f"s_lshl_b32 s{sOOFF}, s{sOOFF}, 12")
I(f"s_lshl_b32 s{sT1}, s{sJ}, 7")
I(f"s_add_u32 s{sOOFF}, s{sOOFF}, s{sT1}")
I(f"s_add_u32 s{sOOFF}, s{sOOFF}, {WS_O}")
stamp(5)
W1LATE = stage['W1'] > stage['V3']
assert not W1LATE
def ffn1_block():
    I(f"s_cmp_eq_u32 s{sFFN}, 0")
    I("s_cbranch_scc1 L_NOFFN1")
    I(f"s_lshl_b32 s{sT2}, s{sA}, 11")
    I(f"s_lshl_b32 s{sT1}, s{sRQ}, 9")
    I(f"s_add_u32 s{sT2}, s{sT2}, s{sT1}")
    I(f"s_lshl_b32 s{sT1}, s{sWAVE}, 7")
    I(f"s_add_u32 s{sT2}, s{sT2}, s{sT1}")
    I(f"s_add_u32 s{sT2}, s{sT2}, {WS_H}")
    spin_prog_all(vPROG, stage["W1"], 136)
    gemv_tile(112, 140, 156)
    pairs16(112, 120)
    I("s_mov_b64 exec, 0x5555")
    pub_store(4, "v[120:123]", 132, sT2, sT1)
    I("s_mov_b64 exec, -1")
    L("L_NOFFN1")


if not W1LATE:
    ffn1_block()
sTS, sHS = 98, 99
I(f"s_lshl_b32 s{sTS}, s{sH}, 5")
I(f"s_add_u32 s{sTS}, s{sTS}, s{sJ}")
I(f"s_lshl_b32 s{sOG}, s{sTS}, 12")
I(f"s_lshl_b32 s{sTS}, s{sTS}, 9")
I(f"s_add_u32 s{sTS}, s{sTS}, {WS_T}")
I(f"s_add_u32 s{sTS}, s{sTS}, s{sFOFF}")
I(f"s_add_u32 s{sOG}, s{sOG}, s{sFOFF}")
I(f"v_bfe_u32 v14, v{vLANE}, 1, 3")
I("v_lshlrev_b32 v192, 4, v14")
I(f"v_and_b32 v15, 1, v{vLANE}")
I(f"v_lshl_add_u32 v15, v{vG4}, 1, v15")
I("v_lshlrev_b32 v15, 4, v15")
I("v_lshl_add_u32 v197, v14, 7, v15")
I(f"s_lshl_b32 s{sHS}, s{sA}, 11")
I(f"s_lshl_b32 s{sT1}, s{sRQ}, 7")
I(f"s_add_u32 s{sHS}, s{sHS}, s{sT1}")
I(f"s_add_u32 s{sHS}, s{sHS}, {WS_H}")
I(f"s_add_u32 s{sHS}, s{sHS}, s{sFOFF}")
I("v_and_b32 v14, 3, v14")
I("v_lshl_add_u32 v193, v14, 9, v15")
I(f"v_and_b32 v8, 1, v{vLANE}")
I(f"v_lshl_add_u32 v222, v8, 2, v{vG4}")
I("v_lshlrev_b32 v222, 12, v222")
I(f"v_lshrrev_b32 v10, 1, v{vN}")
I("v_lshl_add_u32 v222, v10, 4, v222")
I(f"s_mul_i32 s{sRP}, s{sWAVE}, 7")
I(f"s_lshl_b32 s{sT1}, s{sH}, 5")
I(f"s_add_u32 s{sRP}, s{sRP}, s{sT1}")
I(f"s_lshl_b32 s{sRP}, s{sRP}, 12")
I(f"s_lshl_b32 s{sT1}, s{sJ}, 7")
I(f"s_add_u32 s{sRP}, s{sRP}, s{sT1}")
I(f"s_add_u32 s{sRP}, s{sRP}, {WS_R}")
I(f"v_mov_b32 v126, s{sN0}")
I(f"v_mov_b32 v127, s{sN1}")
I(f"v_mov_b32 v202, s{sN0}")
I(f"v_mov_b32 v203, s{sN1}")
I(f"s_mov_b32 s{sDW}, 0")
ST = [172, 176, 180, 184]
HR = 188
def ror1(v, op, rors):
    for r in rors:
        nop(2)
        I(f"{op}_dpp v{v}, v{v}, v{v} row_ror:{r} row_mask:0xf bank_mask:0xf")
def ror2(v, w, op, rors):
    for r in rors:
        nop(1)
        I(f"{op}_dpp v{v}, v{v}, v{v} row_ror:{r} row_mask:0xf bank_mask:0xf")
        I(f"{op}_dpp v{w}, v{w}, v{w} row_ror:{r} row_mask:0xf bank_mask:0xf")
def stats_loads(soff):
    for r in range(4):
        I(f"buffer_load_dwordx4 v[{ST[r]}:{ST[r]+3}], v192, {S4('h')}, s{soff} offen offset:{r*128} sc1")
def stats_weights():
    I(f"v_max_f32 v194, v{ST[0]}, v{ST[1]}")
    I(f"v_max3_f32 v194, v194, v{ST[2]}, v{ST[3]}")
    ror1(194, "v_max_f32", (2, 4, 8))
    I(f"s_mov_b32 s{sT2}, {CEXP}")
    for r in ST:
        I(f"v_sub_f32 v{r}, v{r}, v194")
    for r in ST:
        I(f"v_mul_f32 v{r}, s{sT2}, v{r}")
    for r in ST:
        I(f"v_exp_f32 v{r}, v{r}")
    nop(1)
    I(f"v_mul_f32 v196, v{ST[0]}, v{ST[0]+1}")
    for r in ST[1:]:
        I(f"v_fmac_f32 v196, v{r}, v{r+1}")
    ror1(196, "v_add_f32", (2, 4, 8))
    I("v_rcp_f32 v196, v196")
    nop(1)
    for r in ST:
        I(f"v_mul_f32 v{r}, v{r}, v196")
    I(f"s_mov_b32 s{sWOK}, 1")
def pairs_to_A(vsrc, d0, d1):
    nop(2)
    I(f"v_mov_b32_dpp v{d0}, v{vsrc} quad_perm:[0,0,2,2] row_mask:0xf bank_mask:0xf")
    I(f"v_mov_b32_dpp v{d1}, v{vsrc} quad_perm:[1,1,3,3] row_mask:0xf bank_mask:0xf")
def h_compute():
    ror2(HR, HR+1, "v_add_f32", (2, 4))
    I(f"v_cvt_pk_bf16_f32 v{HR}, v{HR}, v{HR+1}")
    I(f"v_lshlrev_b32 v{HR+2}, 16, v{HR}")
    I(f"v_and_b32 v{HR+3}, 0xffff0000, v{HR}")
    I(f"v_lshlrev_b32 v194, 16, v{vB1}")
    I(f"v_and_b32 v195, 0xffff0000, v{vB1}")
    I(f"v_add_f32 v{HR+2}, v{HR+2}, v194")
    I(f"v_add_f32 v{HR+3}, v{HR+3}, v195")
    I(f"v_cvt_pk_bf16_f32 v{HR}, v{HR+2}, v{HR+3}")
    I(f"v_lshlrev_b32 v{HR+2}, 16, v{HR}")
    I(f"v_and_b32 v{HR+3}, 0xffff0000, v{HR}")
    I(f"v_max_f32 v{HR+2}, 0, v{HR+2}")
    I(f"v_max_f32 v{HR+3}, 0, v{HR+3}")
    I(f"v_mul_f32 v{HR+2}, v{HR+2}, v{HR+2}")
    I(f"v_mul_f32 v{HR+3}, v{HR+3}, v{HR+3}")
    I(f"v_cvt_pk_bf16_f32 v{HR}, v{HR+2}, v{HR+3}")
    pairs_to_A(HR, 198, 199)
    I(f"s_mov_b32 s{sHOK}, 1")

accA = 68
accB = 96
wB = 140
w2B = 156
def wo_reads():
    for t in range(7):
        I(f"ds_read_b64_tr_b16 v[{wB+2*t}:{wB+2*t+1}], v134 offset:{t*32}")
    I(f"s_mov_b32 s{sDW}, 1")
def ffn_work():
    for t in range(7):
        I(f"ds_read_b64_tr_b16 v[{w2B+2*t}:{w2B+2*t+1}], v134 offset:{16*PITCH + t*32}")
    for t in range(7):
        I(f"s_waitcnt lgkmcnt({6-t})")
        I(f"v_mfma_f32_16x16x16_bf16 v[{accB+4*t}:{accB+4*t+3}], v[198:199], v[{w2B+2*t}:{w2B+2*t+1}], 0")
    nop(3)
    for t in range(7):
        if t == 6:
            nop(2)
        I(f"v_mul_f32 v{accB+4*t}, v221, v{accB+4*t}")
    I(f"s_mov_b32 s{sDF}, 1")
I(f"s_xor_b32 s{sDF}, s{sFFN}, 1")
if not W1LATE:
    for t in range(7):
        I(f"v_mov_b32 v{accB+4*t}, 0")
vB = 52
accO = 68
for s in range(4):
    spin_prog_all(vPROG, stage[f"V{s}"], 136, sleep=(1 if s < 3 else 0))
    for tt in range(4):
        I(f"ds_read_b64_tr_b16 v[{vB+4*tt}:{vB+4*tt+1}], v{32+tt} offset:{s*16384}")
        I(f"ds_read_b64_tr_b16 v[{vB+4*tt+2}:{vB+4*tt+3}], v{32+tt} offset:{s*16384+8192}")
    for tt in range(4):
        I(f"s_waitcnt lgkmcnt({6-2*tt})")
        c = "0" if s == 0 else f"v[{accO+4*tt}:{accO+4*tt+3}]"
        I(f"v_mfma_f32_16x16x32_bf16 v[{accO+4*tt}:{accO+4*tt+3}], v[{pA+4*s}:{pA+4*s+3}], v[{vB+4*tt}:{vB+4*tt+3}], {c}")
    if s == 1:
        stats_loads(sTS)
        if not W1LATE:
            I(f"buffer_load_dwordx4 v[{HR}:{HR+3}], v193, {S4('h')}, s{sHS} offen sc1")
    if s == 2:
        I("s_waitcnt vmcnt(0)")
        e1 = newlabel("E1")
        tagmask(ST)
        I("s_cmp_eq_u64 vcc, exec")
        I(f"s_cbranch_scc0 {e1}")
        stats_weights()
        L(e1)
        if not W1LATE:
            e2 = newlabel("E2")
            I(f"s_cmp_eq_u32 s{sFFN}, 0")
            I(f"s_cbranch_scc1 {e2}")
            tagmask([HR])
            I("s_cmp_eq_u64 vcc, exec")
            I(f"s_cbranch_scc0 {e2}")
            h_compute()
            if stage["W2"] < stage["V3"]:
                spin_prog_all(vPROG, stage["W2"], 136, sleep=0)
                ffn_work()
            L(e2)
        if stage["WO"] < stage["V3"]:
            spin_prog_all(vPROG, stage["WO"], 136, sleep=0)
            wo_reads()
stamp(6)
nop(6)
I(f"v_cndmask_b32 v16, v{accO}, v{accO+4}, {G1}")
I(f"v_cndmask_b32 v17, v{accO+1}, v{accO+5}, {G1}")
I(f"v_cndmask_b32 v16, v16, v{accO+8}, {G2}")
I(f"v_cndmask_b32 v17, v17, v{accO+9}, {G2}")
I(f"v_cndmask_b32 v16, v16, v{accO+12}, {G3}")
I(f"v_cndmask_b32 v17, v17, v{accO+13}, {G3}")
nop(1)
I("v_mov_b32_dpp v18, v16 quad_perm:[1,0,3,2] row_mask:0xf bank_mask:0xf")
I("v_mov_b32_dpp v19, v17 quad_perm:[1,0,3,2] row_mask:0xf bank_mask:0xf")
nop(1)
I(f"v_cndmask_b32 v200, v16, v19, {ODD}")
I(f"v_cndmask_b32 v201, v18, v17, {ODD}")
pub_store(4, "v[200:203]", 135, sOOFF, sT1)
stamp(7)
if W1LATE:
    ffn1_block()
I(f"s_cmp_lg_u32 s{sWOK}, 0")
I("s_cbranch_scc1 L_TOK")
L("L_TPOLL")
stats_loads(sTS)
I("s_waitcnt vmcnt(0)")
tagcheck(ST, "L_TPOLL", "L_TPOLL_DONE")
L("L_TPOLL_DONE")
stats_weights()
L("L_TOK")
I(f"s_cmp_lg_u32 s{sDF}, 0")
I("s_cbranch_scc1 L_FDONE0")
I(f"s_cmp_lg_u32 s{sHOK}, 0")
I("s_cbranch_scc1 L_HOK")
L("L_HPOLL")
I(f"buffer_load_dwordx4 v[{HR}:{HR+3}], v193, {S4('h')}, s{sHS} offen sc1")
I("s_waitcnt vmcnt(0)")
tagcheck([HR], "L_HPOLL", "L_HPOLL_DONE")
L("L_HPOLL_DONE")
h_compute()
L("L_HOK")
L("L_FDONE0")
I(f"s_add_u32 s{sT2}, s{sOG}, {WS_O}")
L("L_OPOLL")
for r in range(4):
    I(f"buffer_load_dwordx4 v[{48+4*r}:{51+4*r}], v197, {S4('h')}, s{sT2} offen offset:{r*1024} sc1")
I(f"s_and_b32 s{sT0}, s{sDW}, s{sDF}")
I("s_cbranch_scc1 L_OCHK")
I(f"ds_read_b128 v[136:139], v{vPROG}")
I("s_waitcnt lgkmcnt(0)")
I("v_min3_u32 v136, v136, v137, v138")
I("v_min_u32 v136, v136, v139")
nop(1)
I(f"v_readfirstlane_b32 s{sT3}, v136")
I(f"s_cmp_lg_u32 s{sDW}, 0")
I("s_cbranch_scc1 L_OC2")
I(f"s_cmp_ge_u32 s{sT3}, {stage['WO']}")
I("s_cbranch_scc0 L_OC2")
wo_reads()
L("L_OC2")
I(f"s_cmp_lg_u32 s{sDF}, 0")
I("s_cbranch_scc1 L_OCHK")
I(f"s_cmp_ge_u32 s{sT3}, {stage['W2']}")
I("s_cbranch_scc0 L_OCHK")
ffn_work()
L("L_OCHK")
I("s_waitcnt vmcnt(0)")
tagcheck([48, 52, 56, 60], "L_OPOLL", "L_OPOLL_DONE")
L("L_OPOLL_DONE")
stamp(8)
I(f"v_mul_f32 v40, v{ST[0]}, v48")
I(f"v_mul_f32 v41, v{ST[0]}, v49")
for r in range(1, 4):
    I(f"v_fmac_f32 v40, v{ST[r]}, v{48+4*r}")
    I(f"v_fmac_f32 v41, v{ST[r]}, v{49+4*r}")
ror2(40, 41, "v_add_f32", (2, 4, 8))
I("v_cvt_pk_bf16_f32 v40, v40, v41")
pairs_to_A(40, 46, 47)
I(f"s_cmp_lg_u32 s{sDW}, 0")
I("s_cbranch_scc1 L_WD1")
spin_prog_all(vPROG, stage["WO"], 136, sleep=0)
wo_reads()
L("L_WD1")
I(f"s_cmp_lg_u32 s{sDF}, 0")
I("s_cbranch_scc1 L_WDONE")
spin_prog_all(vPROG, stage["W2"], 136, sleep=0)
ffn_work()
L("L_WDONE")
I("s_waitcnt lgkmcnt(0)")
for t in range(7):
    I(f"v_mfma_f32_16x16x16_bf16 v[{accA+4*t}:{accA+4*t+3}], v[46:47], v[{wB+2*t}:{wB+2*t+1}], 0")
nop(3)
for t in range(7):
    if t == 6:
        nop(1)
    I(f"v_fmac_f32 v{accB+4*t}, v220, v{accA+4*t}")
stamp(9)
I(f"v_cndmask_b32 v16, v{accB}, v{accB+4}, {G1}")
I(f"v_cndmask_b32 v17, v{accB+16}, v{accB+20}, {G1}")
I(f"v_cndmask_b32 v16, v16, v{accB+8}, {G2}")
I(f"v_cndmask_b32 v17, v17, v{accB+24}, {G2}")
I(f"v_cndmask_b32 v16, v16, v{accB+12}, {G3}")
nop(2)
I("v_mov_b32_dpp v18, v16 quad_perm:[1,0,3,2] row_mask:0xf bank_mask:0xf")
I("v_mov_b32_dpp v19, v17 quad_perm:[1,0,3,2] row_mask:0xf bank_mask:0xf")
nop(1)
I(f"v_cndmask_b32 v124, v16, v19, {ODD}")
I(f"v_cndmask_b32 v125, v18, v17, {ODD}")
I("s_mov_b32 exec_hi, 0x5555ffff")
pub_store(4, "v[124:127]", 222, sRP, sT1)
I("s_mov_b64 exec, -1")
stamp(10)
I(f"s_cmp_eq_u32 s{sWAVE}, 0")
I(f"s_cselect_b32 s{sT0}, s{sJ}, 99")
I(f"s_cmp_lt_u32 s{sT0}, 28")
I("s_cbranch_scc0 L_CEND")
I(f"s_add_u32 s{sT3}, s{sOG}, {WS_R}")
I(f"s_lshl_b32 s{sT2}, s{sJ}, 10")
I(f"s_add_u32 s{sT2}, s{sT2}, {WS_P2}")
I(f"s_lshl_b32 s{sT1}, s{sH}, 7")
I(f"s_add_u32 s{sT1}, s{sT1}, s{sT2}")
L("L_RPOLL")
for r in range(4):
    I(f"buffer_load_dwordx4 v[{48+4*r}:{51+4*r}], v197, {S4('h')}, s{sT3} offen offset:{r*1024} sc1")
I("s_waitcnt vmcnt(0)")
tagcheck([48, 52, 56, 60], "L_RPOLL", "L_RPOLL_DONE")
L("L_RPOLL_DONE")
I("v_add_f32 v48, v48, v52")
I("v_add_f32 v49, v49, v53")
I("v_add_f32 v56, v56, v60")
I("v_add_f32 v57, v57, v61")
I("v_add_f32 v48, v48, v56")
I("v_add_f32 v49, v49, v57")
ror2(48, 49, "v_add_f32", (2, 4, 8))
I(f"v_mov_b32 v50, s{sN0}")
I(f"v_mov_b32 v51, s{sN1}")
I("s_mov_b32 exec_lo, 0x00030003")
I("s_mov_b32 exec_hi, 0x00030003")
I(f"buffer_store_dwordx4 v[48:51], v197, {S4('h')}, s{sT1} offen sc1")
I("s_mov_b64 exec, -1")
stamp(11)
I(f"s_and_b32 s{sT0}, s{sJ}, 7")
I(f"s_cmp_eq_u32 s{sT0}, s{sH}")
I("s_cbranch_scc0 L_CEND")
I(f"v_lshlrev_b32 v22, 16, v{vB2}")
I(f"v_and_b32 v23, 0xffff0000, v{vB2}")
L("L_FPOLL")
if args.fsleep:
    I(f"s_sleep {args.fsleep}")
I(f"buffer_load_dwordx4 v[16:19], v197, {S4('h')}, s{sT2} offen {args.fflags.replace('_',' ')}")
I("s_waitcnt vmcnt(0)")
tagcheck([16], "L_FPOLL", "L_FPOLL_DONE")
L("L_FPOLL_DONE")
ror2(16, 17, "v_add_f32", (2, 4, 8))
I("v_fmac_f32 v16, v221, v22")
I("v_fmac_f32 v17, v221, v23")
I("v_cvt_pk_bf16_f32 v16, v16, v17")
I("s_mov_b32 exec_lo, 0x00030003")
I("s_mov_b32 exec_hi, 0x00030003")
I(f"buffer_store_dword v16, v133, {S4('f')}, 0 offen")
I(f"s_cmp_lg_u32 s2, 0")
I("s_cbranch_scc1 L_NOEP")
I(f"v_mov_b32 v8, {WS_E}")
I(f"v_mov_b32 v12, s{sN0}")
I(f"v_mov_b32 v13, s{sN1}")
I("s_mov_b64 exec, 1")
I(f"buffer_store_dwordx2 v[12:13], v8, {S4('h')}, 0 offen sc1")
if args.probe:
    I("s_memrealtime s[16:17]")
    I("s_waitcnt lgkmcnt(0)")
    I("s_sub_u32 s18, s16, s96")
    I(f"s_mul_i32 s18, s18, {args.probe}")
    L("L_PROBE")
    I("s_memrealtime s[20:21]")
    I("s_waitcnt lgkmcnt(0)")
    I("s_sub_u32 s19, s20, s16")
    I("s_cmp_lt_u32 s19, s18")
    I("s_cbranch_scc1 L_PROBE")
L("L_NOEP")
stamp(12)
L("L_CEND")
stamp_flush(cons=True)
L("L_END")
I("s_endpgm")
L("L_CODE_END")
if not args.nopf:
    A(".set CODE_BYTES_AFTER_PC, L_CODE_END - L_PC")
A('.section .rodata,"a"')
A(".p2align 6")
A(f".amdhsa_kernel {NAME}")
A("  .amdhsa_next_free_vgpr 256")
A("  .amdhsa_next_free_sgpr 102")
A("  .amdhsa_accum_offset 256")
A("  .amdhsa_group_segment_fixed_size 0")
A("  .amdhsa_kernarg_size 112")
A("  .amdhsa_user_sgpr_count 2")
A("  .amdhsa_user_sgpr_kernarg_segment_ptr 1")
A("  .amdhsa_system_sgpr_workgroup_id_x 1")
A(".end_amdhsa_kernel")
txt = "\n".join(out)
import re
if args.nopre:
    txt = re.sub(r"    buffer_store_dwordx4 v\[204:207\], .*\n", "", txt)
if args.preload:
    import re
    txt = re.sub(r"buffer_store_dwordx4 v\[204:207\], (v8, s\[72:75\], s10 offen(?: offset:\d+)?)", r"buffer_load_dwordx4 v[208:211], \1 sc1", txt)
if args.nont:
    txt = txt.replace(" nt lds", " lds")
print(txt)
```
